```python
import torch

def _softmax(x, axis=-1):
    return torch.softmax(x, dim=axis)
def _gelu(x):
    return torch.nn.functional.gelu(x, approximate="tanh")
def _silu(x):
    return torch.nn.functional.silu(x)
def _sigmoid(x):
    return torch.sigmoid(x)
def _layernorm(x, axis=-1, eps=1e-5):
    m = x.mean(dim=axis, keepdim=True)
    v = x.var(dim=axis, keepdim=True, unbiased=False)
    return (x - m) / torch.sqrt(v + eps)
def _scatter_add(tgt, idx, src, axis=0):
    return tgt.clone().index_add_(axis, idx, src)
def _segment_sum(src, seg, n):
    out = torch.zeros((n,) + src.shape[1:], dtype=src.dtype)
    return out.index_add_(0, seg, src)
def _pad(x, pw):
    flat = tuple(v for pair in reversed(pw) for v in pair)
    return torch.nn.functional.pad(x, flat)

kernel_name = 'concat_heads__gqa_block_cached__sliding_block_cached__decode'

def setup_inputs():

    _w = (lambda a: (lambda t: t.to(torch.bfloat16) if t.is_floating_point() else t)(torch.as_tensor(a)))
    def _A_setup():
        B, Sq, D = 2, 1, 1024
        Hq, Hkv, Sk, Dh = 32, 4, 32768, 128
        assert Hq % Hkv == 0, (Hq, Hkv)
        return {
            "x": _w((lambda *s: torch.randn(*s, dtype=torch.bfloat16) * 0.8)(B, Sq, D)),
            "k_cache": _w((lambda *s: torch.randn(*s, dtype=torch.bfloat16) * 1.6)(B, Hkv, Sk, Dh)),
            "v_cache": _w((lambda *s: torch.randn(*s, dtype=torch.bfloat16) * 0.2)(B, Hkv, Sk, Dh)),
            "wq": _w((lambda *s: torch.randn(*s, dtype=torch.bfloat16) * 1.6)(D, Hq * Dh) * (D ** -0.5)),
            "wo": _w((lambda *s: torch.randn(*s, dtype=torch.bfloat16) * 0.2)(Hq * Dh, D) * ((Hq * Dh) ** -0.5)),
        }
    _A_in = _A_setup()

    def _B_setup():
        B, Sq, D = 2, 1, 1024
        Hq, Hkv, Sk, Dh = 32, 4, 32768, 128
        assert Hq % Hkv == 0, (Hq, Hkv)
        return {
            "x": _w((lambda *s: torch.randn(*s, dtype=torch.bfloat16) * 0.8)(B, Sq, D)),
            "k_cache": _w((lambda *s: torch.randn(*s, dtype=torch.bfloat16) * 1.6)(B, Hkv, Sk, Dh)),
            "v_cache": _w((lambda *s: torch.randn(*s, dtype=torch.bfloat16) * 0.2)(B, Hkv, Sk, Dh)),
            "wq": _w((lambda *s: torch.randn(*s, dtype=torch.bfloat16) * 1.6)(D, Hq * Dh) * (D ** -0.5)),
            "wo": _w((lambda *s: torch.randn(*s, dtype=torch.bfloat16) * 0.2)(Hq * Dh, D) * ((Hq * Dh) ** -0.5)),
        }
    _B_in = _B_setup()

    return {
        "A_x": _A_in["x"],
        "A_k_cache": _A_in["k_cache"],
        "A_v_cache": _A_in["v_cache"],
        "A_wq": _A_in["wq"],
        "A_wo": _A_in["wo"],
        "B_x": _B_in["x"],
        "B_k_cache": _B_in["k_cache"],
        "B_v_cache": _B_in["v_cache"],
        "B_wq": _B_in["wq"],
        "B_wo": _B_in["wo"],
    }

def reference(A_x, A_k_cache, A_v_cache, A_wq, A_wo, B_x, B_k_cache, B_v_cache, B_wq, B_wo):
    def _A_ref(x, k_cache, v_cache, wq, wo):
        B, Sq, D = x.shape
        Hq, Dh = 32, 128
        Hkv = k_cache.shape[1]
        rep = Hq // Hkv
        q = (lambda x, *d: x.permute(*d))((x @ wq).reshape(B, Sq, Hq, Dh), 0, 2, 1, 3)
        k = (lambda x, n, axis: torch.repeat_interleave(x, n, dim=axis))(k_cache, rep, axis=1)
        v = (lambda x, n, axis: torch.repeat_interleave(x, n, dim=axis))(v_cache, rep, axis=1)
        scores = torch.einsum("bhqd,bhkd->bhqk", q, k) * (Dh ** -0.5)
        p = _softmax(scores, axis=-1)
        o = torch.einsum("bhqk,bhkd->bhqd", p, v)
        return (lambda x, *d: x.permute(*d))(o, 0, 2, 1, 3).reshape(B, Sq, Hq * Dh) @ wo

    def _B_ref(x, k_cache, v_cache, wq, wo):
        B, Sq, D = x.shape
        Hq, Dh = 32, 128
        Hkv, Sk = k_cache.shape[1], k_cache.shape[2]
        W = min(4096, max(256, Sk // 4))
        rep = Hq // Hkv
        q = (lambda x, *d: x.permute(*d))((x @ wq).reshape(B, Sq, Hq, Dh), 0, 2, 1, 3)
        k = (lambda x, n, axis: torch.repeat_interleave(x, n, dim=axis))(k_cache[:, :, Sk - W:, :], rep, axis=1)
        v = (lambda x, n, axis: torch.repeat_interleave(x, n, dim=axis))(v_cache[:, :, Sk - W:, :], rep, axis=1)
        scores = torch.einsum("bhqd,bhkd->bhqk", q, k) * (Dh ** -0.5)
        p = _softmax(scores, axis=-1)
        o = torch.einsum("bhqk,bhkd->bhqd", p, v)
        return (lambda x, *d: x.permute(*d))(o, 0, 2, 1, 3).reshape(B, Sq, Hq * Dh) @ wo

    a = _A_ref(A_x, A_k_cache, A_v_cache, A_wq, A_wo)
    b = _B_ref(B_x, B_k_cache, B_v_cache, B_wq, B_wo)
    return torch.concatenate([a, b], axis=-1)
```

```python
KNAME = "concat_heads__gqa_block_cached__sliding_block_cached__decode_kernel"
class Asm:
    def __init__(self):
        self.l = []
    def __call__(self, s):
        for x in s.strip("\n").split("\n"):
            self.l.append(x if x.rstrip().endswith(":") else "    " + x.strip())
    def text(self):
        return "\n".join(self.l) + "\n"

def header(launch_lines):
    return "".join("; @launch %s\n" % x for x in launch_lines) + '.amdgcn_target "amdgcn-amd-amdhsa--gfx950"\n.text\n'

def kernel_open(name):
    return ".globl %s\n.p2align 8\n.type %s,@function\n%s:\n" % (name, name, name)

def descriptor(name, vgpr, sgpr, accum):
    return (".amdhsa_kernel %s\n  .amdhsa_next_free_vgpr %d\n  .amdhsa_next_free_sgpr %d\n  .amdhsa_accum_offset %d\n"
            "  .amdhsa_group_segment_fixed_size 0\n  .amdhsa_kernarg_size 104\n  .amdhsa_user_sgpr_count 2\n"
            "  .amdhsa_user_sgpr_kernarg_segment_ptr 1\n  .amdhsa_system_sgpr_workgroup_id_x 1\n"
            "  .amdhsa_float_denorm_mode_32 3\n.end_amdhsa_kernel\n" % (name, vgpr, sgpr, accum))
RODATA = '.section .rodata,"a"\n.p2align 6\n'
```

```python
import sys, math
from asmlib import *

NSLOT = 16
PBASE = NSLOT * 8192
QBASE = PBASE
SY = PBASE + 36 * 512
L_LANDED = SY
L_FREE = SY + 256
L_STAGE = SY + 1280
L_HST = SY + 2304
L_MX = SY + 2560
L_LW = SY + 2816
L_F = SY + 3072
L_OX = SY + 3328
L_RX = SY + 3840
LDS_BYTES = SY + 4352
W_QP = 0x000000
W_ML = 0x020000
W_IN1 = 0x100000
W_IN2 = 0x300000
STAMP_OFF = 0x10000000
CSCALE = math.log2(math.e) / math.sqrt(128.0)
import struct
def f2u(x): return struct.unpack("<I", struct.pack("<f", x))[0]

def gen(win=20, stamps=False, wo_early=0, win_tail=None, budget=1 << 20):
    a = Asm()
    uid = [0]
    def lab(p):
        uid[0] += 1
        return "L_%s_%d" % (p, uid[0])
    segs = [("wq", 8), ("kb", 4), ("ka", 32)]
    if wo_early: segs += [("woE", 4)]
    segs += [("vb", 4), ("va", 32)]
    segs += [("woL", 4)] if wo_early else [("woE", 4), ("woL", 4)]
    T0 = {}; t = 0
    for n, c in segs:
        T0[n] = t; t += c
    NT = t
    assert T0["wq"] == 0 and (T0["woE"] % NSLOT) <= NSLOT - 4 and (T0["woL"] % NSLOT) <= NSLOT - 4
    assert T0["kb"] % 4 == 0 and T0["ka"] % 4 == 0

    sCU = "s2"; sW = "s30"; sB = "s31"
    VST = 250
    def stamp(k):
        if stamps:
            a("s_memrealtime s[96:97]"); a("s_waitcnt lgkmcnt(0)"); a("v_writelane_b32 v%d, s96, %d" % (VST, k))
    def stamp_flush():
        if stamps:
            a("s_mov_b64 exec, -1")
            a("s_getreg_b32 s96, hwreg(HW_REG_XCC_ID)")
            a("v_writelane_b32 v%d, s96, 63" % VST)
            a("s_mul_i32 s96, s2, 6"); a("s_add_u32 s96, s96, s30"); a("s_lshl_b32 s96, s96, 8")
            a("v_lshl_add_u32 v251, v0, 2, s96")
            a("s_add_u32 s98, s28, 0x%x" % STAMP_OFF); a("s_addc_u32 s99, s29, 0")
            a("global_store_dword v251, v%d, s[98:99]" % VST)
            a("s_waitcnt vmcnt(0)")
    def budget_loop(label):
        a("s_sub_u32 %s, %s, 1" % (sB, sB))
        a("s_cbranch_scc0 %s" % label)
        a("s_mov_b32 %s, 0" % sB)
    def wait_word(scache, vaddr, vtmp, thr, off=0, sleep=0):
        lp = lab("pw"); ok = lab("ok")
        a(lp + ":")
        a("s_cmp_gt_u32 %s, %s" % (scache, thr))
        a("s_cbranch_scc1 " + ok)
        if sleep: a("s_sleep %d" % sleep)
        a("ds_read_b32 %s, %s offset:%d" % (vtmp, vaddr, off))
        a("s_waitcnt lgkmcnt(0)")
        a("v_readfirstlane_b32 %s, %s" % (scache, vtmp))
        budget_loop(lp)
        a(ok + ":")
    def wait_min4(scache, vaddr, vt, thr, off=0, sleep=0):
        lp = lab("pm"); ok = lab("ok")
        a(lp + ":")
        a("s_cmp_gt_u32 %s, %s" % (scache, thr))
        a("s_cbranch_scc1 " + ok)
        if sleep: a("s_sleep %d" % sleep)
        a("ds_read_b128 v[%d:%d], %s offset:%d" % (vt, vt + 3, vaddr, off))
        a("s_waitcnt lgkmcnt(0)")
        a("v_min3_u32 v%d, v%d, v%d, v%d" % (vt, vt, vt + 1, vt + 2))
        a("v_min_u32 v%d, v%d, v%d" % (vt, vt, vt + 3))
        a("s_nop 0")
        a("v_readfirstlane_b32 %s, v%d" % (scache, vt))
        budget_loop(lp)
        a(ok + ":")
    def poll_valid(loads, regs, vtmp, sleep=1):
        loads()
        lp = lab("pv"); ok = lab("ok")
        a(lp + ":")
        a("s_mov_b64 exec, -1")
        a("s_waitcnt vmcnt(0)")
        r = list(regs)
        if len(r) == 2:
            a("v_max_u32 v%d, v%d, v%d" % (vtmp, r[0], r[1]))
        else:
            a("v_max3_u32 v%d, v%d, v%d, v%d" % (vtmp, r[0], r[1], r[2])); r = r[3:]
            while len(r) >= 2:
                a("v_max3_u32 v%d, v%d, v%d, v%d" % (vtmp, vtmp, r[0], r[1])); r = r[2:]
            if r: a("v_max_u32 v%d, v%d, v%d" % (vtmp, vtmp, r[0]))
        a("v_cmp_eq_u32 vcc, -1, v%d" % vtmp)
        a("s_and_b64 exec, vcc, vcc")
        a("s_cbranch_scc0 " + ok)
        if sleep: a("s_sleep %d" % sleep)
        loads()
        budget_loop(lp)
        a(ok + ":")
        a("s_mov_b64 exec, -1")
        a("s_waitcnt vmcnt(0)")
    def bfly(op, v, vt, bits):
        for b in bits:
            if b <= 3:
                a("s_nop 1")
                a("%s_dpp v%d, v%d, v%d row_ror:%d row_mask:0xf bank_mask:0xf" % (op, v, v, v, 1 << b))
            else:
                a("v_mov_b32 v%d, v%d" % (vt, v))
                a("s_nop 1")
                a("v_permlane%d_swap_b32 v%d, v%d" % (1 << b, v, vt))
                a("%s v%d, v%d, v%d" % (op, v, v, vt))
    def bfly4(op, v, vt, bits):
        for b in bits:
            if b <= 3:
                a("s_nop 0")
                for r in range(4):
                    a("%s_dpp v%d, v%d, v%d row_ror:%d row_mask:0xf bank_mask:0xf" % (op, v + r, v + r, v + r, 1 << b))
            else:
                for r in range(4): a("v_mov_b32 v%d, v%d" % (vt + r, v + r))
                a("s_nop 0")
                for r in range(4): a("v_permlane%d_swap_b32 v%d, v%d" % (1 << b, v + r, vt + r))
                for r in range(4): a("%s v%d, v%d, v%d" % (op, v + r, v + r, vt + r))

    a("s_cmp_ge_u32 s2, 256")
    a("s_cbranch_scc1 L_end")
    a("s_load_dwordx16 s[4:19], s[0:1], 0")
    a("s_load_dwordx8 s[20:27], s[0:1], 64")
    a("s_load_dwordx2 s[28:29], s[0:1], 96")
    a("v_lshrrev_b32 v1, 6, v0")
    a("v_and_b32 v0, 63, v0")
    a("v_readfirstlane_b32 s30, v1")
    a("s_mov_b32 %s, %d" % (sB, budget))
    if stamps:
        a("v_mov_b32 v%d, 0" % VST); stamp(0)
    a("v_lshrrev_b32 v1, 4, v0")
    a("v_and_b32 v2, 15, v0")
    a("s_cmp_eq_u32 s30, 1")
    a("s_cbranch_scc1 L_helper")
    a("s_cmp_gt_u32 s30, 1")
    a("s_cbranch_scc1 L_cons")

    a("s_setprio 3")
    vK = [4, 5, 6, 7]; vV = [8, 9]; vWQ = [10, 11]; vWO = list(range(12, 20))
    a("v_lshrrev_b32 v20, 3, v0"); a("v_lshlrev_b32 v20, 13, v20")
    a("v_and_b32 v21, 7, v0"); a("v_and_b32 v22, 1, v1"); a("v_lshlrev_b32 v22, 1, v22")
    a("v_xor_b32 v21, v21, v22")
    a("v_lshl_add_u32 v10, v21, 4, v20")
    a("v_xor_b32 v11, 64, v10")
    for i in range(4):
        a("v_add_u32 v20, %d, v1" % (4 * i)); a("v_xor_b32 v20, v20, v2"); a("v_lshlrev_b32 v20, 4, v20")
        a("v_lshl_add_u32 v%d, v1, 8, v20" % vK[i])
    for i in range(2):
        a("v_add_u32 v20, %d, v1" % (4 * i)); a("v_lshlrev_b32 v20, 1, v20"); a("v_xor_b32 v20, v20, v2")
        a("v_lshlrev_b32 v20, 4, v20"); a("v_lshl_add_u32 v%d, v1, 8, v20" % vV[i])
    a("v_lshlrev_b32 v12, 4, v0")
    for j in range(1, 8):
        a("v_xor_b32 v%d, %d, v12" % (vWO[j], 32 * j))
    a("v_lshlrev_b32 v24, 2, v0"); a("v_add_u32 v24, %d, v24" % L_LANDED)
    a("v_mov_b32 v25, 0")
    a("v_mov_b32 v26, %d" % L_FREE)
    a("ds_write_b32 v24, v25")
    a("s_waitcnt lgkmcnt(0)")
    def srd(d, lo, size):
        a("s_mov_b32 s%d, s%d" % (d, lo)); a("s_and_b32 s%d, s%d, 0xffff" % (d + 1, lo + 1))
        a("s_mov_b32 s%d, 0x%x" % (d + 2, size)); a("s_mov_b32 s%d, 0x20000" % (d + 3))
    a("s_cmp_lt_u32 s2, 128")
    a("s_cselect_b32 s32, s10, s20"); a("s_cselect_b32 s33, s11, s21")
    a("s_cselect_b32 s52, s12, s22"); a("s_cselect_b32 s53, s13, s23")
    a("s_and_b32 s33, s33, 0xffff"); a("s_mov_b32 s34, 0x800000"); a("s_mov_b32 s35, 0x20000")
    a("s_and_b32 s56, s2, 1"); a("s_lshl_b32 s56, s56, 22")
    a("s_bfe_u32 s57, s2, 0x60001"); a("s_lshl_b32 s57, s57, 7"); a("s_add_u32 s56, s56, s57")
    nload = [0]
    landed_sig = [0]
    def after_load(w):
        nload[0] += 1
        n = nload[0]
        if win_tail and landed_sig[0] >= T0["va"] + 32: w = win_tail
        if n >= w:
            a("s_waitcnt vmcnt(%d)" % (w - 1))
            done = (n - (w - 1)) // 8
            if done > landed_sig[0]:
                landed_sig[0] = done
                a("v_mov_b32 v25, %d" % done); a("ds_write_b32 v24, v25")
                if stamps and done in (1, 8, T0["ka"], T0["vb"], T0["va"], T0["va"] + 32):
                    stamp({1: 2, 8: 3, T0["ka"]: 4, T0["vb"]: 5, T0["va"]: 6, T0["va"] + 32: 7}[done])
    first = True
    a("s_mov_b32 s61, 0")
    for name, cnt in segs:
        for u in range(cnt):
            T = T0[name] + u
            slot = (T % NSLOT) * 8192
            w = win
            if T >= NSLOT:
                wait_min4("s61", "v26", 28, str(T - NSLOT))
            if name == "wq":
                for i in range(8):
                    a("s_mov_b32 m0, %d" % (slot + i * 1024))
                    a("s_add_u32 s60, s56, %d" % ((u * 8 + i) * 65536))
                    a("buffer_load_dwordx4 v%d, s[32:35], s60 offen nt lds" % vWQ[i & 1])
                    after_load(w)
                if u == 1:
                    srd(36, 16, 64 << 20); srd(40, 6, 64 << 20); srd(44, 18, 64 << 20); srd(48, 8, 64 << 20)
                    a("s_and_b32 s53, s53, 0xffff"); a("s_mov_b32 s54, 0x800000"); a("s_mov_b32 s55, 0x20000")
                    a("s_lshl_b32 s57, s2, 18")
                    a("s_lshr_b32 s58, s2, 5"); a("s_lshl_b32 s58, s58, 23")
                    a("s_and_b32 s59, s2, 31"); a("s_lshl_b32 s59, s59, 15"); a("s_add_u32 s58, s58, s59")
                    a("s_add_u32 s58, s58, %d" % ((32768 - 4096) * 256))
                    a("s_and_b32 s59, s2, 127"); a("s_lshl_b32 s59, s59, 16")
                    a("s_waitcnt lgkmcnt(0)")
                    a("s_barrier")
                    stamp(1)
                continue
            srdn, sreg, base = {"kb": (36, 58, 0), "ka": (40, 57, 0), "vb": (44, 58, 0), "va": (48, 57, 0),
                                "woE": (52, 59, 0), "woL": (52, 59, 32768)}[name]
            for h in range(2):
                a("s_mov_b32 m0, %d" % (slot + h * 4096))
                a("s_add_u32 s60, s%d, %d" % (sreg, base + u * 8192 + h * 4096))
                for i in range(4):
                    if name[0] == "k": vr = vK[i]
                    elif name[0] == "v": vr = vV[i & 1]
                    else: vr = vWO[(4 * u + 2 * h + (i >> 1)) & 7]
                    a("buffer_load_dwordx4 v%d, s[%d:%d], s60 offen offset:%d nt lds" % (vr, srdn, srdn + 3, i * 1024))
                    after_load(w)
    while landed_sig[0] < NT:
        done = landed_sig[0] + 1
        a("s_waitcnt vmcnt(%d)" % (nload[0] - 8 * done))
        landed_sig[0] = done
        a("v_mov_b32 v25, %d" % done); a("ds_write_b32 v24, v25")
        if stamps and done == T0["va"] + 32: stamp(7)
    a("s_waitcnt lgkmcnt(0)")
    stamp(8)
    stamp_flush()
    a("s_endpgm")

    a("L_helper:")
    for r in range(4, 8): a("v_mov_b32 v%d, -1" % r)
    a("v_lshlrev_b32 v8, 4, v0")
    a("v_add_u32 v9, 4096, v8")
    a("v_lshlrev_b32 v24, 2, v0"); a("v_add_u32 v24, %d, v24" % L_HST)
    a("v_mov_b32 v25, 0"); a("ds_write_b32 v24, v25")
    a("v_mov_b32 v10, 0"); a("v_mov_b32 v11, 1")
    a("s_waitcnt lgkmcnt(0)")
    a("s_barrier")
    def clear8k(sp):
        for i in range(8):
            a("global_store_dwordx4 v%d, v[4:7], s[%d:%d] offset:%d sc1" % (8 + (i >> 2), sp, sp + 1, (i & 3) * 1024))
    a("s_and_b32 s32, s2, 0x87")
    a("s_cmp_eq_u32 s32, 0")
    a("s_cbranch_scc0 L_h_noq")
    a("s_lshl_b32 s32, s2, 10")
    a("s_add_u32 s34, s28, s32"); a("s_addc_u32 s35, s29, 0")
    clear8k(34)
    a("s_waitcnt vmcnt(0)")
    a("s_mov_b64 exec, 1")
    a("global_atomic_add v10, v11, s[26:27] sc1")
    a("s_mov_b64 exec, -1")
    a("L_h_noq:")
    a("s_lshl_b32 s32, s2, 13")
    a("s_add_u32 s33, s32, 0x%x" % W_IN1); a("s_add_u32 s34, s28, s33"); a("s_addc_u32 s35, s29, 0")
    clear8k(34)
    a("s_add_u32 s33, s32, 0x%x" % W_IN2); a("s_add_u32 s36, s28, s33"); a("s_addc_u32 s37, s29, 0")
    clear8k(36)
    a("s_lshl_b32 s32, s2, 7")
    a("s_add_u32 s33, s32, 0x%x" % W_ML); a("s_add_u32 s38, s28, s33"); a("s_addc_u32 s39, s29, 0")
    a("s_mov_b64 exec, 0xff")
    a("global_store_dwordx4 v8, v[4:7], s[38:39] sc1")
    a("s_mov_b64 exec, -1")
    a("s_waitcnt vmcnt(0)")
    a("s_mov_b64 exec, 1")
    a("global_atomic_add v10, v11, s[26:27] offset:128 sc1")
    a("s_mov_b64 exec, -1")
    stamp(1)
    def poll_counter(off, target, st):
        lp = lab("pc"); ok = lab("ok")
        a(lp + ":")
        a("global_load_dword v12, v10, s[26:27] offset:%d sc1" % off)
        a("s_waitcnt vmcnt(0)")
        a("v_readfirstlane_b32 s40, v12")
        a("s_cmp_ge_u32 s40, %d" % target)
        a("s_cbranch_scc1 " + ok)
        a("s_sleep 4")
        budget_loop(lp)
        a(ok + ":")
        a("v_mov_b32 v25, %d" % st); a("ds_write_b32 v24, v25")
    poll_counter(0, 16, 1)
    stamp(2)
    a("s_mov_b32 s41, 0"); a("v_mov_b32 v26, %d" % L_STAGE)
    wait_min4("s41", "v26", 28, "0", sleep=8)
    poll_counter(128, 256, 2)
    stamp(3)
    wait_min4("s41", "v26", 28, "2", sleep=8)
    a("v_lshlrev_b32 v13, 2, v2"); a("v_add_u32 v13, %d, v13" % L_MX)
    for w in range(4):
        a("ds_read_b32 v%d, v13 offset:%d" % (32 + w, 64 * w))
        a("ds_read_b32 v%d, v13 offset:%d" % (36 + w, L_LW - L_MX + 64 * w))
    a("s_waitcnt lgkmcnt(0)")
    a("v_max3_f32 v14, v32, v33, v34"); a("v_max_f32 v14, v14, v35")
    a("v_add_f32 v15, v36, v37"); a("v_add_f32 v38, v38, v39"); a("v_add_f32 v15, v15, v38")
    a("v_min_u32 v14, -2, v14"); a("v_min_u32 v15, -2, v15")
    a("v_lshlrev_b32 v13, 3, v2")
    a("s_mov_b64 exec, 0xffff")
    a("global_store_dwordx2 v13, v[14:15], s[38:39] sc1")
    a("s_mov_b64 exec, -1")
    stamp(4)
    a("s_bfe_u32 s32, s2, 0x20005")
    a("s_lshl_b32 s32, s32, 12")
    a("s_bfe_u32 s33, s2, 0x30002")
    a("s_lshr_b32 s34, s2, 7"); a("s_lshl_b32 s34, s34, 3"); a("s_add_u32 s33, s33, s34"); a("s_lshl_b32 s33, s33, 3")
    a("s_add_u32 s32, s32, s33"); a("s_add_u32 s32, s32, 0x%x" % W_ML)
    a("s_add_u32 s34, s28, s32"); a("s_addc_u32 s35, s29, 0")
    a("v_lshrrev_b32 v13, 5, v0"); a("v_lshlrev_b32 v13, 14, v13")
    a("v_and_b32 v16, 31, v0"); a("v_lshl_add_u32 v13, v16, 7, v13")
    poll_valid(lambda: a("global_load_dwordx2 v[14:15], v13, s[34:35] sc1"), [14, 15], 16, sleep=8)
    a("v_mov_b32 v17, v14")
    bfly("v_max_f32", 17, 18, [0, 1, 2, 3, 4])
    a("v_sub_f32 v14, v14, v17"); a("v_exp_f32 v14, v14"); a("s_nop 0")
    a("v_mul_f32 v15, v15, v14")
    bfly("v_add_f32", 15, 18, [0, 1, 2, 3, 4])
    a("v_rcp_f32 v15, v15"); a("s_nop 0"); a("v_mul_f32 v14, v14, v15")
    a("v_lshlrev_b32 v13, 2, v0")
    a("v_add_u32 v13, %d, v13" % L_F)
    a("ds_write_b32 v13, v14")
    a("v_mov_b32 v25, 3"); a("ds_write_b32 v24, v25")
    a("s_waitcnt lgkmcnt(0)")
    stamp(5)
    stamp_flush()
    a("s_endpgm")

    a("L_cons:")
    sCW = "s32"; sL = "s33"; sHS = "s34"; sST = "s35"; sT = "s36"; sOff = "s37"
    a("s_sub_u32 s32, s30, 2")
    a("s_mov_b32 s33, 0"); a("s_mov_b32 s34, 0"); a("s_mov_b32 s35, 0")
    vFA, vSA_, vLA, vHA, vTMP = 4, 5, 6, 7, 8
    vSTA = 12
    vR, vC4 = 13, 14
    a("s_lshl_b32 s38, s32, 2")
    a("v_lshl_add_u32 v4, v0, 4, s38")
    a("v_add_u32 v5, %d, v4" % L_STAGE); a("v_add_u32 v4, %d, v4" % L_FREE)
    a("v_mov_b32 v6, %d" % L_LANDED); a("v_mov_b32 v7, %d" % L_HST); a("v_mov_b32 v12, %d" % L_STAGE)
    a("v_mov_b32 v8, 0")
    a("ds_write_b32 v4, v8"); a("ds_write_b32 v5, v8")
    a("v_bfe_u32 v13, v0, 2, 2"); a("v_and_b32 v14, 3, v0")
    VX = 64
    a("v_and_b32 v15, 1, v0"); a("v_lshlrev_b32 v15, 11, v15"); a("v_lshl_add_u32 v15, v1, 4, v15")
    a("s_waitcnt lgkmcnt(0)")
    a("s_cmp_lt_u32 s2, 128")
    a("s_cselect_b32 s40, s4, s14"); a("s_cselect_b32 s41, s5, s15")
    a("s_and_b32 s38, s2, 1"); a("s_lshl_b32 s38, s38, 10")
    a("s_add_u32 s40, s40, s38"); a("s_addc_u32 s41, s41, 0")
    for s in range(16):
        a("global_load_dwordx4 v[%d:%d], v15, s[40:41] offset:%d" % (VX + 4 * s, VX + 4 * s + 3, 64 * s))
    a("s_barrier")
    def set_free(val):
        a("v_mov_b32 v8, %s" % val); a("ds_write_b32 v4, v8")
    def set_stage(val):
        a("v_mov_b32 v8, %d" % val); a("ds_write_b32 v5, v8")
    a("v_lshl_add_u32 v16, v1, 3, v13"); a("v_lshlrev_b32 v16, 7, v16")
    a("v_lshrrev_b32 v17, 1, v13"); a("v_and_b32 v18, 1, v1"); a("v_lshl_or_b32 v17, v18, 1, v17")
    a("v_lshlrev_b32 v17, 1, v17")
    a("v_lshrrev_b32 v18, 1, v14"); a("s_lshl_b32 s38, s32, 1"); a("v_add_u32 v18, s38, v18")
    a("v_xor_b32 v17, v17, v18"); a("v_lshl_add_u32 v16, v17, 4, v16")
    a("v_and_b32 v18, 1, v14"); a("v_lshl_add_u32 v16, v18, 3, v16")
    vKa = list(range(20, 28))
    a("v_lshrrev_b32 v17, 1, v1"); a("v_lshl_add_u32 v17, v17, 4, v2"); a("v_lshlrev_b32 v17, 8, v17")
    a("s_lshl_b32 s38, s32, 13"); a("v_add_u32 v17, s38, v17")
    a("v_and_b32 v18, 1, v1"); a("v_xor_b32 v18, v18, v2"); a("v_lshl_add_u32 v20, v18, 4, v17")
    for s in range(1, 8): a("v_xor_b32 v%d, %d, v20" % (vKa[s], 32 * s))
    a("v_lshl_add_u32 v17, v1, 2, v13")
    a("v_and_b32 v18, 7, v17"); a("v_lshlrev_b32 v18, 1, v18")
    a("v_lshrrev_b32 v19, 1, v14")
    a("v_xor_b32 v30, v18, v19")
    a("v_and_b32 v31, 1, v14"); a("v_lshlrev_b32 v31, 3, v31")
    a("v_lshl_add_u32 v30, v30, 4, v31")
    a("s_lshl_b32 s38, s32, 6")
    a("v_xor_b32 v28, s38, v30"); a("v_lshl_add_u32 v28, v17, 8, v28")
    a("v_xor_b32 v29, 32, v28")
    vWOa = list(range(40, 48))
    a("s_lshl_b32 s38, s32, 9")
    a("v_lshl_add_u32 v40, v17, 11, v30"); a("v_add_u32 v40, s38, v40")
    for t in range(1, 8): a("v_xor_b32 v%d, %d, v40" % (vWOa[t], 32 * t))
    a("v_and_b32 v17, 7, v0"); a("v_lshl_add_u32 v17, v1, 3, v17"); a("v_lshlrev_b32 v17, 4, v17")
    a("v_add_u32 v33, %d, v17" % PBASE)
    a("v_bfe_u32 v18, v0, 3, 1"); a("v_lshl_add_u32 v32, v18, 3, v33")
    a("s_lshl_b32 s38, s32, 9"); a("v_add_u32 v32, s38, v32")
    gl = lambda d, off: (a("s_add_u32 s%d, s28, %s" % (d, off)), a("s_addc_u32 s%d, s29, 0" % (d + 1)))
    VF = 128
    VS = 160
    VQA = 200
    for u in range(8):
        wait_word(sL, "v6", "v8", str(u))
        for s in range(2):
            for h in range(2):
                a("ds_read_b64_tr_b16 v[%d:%d], v16 offset:%d" % (VF + 4 * s + 2 * h, VF + 4 * s + 2 * h + 1, u * 8192 + s * 4096 + h * 512))
        if u == 0: a("s_waitcnt vmcnt(0)")
        a("s_waitcnt lgkmcnt(0)")
        if u < 7: set_free(str(u + 1))
        else:
            a("s_add_u32 s36, s32, %d" % T0["kb"]); set_free("s36")
        for s in range(2):
            c = "0" if (u == 0 and s == 0) else "v[%d:%d]" % (VQA, VQA + 3)
            x = VX + 4 * (2 * u + s)
            a("v_mfma_f32_16x16x32_bf16 v[%d:%d], v[%d:%d], v[%d:%d], %s" % (VQA, VQA + 3, VF + 4 * s, VF + 4 * s + 3, x, x + 3, c))
    stamp(1)
    a("s_lshr_b32 s38, s2, 7"); a("s_lshl_b32 s38, s38, 16")
    a("s_and_b32 s39, s2, 1"); a("s_lshl_b32 s39, s39, 14"); a("s_add_u32 s38, s38, s39")
    a("s_bfe_u32 s39, s2, 0x60001"); a("s_lshl_b32 s39, s39, 8"); a("s_add_u32 s38, s38, s39")
    a("s_lshl_b32 s39, s32, 6"); a("s_add_u32 s38, s38, s39")
    gl(40, "s38")
    a("v_and_b32 v17, 1, v0"); a("v_lshlrev_b32 v17, 15, v17"); a("v_lshl_add_u32 v17, v1, 4, v17")
    wait_word(sHS, "v7", "v8", "0")
    a("s_nop 4")
    for r in range(4): a("v_min_u32 v%d, -2, v%d" % (VQA + r, VQA + r))
    a("s_mov_b32 exec_lo, 0x00030003"); a("s_mov_b32 exec_hi, 0x00030003")
    a("global_store_dwordx4 v17, v[%d:%d], s[40:41] sc1" % (VQA, VQA + 3))
    a("s_mov_b64 exec, -1")
    stamp(2)
    a("s_lshr_b32 s38, s32, 1"); a("s_lshl_b32 s38, s38, 16")
    a("s_lshr_b32 s39, s2, 7"); a("s_lshl_b32 s39, s39, 15"); a("s_add_u32 s38, s38, s39")
    a("s_bfe_u32 s39, s2, 0x20005"); a("s_lshl_b32 s39, s39, 12"); a("s_add_u32 s38, s38, s39")
    a("s_and_b32 s39, s32, 1"); a("s_lshl_b32 s39, s39, 11"); a("s_add_u32 s38, s38, s39")
    gl(40, "s38")
    a("v_lshlrev_b32 v17, 4, v0"); a("v_add_u32 v18, 16384, v17")
    def qloads():
        for kh in range(2):
            for i in range(2):
                d = VF + 8 * kh + 4 * i
                a("global_load_dwordx4 v[%d:%d], v%d, s[40:41] offset:%d sc1" % (d, d + 3, 17 + kh, 1024 * i))
    poll_valid(qloads, range(VF, VF + 16), 8, sleep=2)
    stamp(3)
    for r in range(8): a("v_add_f32 v%d, v%d, v%d" % (VF + r, VF + r, VF + 8 + r))
    for r in range(4): a("v_cvt_pk_bf16_f32 v%d, v%d, v%d" % (VF + 16 + r, VF + 2 * r, VF + 2 * r + 1))
    a("s_lshl_b32 s38, s32, 10"); a("s_add_u32 s38, s38, %d" % QBASE)
    a("v_lshl_add_u32 v17, v0, 3, s38")
    a("ds_write_b64 v17, v[%d:%d]" % (VF + 16, VF + 17)); a("ds_write_b64 v17, v[%d:%d] offset:512" % (VF + 18, VF + 19))
    set_stage(1)
    VQ = 64
    for r in range(64): a("v_mov_b32 v%d, 0" % (VQ + r))
    a("v_and_b32 v17, 7, v0"); a("v_lshlrev_b32 v17, 8, v17"); a("v_and_b32 v18, 1, v1"); a("v_lshl_add_u32 v17, v18, 4, v17")
    a("v_add_u32 v17, %d, v17" % QBASE)
    wait_min4(sST, "v12", 8, "0")
    a("s_mov_b32 exec_lo, 0x00ff00ff"); a("s_mov_b32 exec_hi, 0xff00ff00")
    for beta in (1, 0):
        for s in range(8):
            d = VQ + (32 if beta == 0 else 0) + 4 * s
            a("ds_read_b128 v[%d:%d], v17 offset:%d" % (d, d + 3, beta * 2048 + 32 * s))
    a("s_mov_b64 exec, -1")
    stamp(4)
    hi = [False]
    def ktile(Tbase, q, sdst, nxt):
        a("s_add_u32 s36, s32, %d" % Tbase)
        wait_word(sL, "v6", "v8", "s36")
        sl = Tbase % NSLOT
        want_hi = sl >= 8
        if want_hi != hi[0]:
            for s in range(8): a("v_xor_b32 v%d, 0x10000, v%d" % (vKa[s], vKa[s]))
            hi[0] = want_hi
        for s in range(8):
            a("ds_read_b128 v[%d:%d], v%d offset:%d" % (VF + 4 * s, VF + 4 * s + 3, vKa[s], (sl % 8) * 8192))
        if nxt is None: a("s_add_u32 s36, s36, 4")
        else: a("s_mov_b32 s36, %d" % nxt)
        a("v_mov_b32 v8, s36")
        for s in range(8):
            a("s_waitcnt lgkmcnt(%d)" % (7 - s))
            if s == 7: a("ds_write_b32 v4, v8")
            c = "0" if s == 0 else "v[%d:%d]" % (sdst, sdst + 3)
            a("v_mfma_f32_16x16x32_bf16 v[%d:%d], v[%d:%d], v[%d:%d], %s" % (sdst, sdst + 3, VF + 4 * s, VF + 4 * s + 3, q + 4 * s, q + 4 * s + 3, c))
    assert T0["ka"] == T0["kb"] + 4
    ktile(T0["kb"], VQ, VS, None)
    for i in range(8):
        ktile(T0["ka"] + 4 * i, VQ + 32, VS + 4 + 4 * i, None if i < 7 else T0["ka"] + 32)
    stamp(5)
    a("s_mov_b32 s38, 0x%x" % f2u(CSCALE))
    a("s_nop 4")
    vMB, vMA = 34, 35
    a("v_max3_f32 v34, v%d, v%d, v%d" % (VS, VS + 1, VS + 2)); a("v_max_f32 v34, v34, v%d" % (VS + 3))
    a("v_max_f32 v35, v%d, v%d" % (VS + 4, VS + 5))
    for r in range(6, 36, 2): a("v_max3_f32 v35, v35, v%d, v%d" % (VS + r, VS + r + 1))
    bfly("v_max_f32", 34, 36, [3, 4, 5]); bfly("v_max_f32", 35, 36, [3, 4, 5])
    a("v_mul_f32 v34, s38, v34"); a("v_mul_f32 v35, s38, v35")
    a("v_and_b32 v17, 7, v0"); a("v_lshlrev_b32 v17, 2, v17")
    a("v_add_u32 v18, %d, v17" % L_MX)
    a("s_lshl_b32 s39, s32, 6"); a("v_add_u32 v17, s39, v18")
    a("ds_write_b32 v17, v35"); a("ds_write_b32 v17, v34 offset:32")
    set_stage(2)
    wait_min4(sST, "v12", 8, "1")
    for w in range(4):
        a("ds_read_b32 v%d, v18 offset:%d" % (VF + w, 64 * w)); a("ds_read_b32 v%d, v18 offset:%d" % (VF + 4 + w, 64 * w + 32))
    a("s_waitcnt lgkmcnt(0)")
    a("v_max3_f32 v35, v%d, v%d, v%d" % (VF, VF + 1, VF + 2)); a("v_max_f32 v35, v35, v%d" % (VF + 3))
    a("v_max3_f32 v34, v%d, v%d, v%d" % (VF + 4, VF + 5, VF + 6)); a("v_max_f32 v34, v34, v%d" % (VF + 7))
    for r in range(36):
        a("v_fma_f32 v%d, v%d, s38, -v%d" % (VS + r, VS + r, 34 if r < 4 else 35))
    for r in range(36): a("v_exp_f32 v%d, v%d" % (VS + r, VS + r))
    a("s_nop 0")
    for tl in range(9):
        b = VS + 4 * tl
        a("v_cvt_pk_bf16_f32 v%d, v%d, v%d" % (VF + 2 * tl, b, b + 1)); a("v_cvt_pk_bf16_f32 v%d, v%d, v%d" % (VF + 2 * tl + 1, b + 2, b + 3))
        a("ds_write_b64 v32, v[%d:%d] offset:%d" % (VF + 2 * tl, VF + 2 * tl + 1, 2048 * tl))
    a("v_add_f32 v34, v%d, v%d" % (VS, VS + 1)); a("v_add_f32 v36, v%d, v%d" % (VS + 2, VS + 3)); a("v_add_f32 v34, v34, v36")
    n = 32
    while n > 1:
        n //= 2
        for r in range(n): a("v_add_f32 v%d, v%d, v%d" % (VS + 4 + r, VS + 4 + r, VS + 4 + n + r))
    a("v_mov_b32 v35, v%d" % (VS + 4))
    bfly("v_add_f32", 34, 36, [3, 4, 5]); bfly("v_add_f32", 35, 36, [3, 4, 5])
    a("ds_write_b32 v17, v35 offset:%d" % (L_LW - L_MX)); a("ds_write_b32 v17, v34 offset:%d" % (L_LW - L_MX + 32))
    set_stage(3)
    a("v_and_b32 v37, 7, v0"); a("v_lshlrev_b32 v37, 15, v37")
    a("v_bfe_u32 v18, v0, 3, 1"); a("v_lshl_add_u32 v37, v18, 6, v37"); a("v_lshl_add_u32 v37, v1, 4, v37")
    a("s_bfe_u32 s38, s2, 0x20005"); a("s_lshl_b32 s38, s38, 18")
    a("s_lshl_b32 s39, s32, 13"); a("s_add_u32 s38, s38, s39")
    a("s_lshr_b32 s39, s2, 7"); a("s_lshl_b32 s39, s39, 12"); a("s_add_u32 s38, s38, s39")
    a("s_and_b32 s39, s2, 31"); a("s_lshl_b32 s39, s39, 7"); a("s_add_u32 s38, s38, s39")
    a("s_add_u32 s38, s38, 0x%x" % W_IN1); gl(42, "s38")
    a("s_add_u32 s44, s42, 0x100000"); a("s_addc_u32 s45, s43, 0")
    a("s_mov_b32 s46, 0xff00ff00"); a("s_mov_b32 s47, 0xff00ff00")
    VO = 204
    VW = 64
    def wo_reads(name, half):
        T = T0[name]
        wait_word(sL, "v6", "v8", str(T + 3))
        base = (T % NSLOT) * 8192
        if base >= 65536:
            for t in range(8): a("v_add_u32 v%d, 0x10000, v%d" % (vWOa[t], vWOa[t]))
        for t in range(16):
            d = VW + 4 * t + 2 * half
            a("ds_read_b64_tr_b16 v[%d:%d], v%d offset:%d" % (d, d + 1, vWOa[t & 7], base % 65536 + (t >> 3) * 256))
        if base >= 65536:
            for t in range(8): a("v_subrev_u32 v%d, 0x10000, v%d" % (vWOa[t], vWOa[t]))
    wait_min4(sST, "v12", 8, "2")
    stamp(6)
    if wo_early:
        wo_reads("woE", 0)
        a("s_waitcnt lgkmcnt(0)")
        set_free(str(T0["vb"]))
    def vloop(Tb, cnt, nxt):
        for r in range(8): a("v_mov_b32 v%d, 0" % (VO + r))
        a("s_mov_b32 s36, %d" % Tb)
        lp = lab("v")
        a(lp + ":")
        a("s_and_b32 s37, s36, %d" % (NSLOT - 1)); a("s_lshl_b32 s37, s37, 13")
        a("v_add_u32 v38, s37, v28"); a("v_add_u32 v39, s37, v29")
        wait_word(sL, "v6", "v8", "s36")
        a("ds_read_b128 v[%d:%d], v33" % (VF + 8, VF + 11))
        a("ds_read_b64_tr_b16 v[%d:%d], v38" % (VF, VF + 1)); a("ds_read_b64_tr_b16 v[%d:%d], v38 offset:4096" % (VF + 2, VF + 3))
        a("ds_read_b64_tr_b16 v[%d:%d], v39" % (VF + 4, VF + 5)); a("ds_read_b64_tr_b16 v[%d:%d], v39 offset:4096" % (VF + 6, VF + 7))
        a("v_add_u32 v33, 512, v33")
        a("s_add_u32 s36, s36, 1")
        a("v_mov_b32 v8, s36")
        a("s_waitcnt lgkmcnt(2)")
        a("v_mfma_f32_16x16x32_bf16 v[%d:%d], v[%d:%d], v[%d:%d], v[%d:%d]" % (VO, VO + 3, VF, VF + 3, VF + 8, VF + 11, VO, VO + 3))
        a("s_waitcnt lgkmcnt(0)")
        a("v_mfma_f32_16x16x32_bf16 v[%d:%d], v[%d:%d], v[%d:%d], v[%d:%d]" % (VO + 4, VO + 7, VF + 4, VF + 7, VF + 8, VF + 11, VO + 4, VO + 7))
        a("ds_write_b32 v4, v8")
        a("s_cmp_lt_u32 s36, %d" % (Tb + cnt))
        a("s_cbranch_scc1 " + lp)
    def ostore(sp):
        a("s_nop 4")
        for r in range(4): a("v_cndmask_b32 v%d, v%d, v%d, s[46:47]" % (VO + 8 + r, VO + r, VO + 4 + r))
        for r in range(4): a("v_min_u32 v%d, -2, v%d" % (VO + 8 + r, VO + 8 + r))
        a("global_store_dwordx4 v37, v[%d:%d], s[%d:%d] sc1" % (VO + 8, VO + 11, sp, sp + 1))
    vloop(T0["vb"], 4, None)
    wait_word(sHS, "v7", "v8", "1")
    ostore(44)
    stamp(7)
    a("s_lshl_b32 s38, s2, 13"); a("s_lshl_b32 s39, s32, 11"); a("s_add_u32 s38, s38, s39")
    a("s_add_u32 s38, s38, 0x%x" % W_IN1); gl(48, "s38")
    a("v_lshlrev_b32 v48, 4, v0")
    a("v_and_b32 v49, 1, v0"); a("v_lshlrev_b32 v49, 19, v49")
    a("v_bfe_u32 v18, v0, 2, 2"); a("v_lshl_add_u32 v49, v18, 14, v49")
    a("v_bfe_u32 v18, v0, 1, 1"); a("v_lshl_add_u32 v49, v18, 6, v49"); a("v_lshl_add_u32 v49, v1, 4, v49")
    a("s_lshr_b32 s38, s2, 7"); a("s_lshl_b32 s38, s38, 20")
    a("s_lshl_b32 s39, s32, 17"); a("s_add_u32 s38, s38, s39")
    a("s_and_b32 s39, s2, 127"); a("s_lshl_b32 s39, s39, 7"); a("s_add_u32 s38, s38, s39")
    a("s_add_u32 s38, s38, 0x%x" % W_IN2); gl(50, "s38")
    a("s_add_u32 s52, s50, 0x10000"); a("s_addc_u32 s53, s51, 0")
    a("s_and_b32 s38, s2, 127"); a("s_lshl_b32 s38, s38, 14"); a("s_lshl_b32 s39, s32, 12"); a("s_add_u32 s38, s38, s39")
    a("s_add_u32 s38, s38, 0x%x" % W_IN2); gl(54, "s38")
    a("s_bfe_u32 s38, s2, 0x10005"); a("s_lshl_b32 s38, s38, 12")
    a("s_bfe_u32 s39, s2, 0x10006"); a("s_lshl_b32 s39, s39, 11"); a("s_add_u32 s38, s38, s39")
    a("s_and_b32 s39, s2, 31"); a("s_lshl_b32 s39, s39, 6"); a("s_add_u32 s38, s38, s39")
    a("s_add_u32 s56, s24, s38"); a("s_addc_u32 s57, s25, 0")
    for t in range(8):
        m = (3 << (2 * t)) * 0x00010001
        a("s_mov_b32 s%d, 0x%x" % (64 + 2 * t, m)); a("s_mov_b32 s%d, 0x%x" % (65 + 2 * t, m))
    a("v_and_b32 v50, 7, v0"); a("v_lshlrev_b32 v50, 4, v50"); a("s_lshl_b32 s38, s32, 7"); a("v_add_u32 v50, s38, v50")
    a("v_add_u32 v50, %d, v50" % L_OX)
    a("v_and_b32 v51, 1, v0"); a("v_lshlrev_b32 v51, 8, v51"); a("v_lshl_add_u32 v51, v1, 4, v51")
    a("v_add_u32 v51, %d, v51" % L_OX)
    a("v_lshrrev_b32 v52, 3, v0"); a("s_lshl_b32 s38, s32, 4"); a("v_add_u32 v52, s38, v52"); a("v_lshlrev_b32 v52, 2, v52")
    a("v_add_u32 v52, %d, v52" % L_F)
    vloop(T0["va"], 32, None)
    ostore(42)
    stamp(8)
    VH = 136
    def h1loads():
        for i in range(2):
            a("global_load_dwordx4 v[%d:%d], v48, s[48:49] offset:%d sc1" % (VH + 4 * i, VH + 4 * i + 3, 1024 * i))
    if not wo_early: wo_reads("woE", 0)
    wo_reads("woL", 1)
    wait_word(sHS, "v7", "v8", "2")
    a("ds_read_b32 v53, v52"); a("ds_read_b32 v54, v52 offset:32")
    stamp(9)
    poll_valid(h1loads, range(VH, VH + 8), 8, sleep=0)
    stamp(10)
    a("s_waitcnt lgkmcnt(0)")
    for r in range(4): a("v_mul_f32 v%d, v%d, v53" % (VH + r, VH + r))
    for r in range(4): a("v_fmac_f32 v%d, v%d, v54" % (VH + r, VH + 4 + r))
    bfly4("v_add_f32", VH, VH + 4, [3, 4, 5])
    a("s_mov_b64 exec, 0xff")
    a("ds_write_b128 v50, v[%d:%d]" % (VH, VH + 3))
    a("s_mov_b64 exec, -1")
    a("s_waitcnt lgkmcnt(0)")
    a("s_barrier")
    for k, off in enumerate((0, 64, 128, 192)):
        a("ds_read_b128 v[%d:%d], v51 offset:%d" % (VH + 4 * k, VH + 4 * k + 3, off))
    a("s_waitcnt lgkmcnt(0)")
    for r in range(8): a("v_add_f32 v%d, v%d, v%d" % (VH + r, VH + r, VH + 8 + r))
    for r in range(4): a("v_cvt_pk_bf16_f32 v%d, v%d, v%d" % (VH + 16 + r, VH + 2 * r, VH + 2 * r + 1))
    VB = 160
    for t in range(8):
        for r in range(4): a("v_cndmask_b32 v%d, 0, v%d, s[%d:%d]" % (VB + 4 * t + r, VH + 16 + r, 64 + 2 * t, 65 + 2 * t))
    for t in range(8):
        for ch in range(2):
            w = VW + 4 * (8 * ch + t); d = VO + 4 * ch
            c = "0" if t == 0 else "v[%d:%d]" % (d, d + 3)
            a("v_mfma_f32_16x16x32_bf16 v[%d:%d], v[%d:%d], v[%d:%d], %s" % (d, d + 3, w, w + 3, VB + 4 * t, VB + 4 * t + 3, c))
    a("s_nop 6")
    for r in range(4): a("v_min_u32 v%d, -2, v%d" % (VO + r, VO + r))
    a("global_store_dwordx4 v49, v[%d:%d], s[50:51] sc1" % (VO, VO + 3))
    for r in range(4, 8): a("v_min_u32 v%d, -2, v%d" % (VO + r, VO + r))
    a("global_store_dwordx4 v49, v[%d:%d], s[52:53] sc1" % (VO + 4, VO + 7))
    stamp(11)
    a("s_cmp_ge_u32 s2, 128")
    a("s_cbranch_scc1 L_fin")
    def h2loads():
        for i in range(4):
            a("global_load_dwordx4 v[%d:%d], v48, s[54:55] offset:%d sc1" % (VH + 4 * i, VH + 4 * i + 3, 1024 * i))
    poll_valid(h2loads, range(VH, VH + 16), 8, sleep=0)
    stamp(12)
    for r in range(8): a("v_add_f32 v%d, v%d, v%d" % (VH + r, VH + r, VH + 8 + r))
    for r in range(4): a("v_add_f32 v%d, v%d, v%d" % (VH + r, VH + r, VH + 4 + r))
    bfly4("v_add_f32", VH, VH + 4, [3, 4, 5])
    a("s_mov_b64 exec, 0xff")
    a("ds_write_b128 v50, v[%d:%d] offset:%d" % (VH, VH + 3, L_RX - L_OX))
    a("s_waitcnt lgkmcnt(0)")
    a("s_barrier")
    a("s_cmp_lg_u32 s32, 0")
    a("s_cbranch_scc1 L_fin")
    for k in range(4):
        a("ds_read_b128 v[%d:%d], v50 offset:%d" % (VH + 4 * k, VH + 4 * k + 3, L_RX - L_OX + 128 * k))
    a("v_lshlrev_b32 v17, 3, v0")
    a("s_waitcnt lgkmcnt(0)")
    for r in range(8): a("v_add_f32 v%d, v%d, v%d" % (VH + r, VH + r, VH + 8 + r))
    for r in range(4): a("v_add_f32 v%d, v%d, v%d" % (VH + r, VH + r, VH + 4 + r))
    a("v_cvt_pk_bf16_f32 v%d, v%d, v%d" % (VH + 4, VH, VH + 1)); a("v_cvt_pk_bf16_f32 v%d, v%d, v%d" % (VH + 5, VH + 2, VH + 3))
    a("global_store_dwordx2 v17, v[%d:%d], s[56:57]" % (VH + 4, VH + 5))
    a("L_fin:")
    stamp(13)
    stamp_flush()
    a("L_end:")
    a("s_endpgm")
    nv = 256 if stamps else 216
    return (header(["grid=(256,1,1) block=(384,1,1) lds=%d" % LDS_BYTES]) + kernel_open(KNAME) + a.text()
            + RODATA + descriptor(KNAME, nv, 100, nv))

if __name__ == "__main__":
    open(sys.argv[1], "w").write(gen(**eval("dict(%s)" % (sys.argv[2] if len(sys.argv) > 2 else ""))))
```

```python
import sys, math, struct
from asmlib import *

NSLOT = 16
PBASE = NSLOT * 8192
QBASE = PBASE
SY = PBASE + 36 * 512
L_LANDED = SY
L_FREE = SY + 256
L_STAGE = SY + 1280
L_HST = SY + 2304
L_MX = SY + 2560
L_LW = SY + 2816
L_F = SY + 3072
L_OX = SY + 3328
L_RX = SY + 3840
L_LVL = SY + 4352
LDS_BYTES = SY + 4608
W_QP = 0x000000
W_ML = 0x020000
W_EP = 0x040000
W_PB = 0x050000
W_IN1 = 0x100000
W_IN2 = 0x300000
STAMP_OFF = 0x10000000
CSCALE = math.log2(math.e) / math.sqrt(128.0)
def f2u(x): return struct.unpack("<I", struct.pack("<f", x))[0]

def gen(win=20, win0=None, winT=None, tailT=0, stamps=False, wo_early=1, budget=1 << 20, psleep=0, qsleep=2, dbg='',
        ml_at=16, mlsleep=8, qg_at=14, h1sleep=0, h2sleep=0, h1pre=1, blate=0, epsc=1, ackw=1, ilv=1, qx=0, vst=0, burst=3, levels=None, cps=None, lvl0=1, thr=None, nsamp=16, redisp=4, ldpol='nt', wsoff=0, epoff=None):
    dbg = dbg.split()
    win0 = win0 or win
    winT = winT or win
    a = Asm()
    uid = [0]
    def lab(p):
        uid[0] += 1
        return "L_%s_%d" % (p, uid[0])
    segs = [("wq", 8)]
    if wo_early == 2: segs += [("woE", 4)]
    segs += [("kbig", 32), ("ksm", 4)]
    if wo_early == 1: segs += [("woE", 4)]
    segs += [("vbig", 32), ("vsm", 4)]
    segs += [("woL", 4)] if wo_early else [("woE", 4), ("woL", 4)]
    T0 = {}; t = 0
    for n, c in segs:
        T0[n] = t; t += c
    NT = t
    VEND = T0["vsm"] + 4
    assert T0["wq"] == 0 and (T0["woE"] % NSLOT) <= NSLOT - 4 and (T0["woL"] % NSLOT) <= NSLOT - 4
    assert T0["kbig"] % 4 == 0
    def role():
        a("s_lshr_b32 s93, s2, 5"); a("s_and_b32 s92, s2, 7"); a("s_cmp_eq_u32 s92, s93"); a("s_cselect_b32 s92, 1, 0")

    sB = "s31"
    VST = 250
    def stamp(k):
        if stamps:
            a("s_memrealtime s[96:97]"); a("s_waitcnt lgkmcnt(0)"); a("v_writelane_b32 v%d, s96, %d" % (VST, k))
    def stamp_flush():
        if stamps:
            a("s_mov_b64 exec, -1")
            a("s_getreg_b32 s96, hwreg(HW_REG_XCC_ID)")
            a("v_writelane_b32 v%d, s96, 63" % VST)
            a("s_mul_i32 s96, s2, 6"); a("s_add_u32 s96, s96, s30"); a("s_lshl_b32 s96, s96, 8")
            a("v_lshl_add_u32 v251, v0, 2, s96")
            a("s_load_dwordx2 s[98:99], s[0:1], 96"); a("s_waitcnt lgkmcnt(0)")
            a("s_add_u32 s98, s98, 0x%x" % STAMP_OFF); a("s_addc_u32 s99, s99, 0")
            a("global_store_dword v251, v%d, s[98:99]" % VST)
            a("s_waitcnt vmcnt(0)")
    def budget_loop(label):
        a("s_sub_u32 %s, %s, 1" % (sB, sB))
        a("s_cbranch_scc0 %s" % label)
        a("s_mov_b32 %s, 0" % sB)
    def wait_word(scache, vaddr, vtmp, thr, off=0, sleep=0):
        lp = lab("pw"); ok = lab("ok")
        a(lp + ":")
        a("s_cmp_gt_u32 %s, %s" % (scache, thr))
        a("s_cbranch_scc1 " + ok)
        if sleep: a("s_sleep %d" % sleep)
        a("ds_read_b32 %s, %s offset:%d" % (vtmp, vaddr, off))
        a("s_waitcnt lgkmcnt(0)")
        a("v_readfirstlane_b32 %s, %s" % (scache, vtmp))
        budget_loop(lp)
        a(ok + ":")
    def wait_min4(scache, vaddr, vt, thr, off=0, sleep=0, cmp="s_cmp_gt_u32"):
        lp = lab("pm"); ok = lab("ok")
        a(lp + ":")
        a("%s %s, %s" % (cmp, scache, thr))
        a("s_cbranch_scc1 " + ok)
        if sleep: a("s_sleep %d" % sleep)
        a("ds_read_b128 v[%d:%d], %s offset:%d" % (vt, vt + 3, vaddr, off))
        a("s_waitcnt lgkmcnt(0)")
        a("v_min3_u32 v%d, v%d, v%d, v%d" % (vt, vt, vt + 1, vt + 2))
        a("v_min_u32 v%d, v%d, v%d" % (vt, vt, vt + 3))
        a("s_nop 0")
        a("v_readfirstlane_b32 %s, v%d" % (scache, vt))
        budget_loop(lp)
        a(ok + ":")
    VT = 56
    def poll_valid(loads, check, sleep=1, first=True, mask0=None):
        if "nopoll" in dbg: return
        if first:
            if mask0: a("s_mov_b64 exec, %s" % mask0)
            loads()
        lp = lab("pv"); ok = lab("ok")
        a(lp + ":")
        a("s_mov_b64 exec, -1")
        a("s_waitcnt vmcnt(0)")
        check()
        a("s_and_b64 exec, vcc, vcc")
        a("s_cbranch_scc0 " + ok)
        if sleep: a("s_sleep %d" % sleep)
        loads()
        budget_loop(lp)
        a(ok + ":")
        a("s_mov_b64 exec, -1")
        a("s_waitcnt vmcnt(0)")
    def tagcheck(base, n, dst, vtmp):
        def f():
            for i in range(n): a("v_xor_b32 v%d, v%d, v%d" % (dst + i, base + i, VT + (i & 3)))
            h = n // 2
            for c in range(2):
                r = list(range(dst + c * h, dst + (c + 1) * h))
                a("v_or3_b32 v%d, v%d, v%d, v%d" % (vtmp + c, r[0], r[1], r[2])); r = r[3:]
                while len(r) >= 2:
                    a("v_or3_b32 v%d, v%d, v%d, v%d" % (vtmp + c, vtmp + c, r[0], r[1])); r = r[2:]
                if r: a("v_or_b32 v%d, v%d, v%d" % (vtmp + c, vtmp + c, r[0]))
            a("v_bitop3_b32 v%d, v%d, v%d, s60 bitop3:0xa8" % (vtmp, vtmp, vtmp + 1))
            a("v_cmp_ne_u32 vcc, 0, v%d" % vtmp)
        return f
    def tag4(d, s=None):
        s = d if s is None else s
        for r in range(4): a("v_bfi_b32 v%d, s60, v%d, v%d" % (d + r, VT + r, s + r))
    def epoch_load():
        a("s_add_u32 s62, s28, 0x%x" % (W_EP + wsoff if epoff is None else epoff)); a("s_addc_u32 s63, s29, 0")
        if wsoff: a("s_add_u32 s28, s28, 0x%x" % wsoff); a("s_addc_u32 s29, s29, 0")
        if epsc: a("s_load_dwordx2 s[90:91], s[62:63], 0")
        else:
            a("v_mov_b32 v60, 0")
            a("global_load_dwordx2 v[60:61], v60, s[62:63] sc1")
    def epoch_tags():
        if epsc:
            a("s_waitcnt lgkmcnt(0)")
            a("v_mov_b32 v60, s90"); a("v_mov_b32 v61, s91")
        a("s_mov_b32 s60, 0x9e3779b1"); a("v_mul_lo_u32 v62, v60, s60")
        a("s_mov_b32 s60, 0x85ebca6b"); a("v_xor_b32 v63, v61, v62"); a("v_mul_lo_u32 v63, v63, s60")
        a("s_movk_i32 s60, 0x7ff")
        a("v_and_b32 v56, s60, v62")
        a("v_bfe_u32 v57, v62, 11, 10"); a("v_lshlrev_b32 v57, 1, v57")
        a("v_and_b32 v58, 1, v62"); a("v_xor_b32 v58, 1, v58"); a("v_or_b32 v57, v57, v58")
        a("v_lshrrev_b32 v58, 21, v62"); a("v_lshrrev_b32 v59, 21, v63")
    def bfly(op, v, vt, bits):
        for b in bits:
            if b <= 3:
                a("s_nop 1")
                a("%s_dpp v%d, v%d, v%d row_ror:%d row_mask:0xf bank_mask:0xf" % (op, v, v, v, 1 << b))
            else:
                a("v_mov_b32 v%d, v%d" % (vt, v))
                a("s_nop 1")
                a("v_permlane%d_swap_b32 v%d, v%d" % (1 << b, v, vt))
                a("%s v%d, v%d, v%d" % (op, v, v, vt))
    def bfly4(op, v, vt, bits):
        for b in bits:
            if b <= 3:
                for r in range(4):
                    a("%s_dpp v%d, v%d, v%d row_ror:%d row_mask:0xf bank_mask:0xf" % (op, v + r, v + r, v + r, 1 << b))
            else:
                for r in range(4): a("v_mov_b32 v%d, v%d" % (vt + r, v + r))
                for r in range(4): a("v_permlane%d_swap_b32 v%d, v%d" % (1 << b, v + r, vt + r))
                for r in range(4): a("%s v%d, v%d, v%d" % (op, v + r, v + r, vt + r))

    a("s_cmp_ge_u32 s2, 256")
    a("s_cbranch_scc1 L_end")
    a("s_load_dwordx16 s[4:19], s[0:1], 0")
    a("s_load_dwordx8 s[20:27], s[0:1], 64")
    a("s_load_dwordx2 s[28:29], s[0:1], 96")
    a("v_lshrrev_b32 v1, 6, v0")
    a("v_and_b32 v0, 63, v0")
    a("v_readfirstlane_b32 s30, v1")
    a("s_mov_b32 %s, %d" % (sB, budget))
    if stamps:
        a("v_mov_b32 v%d, 0" % VST); stamp(0)
    a("s_xor_b32 s3, s2, %d" % qx)
    a("v_lshrrev_b32 v1, 4, v0")
    a("v_and_b32 v2, 15, v0")
    a("s_cmp_lg_u32 s30, 0")
    a("s_cbranch_scc1 L_notloader")

    a("s_setprio 3")
    vA = list(range(4, 12))
    vK = [12, 13, 14, 15]; vV = [16, 17]; vWO = 18
    a("v_lshrrev_b32 v20, 3, v0"); a("v_and_b32 v21, 7, v0"); a("v_and_b32 v22, 1, v1")
    a("v_lshlrev_b32 v20, 13, v20"); a("v_lshlrev_b32 v22, 1, v22")
    a("v_xor_b32 v21, v21, v22")
    a("v_lshl_add_u32 v4, v21, 4, v20")
    a("v_xor_b32 v5, 64, v4")
    a("s_and_b32 s56, s3, 1"); a("s_lshl_b32 s56, s56, 22")
    a("s_bfe_u32 s57, s3, 0x60001"); a("s_lshl_b32 s57, s57, 7"); a("s_add_u32 s56, s56, s57")
    a("s_mov_b32 s34, 0x800000"); a("s_mov_b32 s35, 0x20000")
    a("s_mov_b32 s40, 0"); a("s_mov_b32 s41, 0")
    a("v_lshlrev_b32 v24, 2, v0"); a("v_add_u32 v24, %d, v24" % L_LANDED)
    a("v_mov_b32 v25, 0")
    a("s_cmp_lt_u32 s2, 128")
    a("s_waitcnt lgkmcnt(0)")
    a("s_cselect_b32 s32, s10, s20"); a("s_cselect_b32 s33, s11, s21")
    a("s_and_b32 s33, s33, 0xffff")
    stamp(21)
    def signal(w, j):
        js = (w - 1) % 8 or 8
        if j == js:
            d = (w - 1 - js) // 8
            if d: a("s_sub_i32 s42, s40, %d" % d); a("s_max_i32 s42, s42, 0"); a("v_mov_b32 v25, s42")
            else: a("v_mov_b32 v25, s40")
            a("ds_write_b32 v24, v25")
    def wq_tile(w, waits=True):
        for i in range(8):
            if i % 4 == 0: a("s_add_u32 m0, s41, %d" % (i * 1024)); a("s_nop 0")
            a("buffer_load_dwordx4 v%d, s[32:35], s56 offen offset:%d %s lds" % (vA[i & 1], (i % 4) * 1024, ldpol))
            a("s_add_u32 s56, s56, %d" % (64512 + (4096 if i % 4 == 3 else 0)))
            if waits:
                a("s_waitcnt vmcnt(%d)" % (w - 1)); signal(w, i + 1)
        a("s_add_u32 s40, s40, 1"); a("s_add_u32 s41, s41, 8192")
    assert win0 >= 8 * burst
    a("L_wq0:")
    wq_tile(win0, waits=False)
    a("s_cmp_lt_u32 s40, %d" % burst); a("s_cbranch_scc1 L_wq0")
    a("ds_write_b32 v24, v25")
    a("s_waitcnt lgkmcnt(0)")
    stamp(22)
    a("s_barrier")
    stamp(1)
    for i in range(4):
        a("v_add_u32 v20, %d, v1" % (4 * i)); a("v_xor_b32 v20, v20, v2"); a("v_lshlrev_b32 v20, 4, v20")
        a("v_lshl_add_u32 v%d, v1, 8, v20" % vK[i])
    for i in range(2):
        a("v_add_u32 v20, %d, v1" % (4 * i)); a("v_lshlrev_b32 v20, 1, v20"); a("v_xor_b32 v20, v20, v2")
        a("v_lshlrev_b32 v20, 4, v20"); a("v_lshl_add_u32 v%d, v1, 8, v20" % vV[i])
    a("v_lshlrev_b32 v18, 4, v0")
    a("v_mov_b32 v26, %d" % L_FREE); a("v_mov_b32 v19, %d" % L_LVL)
    a("s_cmp_lt_u32 s2, 128")
    a("s_cselect_b32 s52, s12, s22"); a("s_cselect_b32 s53, s13, s23")
    role()
    a("s_lshl_b32 s57, s2, 18")
    a("s_lshl_b32 s58, s93, 23"); a("s_bfe_u32 s59, s2, 0x20003"); a("s_lshl_b32 s55, s59, 18"); a("s_add_u32 s54, s58, s55")
    a("s_add_u32 s54, s54, %d" % ((32768 - 4096) * 256))
    a("s_lshl_b32 s55, s55, 3"); a("s_add_u32 s55, s55, s58"); a("s_lshl_b32 s58, s93, 18"); a("s_add_u32 s55, s55, s58")
    a("s_and_b32 s58, s2, 7"); a("s_lshl_b32 s58, s58, 15"); a("s_add_u32 s55, s55, s58")
    a("s_cmp_eq_u32 s92, 1")
    a("s_cselect_b32 s48, s16, s6"); a("s_cselect_b32 s49, s17, s7")
    a("s_cselect_b32 s50, s18, s8"); a("s_cselect_b32 s51, s19, s9")
    a("s_cselect_b32 s54, s54, s57")
    a("s_and_b32 s59, s2, 127"); a("s_lshl_b32 s59, s59, 16")
    a("s_mov_b32 s61, 0")
    a("L_wq1:")
    wq_tile(win0)
    a("s_cmp_lt_u32 s40, 8"); a("s_cbranch_scc1 L_wq1")
    def tile_loop(name, w, redispatch=False):
        a(name + ":")
        if "nofree" not in dbg:
            a("s_sub_i32 s42, s40, %d" % NSLOT)
            wait_min4("s61", "v26", 28, "s42", cmp="s_cmp_gt_i32")
        for h in range(2):
            if h == 0: a("s_mov_b32 m0, s41"); a("s_add_u32 s45, s56, 4096")
            else: a("s_add_u32 m0, s41, 4096"); a("s_nop 0")
            for i in range(4):
                a("buffer_load_dwordx4 v%d, s[32:35], %s offen offset:%d %s lds" % (vA[4 * h + i], "s45" if h else "s56", i * 1024, ldpol))
                a("s_waitcnt vmcnt(%d)" % (w - 1)); signal(w, 4 * h + i + 1)
        for i in range(8): a("v_xor_b32 v%d, s44, v%d" % (vA[i], vA[i]))
        a("s_add_u32 s56, s56, 8192")
        a("s_add_u32 s41, s41, 8192"); a("s_and_b32 s41, s41, %d" % (NSLOT * 8192 - 1))
        a("s_add_u32 s40, s40, 1")
        a("s_cmp_lt_u32 s40, s43")
        if redispatch:
            a("s_cbranch_scc0 L_ret")
            a("s_and_b32 s42, s40, %d" % (redisp - 1))
            a("s_cbranch_scc1 " + name)
            a("s_branch L_tile")
        else:
            a("s_cbranch_scc1 " + name)
            a("s_setpc_b64 s[46:47]")
    def seg_setup(name):
        lo, sreg, base, size = {"kbig": (48, 54, 0, 64 << 20), "ksm": (6, 55, 0, 64 << 20), "vbig": (50, 54, 0, 64 << 20), "vsm": (8, 55, 0, 64 << 20),
                                "woE": (52, 59, 0, 8 << 20), "woL": (52, 59, 32768, 8 << 20)}[name]
        a("s_mov_b32 s32, s%d" % lo); a("s_and_b32 s33, s%d, 0xffff" % (lo + 1)); a("s_mov_b32 s34, 0x%x" % size)
        a("s_add_u32 s56, s%d, %d" % (sreg, base))
        if name in ("kbig", "vbig", "woE", "woL"):
            for i in range(8):
                if name[0] == "k": a("v_mov_b32 v%d, v%d" % (vA[i], vK[i & 3]))
                elif name[0] == "v": a("v_mov_b32 v%d, v%d" % (vA[i], vV[i & 1]))
                else: a("v_xor_b32 v%d, %d, v18" % (vA[i], 32 * (i >> 1)))
            a("s_mov_b32 s44, %d" % (128 if name[0] == "w" else 0))
    stampat = {"kbig": 3, "ksm": 4, "vbig": 5, "vsm": 6}
    for name, cnt in segs[1:]:
        if name in stampat: stamp(stampat[name])
        seg_setup(name)
        end = T0[name] + cnt
        cut = NT - tailT
        if vst and name == "vbig":
            for q in range(1, 4):
                if T0[name] + 8 * q <= cut:
                    a("s_mov_b32 s43, %d" % (T0[name] + 8 * q)); a("s_call_b64 s[46:47], L_tile"); stamp(8 + q)
        if tailT and T0[name] < cut < end:
            a("s_mov_b32 s43, %d" % cut); a("s_call_b64 s[46:47], L_tile")
            a("s_mov_b32 s43, %d" % end); a("s_call_b64 s[46:47], L_tileT")
        else:
            a("s_mov_b32 s43, %d" % end)
            a("s_call_b64 s[46:47], %s" % ("L_tileT" if (tailT and T0[name] >= cut) else "L_tile"))
        if name == "vsm": stamp(7)
    wl = winT if tailT else (max(levels) if levels else win)
    done = (8 * NT - (wl - 1)) // 8
    while done < NT:
        done += 1
        a("s_waitcnt vmcnt(%d)" % (8 * (NT - done)))
        a("v_mov_b32 v25, %d" % done); a("ds_write_b32 v24, v25")
    a("s_waitcnt lgkmcnt(0)")
    stamp(8)
    stamp_flush()
    a("s_endpgm")
    if levels:
        a("L_tile:")
        a("ds_read_b32 v27, v19")
        a("s_waitcnt lgkmcnt(0)")
        a("v_readfirstlane_b32 s42, v27")
        for k in range(1, len(levels)):
            a("s_cmp_eq_u32 s42, %d" % k); a("s_cbranch_scc1 L_tile_%d" % k)
        for k, w in enumerate(levels): tile_loop("L_tile_%d" % k, w, True)
        a("L_ret:")
        a("s_setpc_b64 s[46:47]")
    else:
        tile_loop("L_tile", win)
    if tailT: tile_loop("L_tileT", winT)

    a("L_notloader:")
    a("s_cmp_gt_u32 s30, 1")
    a("s_cbranch_scc1 L_cons")
    a("v_lshlrev_b32 v24, 2, v0"); a("v_add_u32 v24, %d, v24" % L_HST)
    a("v_mov_b32 v25, 0"); a("ds_write_b32 v24, v25")
    a("v_mov_b32 v25, %d" % lvl0); a("ds_write_b32 v24, v25 offset:%d" % (L_LVL - L_HST))
    a("s_waitcnt lgkmcnt(0)")
    epoch_load()
    a("s_barrier")
    a("s_mov_b32 s41, 0"); a("v_mov_b32 v26, %d" % L_STAGE)
    a("s_mov_b32 s42, 0"); a("v_mov_b32 v27, %d" % L_LANDED)
    a("s_lshl_b32 s32, s2, 8")
    a("s_add_u32 s33, s32, 0x%x" % W_ML); a("s_add_u32 s38, s28, s33"); a("s_addc_u32 s39, s29, 0")
    a("s_bfe_u32 s32, s2, 0x20005"); a("s_lshl_b32 s32, s32, 13")
    a("s_bfe_u32 s33, s2, 0x30002")
    a("s_lshr_b32 s34, s2, 7"); a("s_lshl_b32 s34, s34, 3"); a("s_add_u32 s33, s33, s34"); a("s_lshl_b32 s33, s33, 4")
    a("s_add_u32 s32, s32, s33"); a("s_add_u32 s32, s32, 0x%x" % W_ML)
    a("s_add_u32 s34, s28, s32"); a("s_addc_u32 s35, s29, 0")
    a("v_lshrrev_b32 v12, 5, v0"); a("v_lshlrev_b32 v12, 15, v12")
    a("v_and_b32 v16, 31, v0"); a("v_lshl_add_u32 v12, v16, 8, v12")
    a("v_and_b32 v13, 7, v0"); a("v_lshlrev_b32 v13, 2, v13"); a("v_add_u32 v13, %d, v13" % L_MX)
    a("v_lshlrev_b32 v11, 4, v2")
    role()
    a("s_bfe_u32 s32, s2, 0x20005")
    a("s_lshl_b32 s44, 0x01010101, s32"); a("s_lshl_b32 s45, s44, 4")
    a("s_cmp_lt_u32 s2, 128")
    a("s_cselect_b32 s44, -1, s44"); a("s_cselect_b32 s45, -1, s45")
    a("s_cmp_eq_u32 s92, 1")
    a("s_cselect_b32 s48, 0xff, 0"); a("s_mov_b32 s49, 0")
    a("s_cselect_b32 s50, 0xff00, 0"); a("s_mov_b32 s51, 0")
    a("s_or_b32 s46, s50, 0xff"); a("s_mov_b32 s47, 0")
    a("s_waitcnt vmcnt(0)")
    epoch_tags()
    a("v_mov_b32 v14, 0xff800000"); a("v_mov_b32 v15, 0"); a("v_mov_b32 v16, v62"); a("v_mov_b32 v17, v63")
    cpl = list(cps or [])
    if cpl:
        offs = [(9 + 33 * k + (16 if k >= 8 else 0)) & 255 for k in range(nsamp)]
        for k, d in enumerate(offs):
            a("s_add_u32 s%d, s2, %d" % (64 + k, d)); a("s_and_b32 s%d, s%d, 255" % (64 + k, 64 + k)); a("s_lshl_b32 s%d, s%d, 7" % (64 + k, 64 + k))
        a("s_add_u32 s52, s28, 0x%x" % W_PB); a("s_addc_u32 s53, s29, 0")
        a("s_lshl_b32 s32, s2, 7"); a("v_mov_b32 v20, s32")
        a("v_readfirstlane_b32 s54, v62")
        a("v_lshl_add_u32 v21, v0, 4, v20")
        for r in range(4): a("v_mov_b32 v%d, v62" % (64 + r))
    def checkpoints(upto):
        while cpl and cpl[0] <= upto:
            c = cpl.pop(0)
            wait_word("s42", "v27", "v28", str(c - 1), sleep=4)
            if "fullpb" in dbg:
                a("s_mov_b64 exec, 0xff")
                a("global_store_dwordx4 v21, v[64:67], s[52:53] sc1")
            elif "nopbst" not in dbg:
                a("s_mov_b64 exec, 1")
                a("global_store_dword v20, v62, s[52:53] sc1")
            a("s_mov_b64 exec, -1")
            if "nopbld" not in dbg:
                for k in range(0, nsamp): a("s_load_dword s%d, s[52:53], s%d" % (4 + k, 64 + k))
            a("s_mov_b32 s55, 0")
            a("s_waitcnt lgkmcnt(0)")
            for k in range(0, nsamp):
                a("s_cmp_eq_u32 s%d, s54" % (4 + k)); a("s_addc_u32 s55, s55, 0")
            a("s_mov_b32 s56, 0")
            for tv in thr:
                a("s_cmp_ge_u32 s55, %d" % tv); a("s_addc_u32 s56, s56, 0")
            a("v_mov_b32 v25, s56"); a("ds_write_b32 v24, v25 offset:%d" % (L_LVL - L_HST))
            if stamps: a("v_writelane_b32 v%d, s55, %d" % (VST, 32 + len(cpl)))
            a("s_add_u32 s52, s52, 0x8000"); a("s_addc_u32 s53, s53, 0")
    checkpoints(T0["ksm"] + 4)
    wait_min4("s41", "v26", 28, "2", sleep=8)
    for w in range(4):
        a("ds_read_b32 v%d, v13 offset:%d" % (32 + w, 64 * w))
        a("ds_read_b32 v%d, v13 offset:%d" % (36 + w, 64 * w + 32))
        a("ds_read_b32 v%d, v13 offset:%d" % (40 + w, L_LW - L_MX + 64 * w))
        a("ds_read_b32 v%d, v13 offset:%d" % (44 + w, L_LW - L_MX + 64 * w + 32))
    a("s_waitcnt lgkmcnt(0)")
    a("v_max3_f32 v32, v32, v33, v34"); a("v_max_f32 v32, v32, v35")
    a("v_max3_f32 v36, v36, v37, v38"); a("v_max_f32 v36, v36, v39")
    a("v_add_f32 v40, v40, v41"); a("v_add_f32 v42, v42, v43"); a("v_add_f32 v40, v40, v42")
    a("v_add_f32 v44, v44, v45"); a("v_add_f32 v46, v46, v47"); a("v_add_f32 v44, v44, v46")
    a("v_max_f32 v60, v32, v36"); a("v_add_f32 v61, v40, v44")
    a("v_cndmask_b32 v60, v60, v36, s[48:49]"); a("v_cndmask_b32 v61, v61, v44, s[48:49]")
    a("v_cndmask_b32 v60, v60, v32, s[50:51]"); a("v_cndmask_b32 v61, v61, v40, s[50:51]")
    a("s_mov_b64 exec, s[46:47]")
    a("global_store_dwordx4 v11, v[60:63], s[38:39] sc1")
    a("s_mov_b64 exec, -1")
    stamp(4)
    checkpoints(T0["vbig"] + ml_at)
    if ml_at: wait_word("s42", "v27", "v28", str(T0["vbig"] + ml_at), sleep=8)
    def mlcheck():
        a("v_xor_b32 v18, v16, v62"); a("v_bitop3_b32 v18, v17, v63, v18 bitop3:0xbe")
        a("v_cmp_ne_u32 vcc, 0, v18")
    poll_valid(lambda: a("global_load_dwordx4 v[14:17], v12, s[34:35] sc1"), mlcheck, sleep=mlsleep, mask0="s[44:45]")
    a("v_mov_b32 v17, v14")
    bfly("v_max_f32", 17, 18, [0, 1, 2, 3, 4])
    a("v_sub_f32 v14, v14, v17"); a("v_exp_f32 v14, v14"); a("s_nop 0")
    a("v_mul_f32 v15, v15, v14")
    bfly("v_add_f32", 15, 18, [0, 1, 2, 3, 4])
    a("v_rcp_f32 v15, v15"); a("s_nop 0"); a("v_mul_f32 v14, v14, v15")
    a("v_lshlrev_b32 v13, 2, v0")
    a("v_add_u32 v13, %d, v13" % L_F)
    a("ds_write_b32 v13, v14")
    a("v_mov_b32 v25, 1"); a("ds_write_b32 v24, v25")
    checkpoints(NT)
    a("s_waitcnt lgkmcnt(0)")
    stamp(5)
    stamp_flush()
    a("s_endpgm")

    a("L_cons:")
    sL = "s33"; sHS = "s34"; sST = "s35"
    a("s_sub_u32 s32, s30, 2")
    a("s_mov_b32 s33, 0"); a("s_mov_b32 s34, 0"); a("s_mov_b32 s35, 0")
    a("s_lshl_b32 s38, s32, 2")
    a("v_lshl_add_u32 v4, v0, 4, s38")
    a("v_add_u32 v5, %d, v4" % L_STAGE); a("v_add_u32 v4, %d, v4" % L_FREE)
    a("v_mov_b32 v6, %d" % L_LANDED); a("v_mov_b32 v7, %d" % L_HST); a("v_mov_b32 v12, %d" % L_STAGE)
    a("v_mov_b32 v8, 0")
    a("ds_write_b32 v4, v8"); a("ds_write_b32 v5, v8")
    a("v_bfe_u32 v13, v0, 2, 2"); a("v_and_b32 v14, 3, v0")
    VX = 64
    a("v_and_b32 v15, 1, v0"); a("v_lshlrev_b32 v15, 11, v15"); a("v_lshl_add_u32 v15, v1, 4, v15")
    a("s_waitcnt lgkmcnt(0)")
    a("s_barrier")
    a("s_cmp_lt_u32 s2, 128")
    a("s_cselect_b32 s40, s4, s14"); a("s_cselect_b32 s41, s5, s15")
    a("s_and_b32 s38, s3, 1"); a("s_lshl_b32 s38, s38, 10")
    a("s_add_u32 s40, s40, s38"); a("s_addc_u32 s41, s41, 0")
    for s in range(16):
        a("global_load_dwordx4 v[%d:%d], v15, s[40:41] offset:%d" % (VX + 4 * s, VX + 4 * s + 3, 64 * s))
    epoch_load()
    if "nocons" in dbg:
        a("s_waitcnt vmcnt(0)")
        a("s_endpgm")
    def set_free(val):
        a("v_mov_b32 v8, %s" % val); a("ds_write_b32 v4, v8")
    def set_stage(val):
        a("v_mov_b32 v8, %d" % val); a("ds_write_b32 v5, v8")
    a("v_lshl_add_u32 v16, v1, 3, v13"); a("v_lshlrev_b32 v16, 7, v16")
    a("v_lshrrev_b32 v17, 1, v13"); a("v_and_b32 v18, 1, v1"); a("v_lshl_or_b32 v17, v18, 1, v17")
    a("v_lshlrev_b32 v17, 1, v17")
    a("v_lshrrev_b32 v18, 1, v14"); a("s_lshl_b32 s38, s32, 1"); a("v_add_u32 v18, s38, v18")
    a("v_xor_b32 v17, v17, v18"); a("v_lshl_add_u32 v16, v17, 4, v16")
    a("v_and_b32 v18, 1, v14"); a("v_lshl_add_u32 v16, v18, 3, v16")
    vKa = list(range(20, 28))
    a("v_lshrrev_b32 v17, 1, v1"); a("v_lshl_add_u32 v17, v17, 4, v2"); a("v_lshlrev_b32 v17, 8, v17")
    a("s_lshl_b32 s38, s32, 13"); a("v_add_u32 v17, s38, v17")
    a("v_and_b32 v18, 1, v1"); a("v_xor_b32 v18, v18, v2"); a("v_lshl_add_u32 v20, v18, 4, v17")
    for s in range(1, 8): a("v_xor_b32 v%d, %d, v20" % (vKa[s], 32 * s))
    a("v_lshl_add_u32 v17, v1, 2, v13")
    a("v_and_b32 v18, 7, v17"); a("v_lshlrev_b32 v18, 1, v18")
    a("v_lshrrev_b32 v19, 1, v14")
    a("v_xor_b32 v30, v18, v19")
    a("v_and_b32 v31, 1, v14"); a("v_lshlrev_b32 v31, 3, v31")
    a("v_lshl_add_u32 v30, v30, 4, v31")
    a("s_lshl_b32 s38, s32, 6")
    a("v_xor_b32 v28, s38, v30"); a("v_lshl_add_u32 v28, v17, 8, v28")
    a("v_xor_b32 v29, 32, v28")
    vWOa = list(range(40, 48))
    a("s_lshl_b32 s38, s32, 9")
    a("v_lshl_add_u32 v40, v17, 11, v30"); a("v_add_u32 v40, s38, v40")
    for t in range(1, 8): a("v_xor_b32 v%d, %d, v40" % (vWOa[t], 32 * t))
    a("v_and_b32 v17, 7, v0"); a("v_lshl_add_u32 v17, v1, 3, v17"); a("v_lshlrev_b32 v17, 4, v17")
    a("v_add_u32 v33, %d, v17" % PBASE)
    a("v_bfe_u32 v18, v0, 3, 1"); a("v_lshl_add_u32 v32, v18, 3, v33")
    a("s_lshl_b32 s38, s32, 9"); a("v_add_u32 v32, s38, v32")
    gl = lambda d, off: (a("s_add_u32 s%d, s28, %s" % (d, off)), a("s_addc_u32 s%d, s29, 0" % (d + 1)))
    a("s_lshr_b32 s38, s2, 7"); a("s_lshl_b32 s38, s38, 16")
    a("s_and_b32 s39, s3, 1"); a("s_lshl_b32 s39, s39, 14"); a("s_add_u32 s38, s38, s39")
    a("s_bfe_u32 s39, s3, 0x60001"); a("s_lshl_b32 s39, s39, 8"); a("s_add_u32 s38, s38, s39")
    a("s_lshl_b32 s39, s32, 6"); a("s_add_u32 s38, s38, s39")
    gl(40, "s38")
    a("v_and_b32 v34, 1, v0"); a("v_lshlrev_b32 v34, 15, v34"); a("v_lshl_add_u32 v34, v1, 4, v34")
    role()
    a("s_lshr_b32 s39, s2, 7"); a("s_lshl_b32 s38, s39, 15")
    a("s_bfe_u32 s39, s2, 0x20005"); a("s_lshl_b32 s39, s39, 12"); a("s_add_u32 s38, s38, s39")
    a("s_lshl_b32 s39, s32, 10"); a("s_add_u32 s38, s38, s39")
    gl(44, "s38")
    a("s_lshl_b32 s39, s92, 16"); a("s_add_u32 s38, s38, s39")
    gl(42, "s38")
    a("v_lshlrev_b32 v48, 4, v0"); a("v_add_u32 v36, 16384, v48")
    a("s_lshl_b32 s38, s32, 9"); a("s_add_u32 s38, s38, %d" % QBASE)
    a("v_lshl_add_u32 v37, v0, 3, s38")
    a("v_and_b32 v17, 7, v0"); a("v_lshlrev_b32 v17, 8, v17"); a("v_and_b32 v18, 1, v1"); a("v_lshl_add_u32 v17, v18, 4, v17")
    a("v_add_u32 v35, %d, v17" % QBASE)
    a("s_lshl_b32 s39, s92, 11"); a("v_add_u32 v38, s39, v35")
    a("s_waitcnt vmcnt(0)")
    epoch_tags()
    VF = 128
    VS = 160
    VQA = 200
    VWE = 216
    for u in range(8):
        wait_word(sL, "v6", "v8", str(u), sleep=psleep)
        for s in range(2):
            for h in range(2):
                a("ds_read_b64_tr_b16 v[%d:%d], v16 offset:%d" % (VF + 4 * s + 2 * h, VF + 4 * s + 2 * h + 1, u * 8192 + s * 4096 + h * 512))
        a("s_waitcnt lgkmcnt(0)")
        for s in range(2):
            c = "0" if (u == 0 and s == 0) else "v[%d:%d]" % (VQA, VQA + 3)
            x = VX + 4 * (2 * u + s)
            a("v_mfma_f32_16x16x32_bf16 v[%d:%d], v[%d:%d], v[%d:%d], %s" % (VQA, VQA + 3, VF + 4 * s, VF + 4 * s + 3, x, x + 3, c))
        if u < 7 or wo_early == 2: set_free(str(u + 1))
        else:
            a("s_add_u32 s36, s32, %d" % T0["kbig"]); set_free("s36")
    stamp(1)
    a("s_mov_b32 exec_lo, 0x00030003"); a("s_mov_b32 exec_hi, 0x00030003")
    a("s_nop 3")
    tag4(VQA)
    a("global_store_dwordx4 v34, v[%d:%d], s[40:41] sc1" % (VQA, VQA + 3))
    a("s_mov_b64 exec, -1")
    stamp(2)
    VO = 204
    VW = 64
    def wo_reads(name, dst):
        T = T0[name]
        wait_word(sL, "v6", "v8", str(T + 3))
        base = (T % NSLOT) * 8192
        if base >= 65536:
            for t in range(8): a("v_add_u32 v%d, 0x10000, v%d" % (vWOa[t], vWOa[t]))
        for t in range(16):
            d = dst(t)
            a("ds_read_b64_tr_b16 v[%d:%d], v%d offset:%d" % (d, d + 1, vWOa[t & 7], base % 65536 + (t >> 3) * 256))
        if base >= 65536:
            for t in range(8): a("v_subrev_u32 v%d, 0x10000, v%d" % (vWOa[t], vWOa[t]))
    VQ = 64
    for r in range(64): a("v_mov_b32 v%d, 0" % (VQ + r))
    if wo_early == 2:
        wo_reads("woE", lambda t: VWE + 2 * t)
        a("s_add_u32 s36, s32, %d" % T0["kbig"])
        a("s_waitcnt lgkmcnt(0)")
        set_free("s36")
    for r in range(8): a("v_mov_b32 v%d, v%d" % (VF + 8 + r, VT + (r & 3)))
    def qloads():
        for kh in range(2):
            a("global_load_dwordx4 v[%d:%d], v%d, s[42:43] sc1" % (VF + 4 * kh, VF + 4 * kh + 3, (48, 36)[kh]))
        sk = lab("qs")
        a("s_cmp_eq_u32 s92, 0"); a("s_cbranch_scc1 " + sk)
        for kh in range(2):
            a("global_load_dwordx4 v[%d:%d], v%d, s[44:45] sc1" % (VF + 8 + 4 * kh, VF + 8 + 4 * kh + 3, (48, 36)[kh]))
        a(sk + ":")
    if qg_at: wait_word(sL, "v6", "v8", str(qg_at - 1), sleep=psleep)
    stamp(14)
    poll_valid(qloads, tagcheck(VF, 16, VF + 16, 8), sleep=qsleep)
    stamp(3)
    for r in range(4): a("v_add_f32 v%d, v%d, v%d" % (VF + r, VF + 16 + r, VF + 20 + r))
    for r in range(4): a("v_add_f32 v%d, v%d, v%d" % (VF + 4 + r, VF + 24 + r, VF + 28 + r))
    for r in range(4): a("v_cvt_pk_bf16_f32 v%d, v%d, v%d" % (VF + 16 + r, VF + 2 * r, VF + 2 * r + 1))
    a("ds_write_b64 v37, v[%d:%d]" % (VF + 16, VF + 17)); a("ds_write_b64 v37, v[%d:%d] offset:2048" % (VF + 18, VF + 19))
    set_stage(1)
    wait_min4(sST, "v12", 8, "0")
    a("s_mov_b32 exec_lo, 0x00ff00ff"); a("s_mov_b32 exec_hi, 0xff00ff00")
    for part in range(2):
        for s in range(8):
            d = VQ + 32 * part + 4 * s
            a("ds_read_b128 v[%d:%d], v%d offset:%d" % (d, d + 3, (35, 38)[part], 32 * s))
    a("s_mov_b64 exec, -1")
    stamp(4)
    hi = [False]
    def ktile(Tbase, q, sdst, nxt):
        a("s_add_u32 s36, s32, %d" % Tbase)
        wait_word(sL, "v6", "v8", "s36", sleep=psleep)
        sl = Tbase % NSLOT
        want_hi = sl >= 8
        if want_hi != hi[0]:
            for s in range(8): a("v_xor_b32 v%d, 0x10000, v%d" % (vKa[s], vKa[s]))
            hi[0] = want_hi
        for s in range(8):
            a("ds_read_b128 v[%d:%d], v%d offset:%d" % (VF + 4 * s, VF + 4 * s + 3, vKa[s], (sl % 8) * 8192))
        if nxt is None: a("s_add_u32 s36, s36, 4")
        else: a("s_mov_b32 s36, %d" % nxt)
        a("v_mov_b32 v8, s36")
        for s in range(8):
            a("s_waitcnt lgkmcnt(%d)" % (7 - s))
            if s == 7: a("ds_write_b32 v4, v8")
            c = "0" if s == 0 else "v[%d:%d]" % (sdst, sdst + 3)
            a("v_mfma_f32_16x16x32_bf16 v[%d:%d], v[%d:%d], v[%d:%d], %s" % (sdst, sdst + 3, VF + 4 * s, VF + 4 * s + 3, q + 4 * s, q + 4 * s + 3, c))
    assert T0["ksm"] == T0["kbig"] + 32
    for i in range(8):
        ktile(T0["kbig"] + 4 * i, VQ, VS + 4 * i, None)
    ktile(T0["ksm"], VQ + 32, VS + 32, T0["ksm"] + 4)
    stamp(5)
    a("s_mov_b32 s38, 0x%x" % f2u(CSCALE))
    a("v_max_f32 v35, v%d, v%d" % (VS, VS + 1))
    for r in range(2, 32, 2): a("v_max3_f32 v35, v35, v%d, v%d" % (VS + r, VS + r + 1))
    a("v_max3_f32 v34, v%d, v%d, v%d" % (VS + 32, VS + 33, VS + 34)); a("v_max_f32 v34, v34, v%d" % (VS + 35))
    bfly("v_max_f32", 34, 36, [3, 4, 5]); bfly("v_max_f32", 35, 36, [3, 4, 5])
    a("v_mul_f32 v34, s38, v34"); a("v_mul_f32 v35, s38, v35")
    a("v_and_b32 v17, 7, v0"); a("v_lshlrev_b32 v17, 2, v17")
    a("v_add_u32 v18, %d, v17" % L_MX)
    a("s_lshl_b32 s39, s32, 6"); a("v_add_u32 v17, s39, v18")
    a("ds_write_b32 v17, v35"); a("ds_write_b32 v17, v34 offset:32")
    set_stage(2)
    if wo_early == 2:
        for t in range(16):
            a("v_mov_b32 v%d, v%d" % (VW + 4 * t, VWE + 2 * t)); a("v_mov_b32 v%d, v%d" % (VW + 4 * t + 1, VWE + 2 * t + 1))
    wait_min4(sST, "v12", 8, "1")
    for w in range(4):
        a("ds_read_b32 v%d, v18 offset:%d" % (VF + w, 64 * w)); a("ds_read_b32 v%d, v18 offset:%d" % (VF + 4 + w, 64 * w + 32))
    a("s_waitcnt lgkmcnt(0)")
    a("v_max3_f32 v35, v%d, v%d, v%d" % (VF, VF + 1, VF + 2)); a("v_max_f32 v35, v35, v%d" % (VF + 3))
    a("v_max3_f32 v34, v%d, v%d, v%d" % (VF + 4, VF + 5, VF + 6)); a("v_max_f32 v34, v34, v%d" % (VF + 7))
    a("s_cmp_eq_u32 s92, 1"); a("s_cbranch_scc1 L_twomax")
    a("v_max_f32 v35, v35, v34"); a("v_mov_b32 v34, v35")
    a("L_twomax:")
    for r in range(36):
        a("v_fma_f32 v%d, v%d, s38, -v%d" % (VS + r, VS + r, 35 if r < 32 else 34))
    for r in range(36): a("v_exp_f32 v%d, v%d" % (VS + r, VS + r))
    a("s_nop 0")
    for tl in range(9):
        b = VS + 4 * tl
        a("v_cvt_pk_bf16_f32 v%d, v%d, v%d" % (VF + 2 * tl, b, b + 1)); a("v_cvt_pk_bf16_f32 v%d, v%d, v%d" % (VF + 2 * tl + 1, b + 2, b + 3))
        a("ds_write_b64 v32, v[%d:%d] offset:%d" % (VF + 2 * tl, VF + 2 * tl + 1, 2048 * tl))
    a("v_add_f32 v34, v%d, v%d" % (VS + 32, VS + 33)); a("v_add_f32 v36, v%d, v%d" % (VS + 34, VS + 35)); a("v_add_f32 v34, v34, v36")
    n = 32
    while n > 1:
        n //= 2
        for r in range(n): a("v_add_f32 v%d, v%d, v%d" % (VS + r, VS + r, VS + n + r))
    a("v_mov_b32 v35, v%d" % VS)
    bfly("v_add_f32", 34, 36, [3, 4, 5]); bfly("v_add_f32", 35, 36, [3, 4, 5])
    a("ds_write_b32 v17, v35 offset:%d" % (L_LW - L_MX)); a("ds_write_b32 v17, v34 offset:%d" % (L_LW - L_MX + 32))
    set_stage(3)
    a("v_and_b32 v37, 7, v0"); a("v_lshlrev_b32 v37, 15, v37")
    a("v_bfe_u32 v18, v0, 3, 1"); a("v_lshl_add_u32 v37, v18, 6, v37"); a("v_lshl_add_u32 v37, v1, 4, v37")
    a("s_bfe_u32 s38, s2, 0x20005"); a("s_lshl_b32 s38, s38, 18")
    a("s_lshl_b32 s39, s32, 13"); a("s_add_u32 s38, s38, s39")
    a("s_lshr_b32 s39, s2, 7"); a("s_lshl_b32 s39, s39, 12"); a("s_add_u32 s38, s38, s39")
    a("s_and_b32 s39, s2, 31"); a("s_lshl_b32 s39, s39, 7"); a("s_add_u32 s38, s38, s39")
    a("s_add_u32 s38, s38, 0x%x" % W_IN1); gl(42, "s38")
    a("s_add_u32 s44, s42, 0x100000"); a("s_addc_u32 s45, s43, 0")
    a("s_mov_b32 s46, 0xff00ff00"); a("s_mov_b32 s47, 0xff00ff00")
    a("s_lshl_b32 s38, s2, 13"); a("s_lshl_b32 s39, s32, 11"); a("s_add_u32 s38, s38, s39")
    a("s_add_u32 s38, s38, 0x%x" % W_IN1); gl(48, "s38")
    a("v_and_b32 v49, 1, v0"); a("v_lshlrev_b32 v49, 19, v49")
    a("v_bfe_u32 v18, v0, 2, 2"); a("v_lshl_add_u32 v49, v18, 14, v49")
    a("v_bfe_u32 v18, v0, 1, 1"); a("v_lshl_add_u32 v49, v18, 6, v49"); a("v_lshl_add_u32 v49, v1, 4, v49")
    a("s_lshr_b32 s38, s2, 7"); a("s_lshl_b32 s38, s38, 20")
    a("s_lshl_b32 s39, s32, 17"); a("s_add_u32 s38, s38, s39")
    a("s_and_b32 s39, s2, 127"); a("s_lshl_b32 s39, s39, 7"); a("s_add_u32 s38, s38, s39")
    a("s_add_u32 s38, s38, 0x%x" % W_IN2); gl(50, "s38")
    a("s_add_u32 s52, s50, 0x10000"); a("s_addc_u32 s53, s51, 0")
    a("s_and_b32 s38, s2, 127"); a("s_lshl_b32 s38, s38, 14"); a("s_lshl_b32 s39, s32, 12"); a("s_add_u32 s38, s38, s39")
    a("s_add_u32 s38, s38, 0x%x" % W_IN2); gl(54, "s38")
    a("s_bfe_u32 s38, s2, 0x10005"); a("s_lshl_b32 s38, s38, 12")
    a("s_bfe_u32 s39, s2, 0x10006"); a("s_lshl_b32 s39, s39, 11"); a("s_add_u32 s38, s38, s39")
    a("s_and_b32 s39, s2, 31"); a("s_lshl_b32 s39, s39, 6"); a("s_add_u32 s38, s38, s39")
    a("s_add_u32 s56, s24, s38"); a("s_addc_u32 s57, s25, 0")
    for t in range(8):
        m = (3 << (2 * t)) * 0x00010001
        a("s_mov_b32 s%d, 0x%x" % (64 + 2 * t, m)); a("s_mov_b32 s%d, 0x%x" % (65 + 2 * t, m))
    a("v_and_b32 v50, 7, v0"); a("v_lshlrev_b32 v50, 4, v50"); a("s_lshl_b32 s38, s32, 7"); a("v_add_u32 v50, s38, v50")
    a("v_add_u32 v50, %d, v50" % L_OX)
    a("v_and_b32 v51, 1, v0"); a("v_lshlrev_b32 v51, 8, v51"); a("v_lshl_add_u32 v51, v1, 4, v51")
    a("v_add_u32 v51, %d, v51" % L_OX)
    a("v_lshrrev_b32 v52, 3, v0"); a("s_lshl_b32 s38, s32, 4"); a("v_add_u32 v52, s38, v52"); a("v_lshlrev_b32 v52, 2, v52")
    a("v_add_u32 v52, %d, v52" % L_F)
    a("v_lshlrev_b32 v55, 3, v0")
    a("v_add_co_u32 v60, vcc, 1, v60"); a("s_nop 1"); a("v_addc_co_u32 v61, vcc, 0, v61, vcc")
    VH = 136; VR = 176
    a("s_bfe_u32 s38, s2, 0x20005"); a("s_lshr_b32 s39, s32, 1"); a("s_lshl_b32 s39, s39, 2"); a("s_add_u32 s38, s38, s39")
    a("s_lshl_b32 s38, s38, 3"); a("s_mov_b64 s[58:59], 0xff"); a("s_lshl_b64 s[58:59], s[58:59], s38")
    a("s_cmp_lt_u32 s2, 128"); a("s_cselect_b64 s[58:59], -1, s[58:59]")
    for r in range(8): a("v_mov_b32 v%d, v%d" % (VR + r, VT + (r & 3)))
    for r in range(8): a("v_mov_b32 v%d, 0" % (VO + r))
    a("s_cmp_eq_u32 s92, 1"); a("s_cselect_b32 s61, %d, 0" % T0["vsm"])
    wait_min4(sST, "v12", 8, "2")
    stamp(6)
    if wo_early == 1:
        wo_reads("woE", lambda t: VW + 4 * t)
        a("s_waitcnt lgkmcnt(0)")
        set_free(str(T0["vbig"]))
    def ostore(sp, d):
        for r in range(4): a("v_cndmask_b32 v%d, v%d, v%d, s[46:47]" % (d + r, VO + r, VO + 4 + r))
        tag4(d)
        a("global_store_dwordx4 v37, v[%d:%d], s[%d:%d] sc1" % (d, d + 3, sp, sp + 1))
    a("s_mov_b32 s36, %d" % T0["vbig"])
    a("L_v:")
    a("s_and_b32 s37, s36, %d" % (NSLOT - 1)); a("s_lshl_b32 s37, s37, 13")
    a("v_add_u32 v38, s37, v28"); a("v_add_u32 v39, s37, v29")
    wait_word(sL, "v6", "v8", "s36", sleep=psleep)
    a("ds_read_b128 v[%d:%d], v33" % (VF + 8, VF + 11))
    a("ds_read_b64_tr_b16 v[%d:%d], v38" % (VF, VF + 1)); a("ds_read_b64_tr_b16 v[%d:%d], v38 offset:4096" % (VF + 2, VF + 3))
    a("ds_read_b64_tr_b16 v[%d:%d], v39" % (VF + 4, VF + 5)); a("ds_read_b64_tr_b16 v[%d:%d], v39 offset:4096" % (VF + 6, VF + 7))
    a("v_add_u32 v33, 512, v33")
    a("s_add_u32 s36, s36, 1")
    a("v_mov_b32 v8, s36")
    a("s_waitcnt lgkmcnt(2)")
    a("v_mfma_f32_16x16x32_bf16 v[%d:%d], v[%d:%d], v[%d:%d], v[%d:%d]" % (VO, VO + 3, VF, VF + 3, VF + 8, VF + 11, VO, VO + 3))
    a("s_waitcnt lgkmcnt(0)")
    a("v_mfma_f32_16x16x32_bf16 v[%d:%d], v[%d:%d], v[%d:%d], v[%d:%d]" % (VO + 4, VO + 7, VF + 4, VF + 7, VF + 8, VF + 11, VO + 4, VO + 7))
    a("ds_write_b32 v4, v8")
    a("s_cmp_eq_u32 s36, s61")
    a("s_cbranch_scc1 L_vmid")
    a("s_cmp_lt_u32 s36, %d" % VEND)
    a("s_cbranch_scc1 L_v")
    a("s_nop 2")
    ostore(42, VO + 8)
    stamp(8)
    def h1loads():
        for i in range(2):
            a("global_load_dwordx4 v[%d:%d], v48, s[48:49] offset:%d sc1" % (VR + 4 * i, VR + 4 * i + 3, 1024 * i))
    if h1pre:
        a("s_mov_b64 exec, s[58:59]"); h1loads(); a("s_mov_b64 exec, -1")
    if not wo_early: wo_reads("woE", lambda t: VW + 4 * t)
    wo_reads("woL", lambda t: VW + 4 * t + 2)
    wait_word(sHS, "v7", "v8", "0")
    a("ds_read_b32 v53, v52"); a("ds_read_b32 v54, v52 offset:32")
    stamp(9)
    poll_valid(h1loads, tagcheck(VR, 8, VH, 8), sleep=h1sleep, first=not h1pre, mask0="s[58:59]")
    stamp(10)
    a("s_waitcnt lgkmcnt(0)")
    for r in range(4): a("v_mul_f32 v%d, v%d, v53" % (VH + r, VH + r))
    for r in range(4): a("v_fmac_f32 v%d, v%d, v54" % (VH + r, VH + 4 + r))
    bfly4("v_add_f32", VH, VH + 4, [3, 4, 5])
    a("s_mov_b64 exec, 0xff")
    a("ds_write_b128 v50, v[%d:%d]" % (VH, VH + 3))
    a("s_mov_b64 exec, -1")
    a("s_waitcnt lgkmcnt(0)")
    a("s_barrier")
    for k, off in enumerate((0, 64, 128, 192)):
        a("ds_read_b128 v[%d:%d], v51 offset:%d" % (VH + 4 * k, VH + 4 * k + 3, off))
    a("s_waitcnt lgkmcnt(0)")
    for r in range(8): a("v_add_f32 v%d, v%d, v%d" % (VH + r, VH + r, VH + 8 + r))
    for r in range(4): a("v_cvt_pk_bf16_f32 v%d, v%d, v%d" % (VH + 16 + r, VH + 2 * r, VH + 2 * r + 1))
    VB = 160
    def cnd(t):
        for r in range(4): a("v_cndmask_b32 v%d, 0, v%d, s[%d:%d]" % (VB + 4 * t + r, VH + 16 + r, 64 + 2 * t, 65 + 2 * t))
    def mm(t):
        for ch in range(2):
            w = VW + 4 * (8 * ch + t); d = VO + 4 * ch
            c = "0" if t == 0 else "v[%d:%d]" % (d, d + 3)
            a("v_mfma_f32_16x16x32_bf16 v[%d:%d], v[%d:%d], v[%d:%d], %s" % (d, d + 3, w, w + 3, VB + 4 * t, VB + 4 * t + 3, c))
    if ilv:
        cnd(0)
        for t in range(8):
            if t < 7: cnd(t + 1)
            mm(t)
    else:
        for t in range(8): cnd(t)
        for t in range(8): mm(t)
    a("s_nop 6")
    tag4(VO)
    a("global_store_dwordx4 v49, v[%d:%d], s[50:51] sc1" % (VO, VO + 3))
    tag4(VO + 4)
    a("global_store_dwordx4 v49, v[%d:%d], s[52:53] sc1" % (VO + 4, VO + 7))
    stamp(11)
    a("s_cmp_ge_u32 s2, 128")
    a("s_cbranch_scc1 L_fin")
    def h2loads():
        for i in range(4):
            a("global_load_dwordx4 v[%d:%d], v48, s[54:55] offset:%d sc1" % (VR + 4 * i, VR + 4 * i + 3, 1024 * i))
    if ackw: a("s_waitcnt vmcnt(0)")
    poll_valid(h2loads, tagcheck(VR, 16, VH, 8), sleep=h2sleep)
    stamp(12)
    for r in range(8): a("v_add_f32 v%d, v%d, v%d" % (VH + r, VH + r, VH + 8 + r))
    for r in range(4): a("v_add_f32 v%d, v%d, v%d" % (VH + r, VH + r, VH + 4 + r))
    bfly4("v_add_f32", VH, VH + 4, [3, 4, 5])
    a("s_mov_b64 exec, 0xff")
    a("ds_write_b128 v50, v[%d:%d] offset:%d" % (VH, VH + 3, L_RX - L_OX))
    a("s_waitcnt lgkmcnt(0)")
    a("s_barrier")
    a("s_cmp_lg_u32 s32, 0")
    a("s_cbranch_scc1 L_fin")
    for k in range(4):
        a("ds_read_b128 v[%d:%d], v50 offset:%d" % (VH + 4 * k, VH + 4 * k + 3, L_RX - L_OX + 128 * k))
    a("s_waitcnt lgkmcnt(0)")
    for r in range(8): a("v_add_f32 v%d, v%d, v%d" % (VH + r, VH + r, VH + 8 + r))
    for r in range(4): a("v_add_f32 v%d, v%d, v%d" % (VH + r, VH + r, VH + 4 + r))
    a("v_cvt_pk_bf16_f32 v%d, v%d, v%d" % (VH + 4, VH, VH + 1)); a("v_cvt_pk_bf16_f32 v%d, v%d, v%d" % (VH + 5, VH + 2, VH + 3))
    a("global_store_dwordx2 v55, v[%d:%d], s[56:57]" % (VH + 4, VH + 5))
    a("s_cmp_lg_u32 s2, 0")
    a("s_cbranch_scc1 L_fin")
    a("s_mov_b64 exec, 1")
    a("global_store_dwordx2 v55, v[60:61], s[62:63] sc1")
    a("L_fin:")
    stamp(13)
    stamp_flush()
    a("L_end:")
    a("s_endpgm")
    a("L_vmid:")
    a("s_nop 4")
    ostore(44, 196)
    for r in range(8): a("v_mov_b32 v%d, 0" % (VO + r))
    stamp(7)
    a("s_branch L_v")
    nv = 256 if (stamps or wo_early == 2) else 216
    return (header(["grid=(256,1,1) block=(384,1,1) lds=%d" % LDS_BYTES]) + kernel_open(KNAME) + a.text()
            + RODATA + descriptor(KNAME, nv, 100, nv))

if __name__ == "__main__":
    open(sys.argv[1], "w").write(gen(**eval("dict(%s)" % (sys.argv[2] if len(sys.argv) > 2 else ""))))
```

```python
import sys, math, struct
from asmlib import *

NSLOT = 16
PBASE = NSLOT * 8192
QBASE = PBASE
SY = PBASE + 36 * 512
L_LANDED = SY
L_FREE = SY + 256
L_STAGE = SY + 1280
L_HST = SY + 2304
L_MX = SY + 2560
L_LW = SY + 2816
L_F = SY + 3072
L_OX = SY + 3328
L_RX = SY + 3840
L_LVL = SY + 4352
LDS_BYTES = SY + 4608
W_QP = 0x000000
W_ML = 0x020000
W_EP = 0x040000
W_PB = 0x050000
W_IN1 = 0x100000
W_IN2 = 0x300000
STAMP_OFF = 0x10000000
CSCALE = math.log2(math.e) / math.sqrt(128.0)
def f2u(x): return struct.unpack("<I", struct.pack("<f", x))[0]

def gen(win=20, win0=None, winT=None, tailT=0, stamps=False, wo_early=1, budget=1 << 20, psleep=0, qsleep=2, dbg='',
        ml_at=16, mlsleep=8, qg_at=14, h1sleep=0, h2sleep=0, h1pre=1, blate=0, epsc=1, ackw=1, ilv=1, qx=0, vst=0, burst=3, levels=None, cps=None, lvl0=1, thr=None, nsamp=16, redisp=4, ldpol='nt', wsoff=0, epoff=None, diag=0):
    dbg = dbg.split()
    win0 = win0 or win
    winT = winT or win
    a = Asm()
    uid = [0]
    def lab(p):
        uid[0] += 1
        return "L_%s_%d" % (p, uid[0])
    segs = [("wq", 8)]
    if wo_early == 2: segs += [("woE", 4)]
    segs += [("kbig", 32), ("ksm", 4)]
    if wo_early == 1: segs += [("woE", 4)]
    segs += [("vbig", 32), ("vsm", 4)]
    segs += [("woL", 4)] if wo_early else [("woE", 4), ("woL", 4)]
    T0 = {}; t = 0
    for n, c in segs:
        T0[n] = t; t += c
    NT = t
    VEND = T0["vsm"] + 4
    assert T0["wq"] == 0 and (T0["woE"] % NSLOT) <= NSLOT - 4 and (T0["woL"] % NSLOT) <= NSLOT - 4
    assert T0["kbig"] % 4 == 0
    def role():
        a("s_lshr_b32 s93, s2, 5"); a("s_and_b32 s92, s2, 7"); a("s_cmp_eq_u32 s92, s93"); a("s_cselect_b32 s92, 1, 0")

    sB = "s31"
    VST = 250
    def stamp(k):
        if stamps:
            a("s_memrealtime s[96:97]"); a("s_waitcnt lgkmcnt(0)"); a("v_writelane_b32 v%d, s96, %d" % (VST, k))
    def stamp_flush():
        if stamps:
            a("s_mov_b64 exec, -1")
            a("s_getreg_b32 s96, hwreg(HW_REG_XCC_ID)")
            a("v_writelane_b32 v%d, s96, 63" % VST)
            a("s_mul_i32 s96, s2, 6"); a("s_add_u32 s96, s96, s30"); a("s_lshl_b32 s96, s96, 8")
            a("v_lshl_add_u32 v251, v0, 2, s96")
            a("s_load_dwordx2 s[98:99], s[0:1], 96"); a("s_waitcnt lgkmcnt(0)")
            a("s_add_u32 s98, s98, 0x%x" % STAMP_OFF); a("s_addc_u32 s99, s99, 0")
            a("global_store_dword v251, v%d, s[98:99]" % VST)
            a("s_waitcnt vmcnt(0)")
    site = [0]; sites = []
    def diag_end(role):
        if diag:
            sk = lab("dg")
            a("s_cmp_eq_u32 s94, 0"); a("s_cbranch_scc1 " + sk)
            a("s_mov_b64 exec, 1")
            a("s_lshl_b32 s95, s2, 8"); a("s_or_b32 s95, s95, s94")
            a("v_mov_b32 v1, s95"); a("v_mov_b32 v2, 0"); a("v_mov_b32 v3, 1")
            a("global_store_dword v2, v1, s[26:27] offset:%d sc1" % (4 * role))
            a("global_atomic_add v2, v3, s[26:27] offset:%d sc1" % (4 * (4 + role)))
            a("s_waitcnt vmcnt(0)")
            a(sk + ":")
    def budget_loop(label):
        a("s_sub_u32 %s, %s, 1" % (sB, sB))
        a("s_cbranch_scc0 %s" % label)
        a("s_mov_b32 %s, 0" % sB)
        if diag:
            site[0] += 1
            a("s_cmp_eq_u32 s94, 0"); a("s_cselect_b32 s94, %d, s94" % site[0])
            sites.append((site[0], label, len(a.l)))
    def wait_word(scache, vaddr, vtmp, thr, off=0, sleep=0):
        lp = lab("pw"); ok = lab("ok")
        a(lp + ":")
        a("s_cmp_gt_u32 %s, %s" % (scache, thr))
        a("s_cbranch_scc1 " + ok)
        if sleep: a("s_sleep %d" % sleep)
        a("ds_read_b32 %s, %s offset:%d" % (vtmp, vaddr, off))
        a("s_waitcnt lgkmcnt(0)")
        a("v_readfirstlane_b32 %s, %s" % (scache, vtmp))
        budget_loop(lp)
        a(ok + ":")
    def wait_min4(scache, vaddr, vt, thr, off=0, sleep=0, cmp="s_cmp_gt_u32"):
        lp = lab("pm"); ok = lab("ok")
        a(lp + ":")
        a("%s %s, %s" % (cmp, scache, thr))
        a("s_cbranch_scc1 " + ok)
        if sleep: a("s_sleep %d" % sleep)
        a("ds_read_b128 v[%d:%d], %s offset:%d" % (vt, vt + 3, vaddr, off))
        a("s_waitcnt lgkmcnt(0)")
        a("v_min3_u32 v%d, v%d, v%d, v%d" % (vt, vt, vt + 1, vt + 2))
        a("v_min_u32 v%d, v%d, v%d" % (vt, vt, vt + 3))
        a("s_nop 0")
        a("v_readfirstlane_b32 %s, v%d" % (scache, vt))
        budget_loop(lp)
        a(ok + ":")
    VT = 56
    def poll_valid(loads, check, sleep=1, first=True, mask0=None):
        if "nopoll" in dbg: return
        if first:
            if mask0: a("s_mov_b64 exec, %s" % mask0)
            loads()
        lp = lab("pv"); ok = lab("ok")
        a(lp + ":")
        a("s_mov_b64 exec, -1")
        a("s_waitcnt vmcnt(0)")
        check()
        a("s_and_b64 exec, vcc, vcc")
        a("s_cbranch_scc0 " + ok)
        if sleep: a("s_sleep %d" % sleep)
        loads()
        budget_loop(lp)
        a(ok + ":")
        a("s_mov_b64 exec, -1")
        a("s_waitcnt vmcnt(0)")
    def tagcheck(base, n, dst, vtmp):
        def f():
            for i in range(n): a("v_xor_b32 v%d, v%d, v%d" % (dst + i, base + i, VT + (i & 3)))
            h = n // 2
            for c in range(2):
                r = list(range(dst + c * h, dst + (c + 1) * h))
                a("v_or3_b32 v%d, v%d, v%d, v%d" % (vtmp + c, r[0], r[1], r[2])); r = r[3:]
                while len(r) >= 2:
                    a("v_or3_b32 v%d, v%d, v%d, v%d" % (vtmp + c, vtmp + c, r[0], r[1])); r = r[2:]
                if r: a("v_or_b32 v%d, v%d, v%d" % (vtmp + c, vtmp + c, r[0]))
            a("v_bitop3_b32 v%d, v%d, v%d, s60 bitop3:0xa8" % (vtmp, vtmp, vtmp + 1))
            a("v_cmp_ne_u32 vcc, 0, v%d" % vtmp)
        return f
    def tag4(d, s=None):
        s = d if s is None else s
        for r in range(4): a("v_bfi_b32 v%d, s60, v%d, v%d" % (d + r, VT + r, s + r))
    def epoch_load():
        a("s_add_u32 s62, s28, 0x%x" % (W_EP + wsoff if epoff is None else epoff)); a("s_addc_u32 s63, s29, 0")
        if wsoff: a("s_add_u32 s28, s28, 0x%x" % wsoff); a("s_addc_u32 s29, s29, 0")
        if epsc: a("s_load_dwordx2 s[90:91], s[62:63], 0")
        else:
            a("v_mov_b32 v60, 0")
            a("global_load_dwordx2 v[60:61], v60, s[62:63] sc1")
    def epoch_tags():
        if epsc:
            a("s_waitcnt lgkmcnt(0)")
            a("v_mov_b32 v60, s90"); a("v_mov_b32 v61, s91")
        a("s_mov_b32 s60, 0x9e3779b1"); a("v_mul_lo_u32 v62, v60, s60")
        a("s_mov_b32 s60, 0x85ebca6b"); a("v_xor_b32 v63, v61, v62"); a("v_mul_lo_u32 v63, v63, s60")
        a("s_movk_i32 s60, 0x7ff")
        a("v_and_b32 v56, s60, v62")
        a("v_bfe_u32 v57, v62, 11, 10"); a("v_lshlrev_b32 v57, 1, v57")
        a("v_and_b32 v58, 1, v62"); a("v_xor_b32 v58, 1, v58"); a("v_or_b32 v57, v57, v58")
        a("v_lshrrev_b32 v58, 21, v62"); a("v_lshrrev_b32 v59, 21, v63")
    def bfly(op, v, vt, bits):
        for b in bits:
            if b <= 3:
                a("s_nop 1")
                a("%s_dpp v%d, v%d, v%d row_ror:%d row_mask:0xf bank_mask:0xf" % (op, v, v, v, 1 << b))
            else:
                a("v_mov_b32 v%d, v%d" % (vt, v))
                a("s_nop 1")
                a("v_permlane%d_swap_b32 v%d, v%d" % (1 << b, v, vt))
                a("%s v%d, v%d, v%d" % (op, v, v, vt))
    def bfly4(op, v, vt, bits):
        for b in bits:
            if b <= 3:
                for r in range(4):
                    a("%s_dpp v%d, v%d, v%d row_ror:%d row_mask:0xf bank_mask:0xf" % (op, v + r, v + r, v + r, 1 << b))
            else:
                for r in range(4): a("v_mov_b32 v%d, v%d" % (vt + r, v + r))
                for r in range(4): a("v_permlane%d_swap_b32 v%d, v%d" % (1 << b, v + r, vt + r))
                for r in range(4): a("%s v%d, v%d, v%d" % (op, v + r, v + r, vt + r))

    a("s_cmp_ge_u32 s2, 256")
    a("s_cbranch_scc1 L_end")
    a("s_load_dwordx16 s[4:19], s[0:1], 0")
    a("s_load_dwordx8 s[20:27], s[0:1], 64")
    a("s_load_dwordx2 s[28:29], s[0:1], 96")
    a("v_lshrrev_b32 v1, 6, v0")
    a("v_and_b32 v0, 63, v0")
    a("v_readfirstlane_b32 s30, v1")
    a("s_mov_b32 %s, %d" % (sB, budget))
    if diag: a("s_mov_b32 s94, 0")
    if stamps:
        a("v_mov_b32 v%d, 0" % VST); stamp(0)
    a("s_xor_b32 s3, s2, %d" % qx)
    a("v_lshrrev_b32 v1, 4, v0")
    a("v_and_b32 v2, 15, v0")
    a("s_cmp_lg_u32 s30, 0")
    a("s_cbranch_scc1 L_notloader")

    a("s_setprio 3")
    vA = list(range(4, 12))
    vK = [12, 13, 14, 15]; vV = [16, 17]; vWO = 18
    a("v_lshrrev_b32 v20, 3, v0"); a("v_and_b32 v21, 7, v0"); a("v_and_b32 v22, 1, v1")
    a("v_lshlrev_b32 v20, 13, v20"); a("v_lshlrev_b32 v22, 1, v22")
    a("v_xor_b32 v21, v21, v22")
    a("v_lshl_add_u32 v4, v21, 4, v20")
    a("v_xor_b32 v5, 64, v4")
    a("s_and_b32 s56, s3, 1"); a("s_lshl_b32 s56, s56, 22")
    a("s_bfe_u32 s57, s3, 0x60001"); a("s_lshl_b32 s57, s57, 7"); a("s_add_u32 s56, s56, s57")
    a("s_mov_b32 s34, 0x800000"); a("s_mov_b32 s35, 0x20000")
    a("s_mov_b32 s40, 0"); a("s_mov_b32 s41, 0")
    a("v_lshlrev_b32 v24, 2, v0"); a("v_add_u32 v24, %d, v24" % L_LANDED)
    a("v_mov_b32 v25, 0")
    a("s_cmp_lt_u32 s2, 128")
    a("s_waitcnt lgkmcnt(0)")
    a("s_cselect_b32 s32, s10, s20"); a("s_cselect_b32 s33, s11, s21")
    a("s_and_b32 s33, s33, 0xffff")
    stamp(21)
    def signal(w, j):
        js = (w - 1) % 8 or 8
        if j == js:
            d = (w - 1 - js) // 8
            if d: a("s_sub_i32 s42, s40, %d" % d); a("s_max_i32 s42, s42, 0"); a("v_mov_b32 v25, s42")
            else: a("v_mov_b32 v25, s40")
            a("ds_write_b32 v24, v25")
    def wq_tile(w, waits=True):
        for i in range(8):
            if i % 4 == 0: a("s_add_u32 m0, s41, %d" % (i * 1024)); a("s_nop 0")
            a("buffer_load_dwordx4 v%d, s[32:35], s56 offen offset:%d %s lds" % (vA[i & 1], (i % 4) * 1024, ldpol))
            a("s_add_u32 s56, s56, %d" % (64512 + (4096 if i % 4 == 3 else 0)))
            if waits:
                a("s_waitcnt vmcnt(%d)" % (w - 1)); signal(w, i + 1)
        a("s_add_u32 s40, s40, 1"); a("s_add_u32 s41, s41, 8192")
    assert win0 >= 8 * burst
    a("L_wq0:")
    wq_tile(win0, waits=False)
    a("s_cmp_lt_u32 s40, %d" % burst); a("s_cbranch_scc1 L_wq0")
    a("ds_write_b32 v24, v25")
    a("s_waitcnt lgkmcnt(0)")
    stamp(22)
    a("s_barrier")
    stamp(1)
    for i in range(4):
        a("v_add_u32 v20, %d, v1" % (4 * i)); a("v_xor_b32 v20, v20, v2"); a("v_lshlrev_b32 v20, 4, v20")
        a("v_lshl_add_u32 v%d, v1, 8, v20" % vK[i])
    for i in range(2):
        a("v_add_u32 v20, %d, v1" % (4 * i)); a("v_lshlrev_b32 v20, 1, v20"); a("v_xor_b32 v20, v20, v2")
        a("v_lshlrev_b32 v20, 4, v20"); a("v_lshl_add_u32 v%d, v1, 8, v20" % vV[i])
    a("v_lshlrev_b32 v18, 4, v0")
    a("v_mov_b32 v26, %d" % L_FREE); a("v_mov_b32 v19, %d" % L_LVL)
    a("s_cmp_lt_u32 s2, 128")
    a("s_cselect_b32 s52, s12, s22"); a("s_cselect_b32 s53, s13, s23")
    role()
    a("s_lshl_b32 s57, s2, 18")
    a("s_lshl_b32 s58, s93, 23"); a("s_bfe_u32 s59, s2, 0x20003"); a("s_lshl_b32 s55, s59, 18"); a("s_add_u32 s54, s58, s55")
    a("s_add_u32 s54, s54, %d" % ((32768 - 4096) * 256))
    a("s_lshl_b32 s55, s55, 3"); a("s_add_u32 s55, s55, s58"); a("s_lshl_b32 s58, s93, 18"); a("s_add_u32 s55, s55, s58")
    a("s_and_b32 s58, s2, 7"); a("s_lshl_b32 s58, s58, 15"); a("s_add_u32 s55, s55, s58")
    a("s_cmp_eq_u32 s92, 1")
    a("s_cselect_b32 s48, s16, s6"); a("s_cselect_b32 s49, s17, s7")
    a("s_cselect_b32 s50, s18, s8"); a("s_cselect_b32 s51, s19, s9")
    a("s_cselect_b32 s54, s54, s57")
    a("s_and_b32 s59, s2, 127"); a("s_lshl_b32 s59, s59, 16")
    a("s_mov_b32 s61, 0")
    a("L_wq1:")
    wq_tile(win0)
    a("s_cmp_lt_u32 s40, 8"); a("s_cbranch_scc1 L_wq1")
    def tile_loop(name, w, redispatch=False):
        a(name + ":")
        if "nofree" not in dbg:
            a("s_sub_i32 s42, s40, %d" % NSLOT)
            wait_min4("s61", "v26", 28, "s42", cmp="s_cmp_gt_i32")
        for h in range(2):
            if h == 0: a("s_mov_b32 m0, s41"); a("s_add_u32 s45, s56, 4096")
            else: a("s_add_u32 m0, s41, 4096"); a("s_nop 0")
            for i in range(4):
                a("buffer_load_dwordx4 v%d, s[32:35], %s offen offset:%d %s lds" % (vA[4 * h + i], "s45" if h else "s56", i * 1024, ldpol))
                a("s_waitcnt vmcnt(%d)" % (w - 1)); signal(w, 4 * h + i + 1)
        for i in range(8): a("v_xor_b32 v%d, s44, v%d" % (vA[i], vA[i]))
        a("s_add_u32 s56, s56, 8192")
        a("s_add_u32 s41, s41, 8192"); a("s_and_b32 s41, s41, %d" % (NSLOT * 8192 - 1))
        a("s_add_u32 s40, s40, 1")
        a("s_cmp_lt_u32 s40, s43")
        if redispatch:
            a("s_cbranch_scc0 L_ret")
            a("s_and_b32 s42, s40, %d" % (redisp - 1))
            a("s_cbranch_scc1 " + name)
            a("s_branch L_tile")
        else:
            a("s_cbranch_scc1 " + name)
            a("s_setpc_b64 s[46:47]")
    def seg_setup(name):
        lo, sreg, base, size = {"kbig": (48, 54, 0, 64 << 20), "ksm": (6, 55, 0, 64 << 20), "vbig": (50, 54, 0, 64 << 20), "vsm": (8, 55, 0, 64 << 20),
                                "woE": (52, 59, 0, 8 << 20), "woL": (52, 59, 32768, 8 << 20)}[name]
        a("s_mov_b32 s32, s%d" % lo); a("s_and_b32 s33, s%d, 0xffff" % (lo + 1)); a("s_mov_b32 s34, 0x%x" % size)
        a("s_add_u32 s56, s%d, %d" % (sreg, base))
        if name in ("kbig", "vbig", "woE", "woL"):
            for i in range(8):
                if name[0] == "k": a("v_mov_b32 v%d, v%d" % (vA[i], vK[i & 3]))
                elif name[0] == "v": a("v_mov_b32 v%d, v%d" % (vA[i], vV[i & 1]))
                else: a("v_xor_b32 v%d, %d, v18" % (vA[i], 32 * (i >> 1)))
            a("s_mov_b32 s44, %d" % (128 if name[0] == "w" else 0))
    stampat = {"kbig": 3, "ksm": 4, "vbig": 5, "vsm": 6}
    for name, cnt in segs[1:]:
        if name in stampat: stamp(stampat[name])
        seg_setup(name)
        end = T0[name] + cnt
        cut = NT - tailT
        if vst and name == "vbig":
            for q in range(1, 4):
                if T0[name] + 8 * q <= cut:
                    a("s_mov_b32 s43, %d" % (T0[name] + 8 * q)); a("s_call_b64 s[46:47], L_tile"); stamp(8 + q)
        if tailT and T0[name] < cut < end:
            a("s_mov_b32 s43, %d" % cut); a("s_call_b64 s[46:47], L_tile")
            a("s_mov_b32 s43, %d" % end); a("s_call_b64 s[46:47], L_tileT")
        else:
            a("s_mov_b32 s43, %d" % end)
            a("s_call_b64 s[46:47], %s" % ("L_tileT" if (tailT and T0[name] >= cut) else "L_tile"))
        if name == "vsm": stamp(7)
    wl = winT if tailT else (max(levels) if levels else win)
    done = (8 * NT - (wl - 1)) // 8
    while done < NT:
        done += 1
        a("s_waitcnt vmcnt(%d)" % (8 * (NT - done)))
        a("v_mov_b32 v25, %d" % done); a("ds_write_b32 v24, v25")
    a("s_waitcnt lgkmcnt(0)")
    stamp(8)
    diag_end(0)
    stamp_flush()
    a("s_endpgm")
    if levels:
        a("L_tile:")
        a("ds_read_b32 v27, v19")
        a("s_waitcnt lgkmcnt(0)")
        a("v_readfirstlane_b32 s42, v27")
        for k in range(1, len(levels)):
            a("s_cmp_eq_u32 s42, %d" % k); a("s_cbranch_scc1 L_tile_%d" % k)
        for k, w in enumerate(levels): tile_loop("L_tile_%d" % k, w, True)
        a("L_ret:")
        a("s_setpc_b64 s[46:47]")
    else:
        tile_loop("L_tile", win)
    if tailT: tile_loop("L_tileT", winT)

    a("L_notloader:")
    a("s_cmp_gt_u32 s30, 1")
    a("s_cbranch_scc1 L_cons")
    a("v_lshlrev_b32 v24, 2, v0"); a("v_add_u32 v24, %d, v24" % L_HST)
    a("v_mov_b32 v25, 0"); a("ds_write_b32 v24, v25")
    a("v_mov_b32 v25, %d" % lvl0); a("ds_write_b32 v24, v25 offset:%d" % (L_LVL - L_HST))
    a("s_waitcnt lgkmcnt(0)")
    epoch_load()
    a("s_barrier")
    a("s_mov_b32 s41, 0"); a("v_mov_b32 v26, %d" % L_STAGE)
    a("s_mov_b32 s42, 0"); a("v_mov_b32 v27, %d" % L_LANDED)
    a("s_lshl_b32 s32, s2, 8")
    a("s_add_u32 s33, s32, 0x%x" % W_ML); a("s_add_u32 s38, s28, s33"); a("s_addc_u32 s39, s29, 0")
    a("s_bfe_u32 s32, s2, 0x20005"); a("s_lshl_b32 s32, s32, 13")
    a("s_bfe_u32 s33, s2, 0x30002")
    a("s_lshr_b32 s34, s2, 7"); a("s_lshl_b32 s34, s34, 3"); a("s_add_u32 s33, s33, s34"); a("s_lshl_b32 s33, s33, 4")
    a("s_add_u32 s32, s32, s33"); a("s_add_u32 s32, s32, 0x%x" % W_ML)
    a("s_add_u32 s34, s28, s32"); a("s_addc_u32 s35, s29, 0")
    a("v_lshrrev_b32 v12, 5, v0"); a("v_lshlrev_b32 v12, 15, v12")
    a("v_and_b32 v16, 31, v0"); a("v_lshl_add_u32 v12, v16, 8, v12")
    a("v_and_b32 v13, 7, v0"); a("v_lshlrev_b32 v13, 2, v13"); a("v_add_u32 v13, %d, v13" % L_MX)
    a("v_lshlrev_b32 v11, 4, v2")
    role()
    a("s_bfe_u32 s32, s2, 0x20005")
    a("s_lshl_b32 s44, 0x01010101, s32"); a("s_lshl_b32 s45, s44, 4")
    a("s_cmp_lt_u32 s2, 128")
    a("s_cselect_b32 s44, -1, s44"); a("s_cselect_b32 s45, -1, s45")
    a("s_cmp_eq_u32 s92, 1")
    a("s_cselect_b32 s48, 0xff, 0"); a("s_mov_b32 s49, 0")
    a("s_cselect_b32 s50, 0xff00, 0"); a("s_mov_b32 s51, 0")
    a("s_or_b32 s46, s50, 0xff"); a("s_mov_b32 s47, 0")
    a("s_waitcnt vmcnt(0)")
    epoch_tags()
    a("v_mov_b32 v14, 0xff800000"); a("v_mov_b32 v15, 0"); a("v_mov_b32 v16, v62"); a("v_mov_b32 v17, v63")
    cpl = list(cps or [])
    if cpl:
        offs = [(9 + 33 * k + (16 if k >= 8 else 0)) & 255 for k in range(nsamp)]
        for k, d in enumerate(offs):
            a("s_add_u32 s%d, s2, %d" % (64 + k, d)); a("s_and_b32 s%d, s%d, 255" % (64 + k, 64 + k)); a("s_lshl_b32 s%d, s%d, 7" % (64 + k, 64 + k))
        a("s_add_u32 s52, s28, 0x%x" % W_PB); a("s_addc_u32 s53, s29, 0")
        a("s_lshl_b32 s32, s2, 7"); a("v_mov_b32 v20, s32")
        a("v_readfirstlane_b32 s54, v62")
        a("v_lshl_add_u32 v21, v0, 4, v20")
        for r in range(4): a("v_mov_b32 v%d, v62" % (64 + r))
    def checkpoints(upto):
        while cpl and cpl[0] <= upto:
            c = cpl.pop(0)
            wait_word("s42", "v27", "v28", str(c - 1), sleep=4)
            if "fullpb" in dbg:
                a("s_mov_b64 exec, 0xff")
                a("global_store_dwordx4 v21, v[64:67], s[52:53] sc1")
            elif "nopbst" not in dbg:
                a("s_mov_b64 exec, 1")
                a("global_store_dword v20, v62, s[52:53] sc1")
            a("s_mov_b64 exec, -1")
            if "nopbld" not in dbg:
                for k in range(0, nsamp): a("s_load_dword s%d, s[52:53], s%d" % (4 + k, 64 + k))
            a("s_mov_b32 s55, 0")
            a("s_waitcnt lgkmcnt(0)")
            for k in range(0, nsamp):
                a("s_cmp_eq_u32 s%d, s54" % (4 + k)); a("s_addc_u32 s55, s55, 0")
            a("s_mov_b32 s56, 0")
            for tv in thr:
                a("s_cmp_ge_u32 s55, %d" % tv); a("s_addc_u32 s56, s56, 0")
            a("v_mov_b32 v25, s56"); a("ds_write_b32 v24, v25 offset:%d" % (L_LVL - L_HST))
            if stamps: a("v_writelane_b32 v%d, s55, %d" % (VST, 32 + len(cpl)))
            a("s_add_u32 s52, s52, 0x8000"); a("s_addc_u32 s53, s53, 0")
    checkpoints(T0["ksm"] + 4)
    wait_min4("s41", "v26", 28, "2", sleep=8)
    for w in range(4):
        a("ds_read_b32 v%d, v13 offset:%d" % (32 + w, 64 * w))
        a("ds_read_b32 v%d, v13 offset:%d" % (36 + w, 64 * w + 32))
        a("ds_read_b32 v%d, v13 offset:%d" % (40 + w, L_LW - L_MX + 64 * w))
        a("ds_read_b32 v%d, v13 offset:%d" % (44 + w, L_LW - L_MX + 64 * w + 32))
    a("s_waitcnt lgkmcnt(0)")
    a("v_max3_f32 v32, v32, v33, v34"); a("v_max_f32 v32, v32, v35")
    a("v_max3_f32 v36, v36, v37, v38"); a("v_max_f32 v36, v36, v39")
    a("v_add_f32 v40, v40, v41"); a("v_add_f32 v42, v42, v43"); a("v_add_f32 v40, v40, v42")
    a("v_add_f32 v44, v44, v45"); a("v_add_f32 v46, v46, v47"); a("v_add_f32 v44, v44, v46")
    a("v_max_f32 v60, v32, v36"); a("v_add_f32 v61, v40, v44")
    a("v_cndmask_b32 v60, v60, v36, s[48:49]"); a("v_cndmask_b32 v61, v61, v44, s[48:49]")
    a("v_cndmask_b32 v60, v60, v32, s[50:51]"); a("v_cndmask_b32 v61, v61, v40, s[50:51]")
    a("s_mov_b64 exec, s[46:47]")
    a("global_store_dwordx4 v11, v[60:63], s[38:39] sc1")
    a("s_mov_b64 exec, -1")
    stamp(4)
    checkpoints(T0["vbig"] + ml_at)
    if ml_at: wait_word("s42", "v27", "v28", str(T0["vbig"] + ml_at), sleep=8)
    def mlcheck():
        a("v_xor_b32 v18, v16, v62"); a("v_bitop3_b32 v18, v17, v63, v18 bitop3:0xbe")
        a("v_cmp_ne_u32 vcc, 0, v18")
    poll_valid(lambda: a("global_load_dwordx4 v[14:17], v12, s[34:35] sc1"), mlcheck, sleep=mlsleep, mask0="s[44:45]")
    a("v_mov_b32 v17, v14")
    bfly("v_max_f32", 17, 18, [0, 1, 2, 3, 4])
    a("v_sub_f32 v14, v14, v17"); a("v_exp_f32 v14, v14"); a("s_nop 0")
    a("v_mul_f32 v15, v15, v14")
    bfly("v_add_f32", 15, 18, [0, 1, 2, 3, 4])
    a("v_rcp_f32 v15, v15"); a("s_nop 0"); a("v_mul_f32 v14, v14, v15")
    a("v_lshlrev_b32 v13, 2, v0")
    a("v_add_u32 v13, %d, v13" % L_F)
    a("ds_write_b32 v13, v14")
    a("v_mov_b32 v25, 1"); a("ds_write_b32 v24, v25")
    checkpoints(NT)
    a("s_waitcnt lgkmcnt(0)")
    stamp(5)
    diag_end(1)
    stamp_flush()
    a("s_endpgm")

    a("L_cons:")
    sL = "s33"; sHS = "s34"; sST = "s35"
    a("s_sub_u32 s32, s30, 2")
    a("s_mov_b32 s33, 0"); a("s_mov_b32 s34, 0"); a("s_mov_b32 s35, 0")
    a("s_lshl_b32 s38, s32, 2")
    a("v_lshl_add_u32 v4, v0, 4, s38")
    a("v_add_u32 v5, %d, v4" % L_STAGE); a("v_add_u32 v4, %d, v4" % L_FREE)
    a("v_mov_b32 v6, %d" % L_LANDED); a("v_mov_b32 v7, %d" % L_HST); a("v_mov_b32 v12, %d" % L_STAGE)
    a("v_mov_b32 v8, 0")
    a("ds_write_b32 v4, v8"); a("ds_write_b32 v5, v8")
    a("v_bfe_u32 v13, v0, 2, 2"); a("v_and_b32 v14, 3, v0")
    VX = 64
    a("v_and_b32 v15, 1, v0"); a("v_lshlrev_b32 v15, 11, v15"); a("v_lshl_add_u32 v15, v1, 4, v15")
    a("s_waitcnt lgkmcnt(0)")
    a("s_barrier")
    a("s_cmp_lt_u32 s2, 128")
    a("s_cselect_b32 s40, s4, s14"); a("s_cselect_b32 s41, s5, s15")
    a("s_and_b32 s38, s3, 1"); a("s_lshl_b32 s38, s38, 10")
    a("s_add_u32 s40, s40, s38"); a("s_addc_u32 s41, s41, 0")
    for s in range(16):
        a("global_load_dwordx4 v[%d:%d], v15, s[40:41] offset:%d" % (VX + 4 * s, VX + 4 * s + 3, 64 * s))
    epoch_load()
    if "nocons" in dbg:
        a("s_waitcnt vmcnt(0)")
        a("s_endpgm")
    def set_free(val):
        a("v_mov_b32 v8, %s" % val); a("ds_write_b32 v4, v8")
    def set_stage(val):
        a("v_mov_b32 v8, %d" % val); a("ds_write_b32 v5, v8")
    a("v_lshl_add_u32 v16, v1, 3, v13"); a("v_lshlrev_b32 v16, 7, v16")
    a("v_lshrrev_b32 v17, 1, v13"); a("v_and_b32 v18, 1, v1"); a("v_lshl_or_b32 v17, v18, 1, v17")
    a("v_lshlrev_b32 v17, 1, v17")
    a("v_lshrrev_b32 v18, 1, v14"); a("s_lshl_b32 s38, s32, 1"); a("v_add_u32 v18, s38, v18")
    a("v_xor_b32 v17, v17, v18"); a("v_lshl_add_u32 v16, v17, 4, v16")
    a("v_and_b32 v18, 1, v14"); a("v_lshl_add_u32 v16, v18, 3, v16")
    vKa = list(range(20, 28))
    a("v_lshrrev_b32 v17, 1, v1"); a("v_lshl_add_u32 v17, v17, 4, v2"); a("v_lshlrev_b32 v17, 8, v17")
    a("s_lshl_b32 s38, s32, 13"); a("v_add_u32 v17, s38, v17")
    a("v_and_b32 v18, 1, v1"); a("v_xor_b32 v18, v18, v2"); a("v_lshl_add_u32 v20, v18, 4, v17")
    for s in range(1, 8): a("v_xor_b32 v%d, %d, v20" % (vKa[s], 32 * s))
    a("v_lshl_add_u32 v17, v1, 2, v13")
    a("v_and_b32 v18, 7, v17"); a("v_lshlrev_b32 v18, 1, v18")
    a("v_lshrrev_b32 v19, 1, v14")
    a("v_xor_b32 v30, v18, v19")
    a("v_and_b32 v31, 1, v14"); a("v_lshlrev_b32 v31, 3, v31")
    a("v_lshl_add_u32 v30, v30, 4, v31")
    a("s_lshl_b32 s38, s32, 6")
    a("v_xor_b32 v28, s38, v30"); a("v_lshl_add_u32 v28, v17, 8, v28")
    a("v_xor_b32 v29, 32, v28")
    vWOa = list(range(40, 48))
    a("s_lshl_b32 s38, s32, 9")
    a("v_lshl_add_u32 v40, v17, 11, v30"); a("v_add_u32 v40, s38, v40")
    for t in range(1, 8): a("v_xor_b32 v%d, %d, v40" % (vWOa[t], 32 * t))
    a("v_and_b32 v17, 7, v0"); a("v_lshl_add_u32 v17, v1, 3, v17"); a("v_lshlrev_b32 v17, 4, v17")
    a("v_add_u32 v33, %d, v17" % PBASE)
    a("v_bfe_u32 v18, v0, 3, 1"); a("v_lshl_add_u32 v32, v18, 3, v33")
    a("s_lshl_b32 s38, s32, 9"); a("v_add_u32 v32, s38, v32")
    gl = lambda d, off: (a("s_add_u32 s%d, s28, %s" % (d, off)), a("s_addc_u32 s%d, s29, 0" % (d + 1)))
    a("s_lshr_b32 s38, s2, 7"); a("s_lshl_b32 s38, s38, 16")
    a("s_and_b32 s39, s3, 1"); a("s_lshl_b32 s39, s39, 14"); a("s_add_u32 s38, s38, s39")
    a("s_bfe_u32 s39, s3, 0x60001"); a("s_lshl_b32 s39, s39, 8"); a("s_add_u32 s38, s38, s39")
    a("s_lshl_b32 s39, s32, 6"); a("s_add_u32 s38, s38, s39")
    gl(40, "s38")
    a("v_and_b32 v34, 1, v0"); a("v_lshlrev_b32 v34, 15, v34"); a("v_lshl_add_u32 v34, v1, 4, v34")
    role()
    a("s_lshr_b32 s39, s2, 7"); a("s_lshl_b32 s38, s39, 15")
    a("s_bfe_u32 s39, s2, 0x20005"); a("s_lshl_b32 s39, s39, 12"); a("s_add_u32 s38, s38, s39")
    a("s_lshl_b32 s39, s32, 10"); a("s_add_u32 s38, s38, s39")
    gl(44, "s38")
    a("s_lshl_b32 s39, s92, 16"); a("s_add_u32 s38, s38, s39")
    gl(42, "s38")
    a("v_lshlrev_b32 v48, 4, v0"); a("v_add_u32 v36, 16384, v48")
    a("s_lshl_b32 s38, s32, 9"); a("s_add_u32 s38, s38, %d" % QBASE)
    a("v_lshl_add_u32 v37, v0, 3, s38")
    a("v_and_b32 v17, 7, v0"); a("v_lshlrev_b32 v17, 8, v17"); a("v_and_b32 v18, 1, v1"); a("v_lshl_add_u32 v17, v18, 4, v17")
    a("v_add_u32 v35, %d, v17" % QBASE)
    a("s_lshl_b32 s39, s92, 11"); a("v_add_u32 v38, s39, v35")
    a("s_waitcnt vmcnt(0)")
    epoch_tags()
    VF = 128
    VS = 160
    VQA = 200
    VWE = 216
    for u in range(8):
        wait_word(sL, "v6", "v8", str(u), sleep=psleep)
        for s in range(2):
            for h in range(2):
                a("ds_read_b64_tr_b16 v[%d:%d], v16 offset:%d" % (VF + 4 * s + 2 * h, VF + 4 * s + 2 * h + 1, u * 8192 + s * 4096 + h * 512))
        a("s_waitcnt lgkmcnt(0)")
        for s in range(2):
            c = "0" if (u == 0 and s == 0) else "v[%d:%d]" % (VQA, VQA + 3)
            x = VX + 4 * (2 * u + s)
            a("v_mfma_f32_16x16x32_bf16 v[%d:%d], v[%d:%d], v[%d:%d], %s" % (VQA, VQA + 3, VF + 4 * s, VF + 4 * s + 3, x, x + 3, c))
        if u < 7 or wo_early == 2: set_free(str(u + 1))
        else:
            a("s_add_u32 s36, s32, %d" % T0["kbig"]); set_free("s36")
    stamp(1)
    a("s_mov_b32 exec_lo, 0x00030003"); a("s_mov_b32 exec_hi, 0x00030003")
    a("s_nop 3")
    tag4(VQA)
    a("global_store_dwordx4 v34, v[%d:%d], s[40:41] sc1" % (VQA, VQA + 3))
    a("s_mov_b64 exec, -1")
    stamp(2)
    VO = 204
    VW = 64
    def wo_reads(name, dst):
        T = T0[name]
        wait_word(sL, "v6", "v8", str(T + 3))
        base = (T % NSLOT) * 8192
        if base >= 65536:
            for t in range(8): a("v_add_u32 v%d, 0x10000, v%d" % (vWOa[t], vWOa[t]))
        for t in range(16):
            d = dst(t)
            a("ds_read_b64_tr_b16 v[%d:%d], v%d offset:%d" % (d, d + 1, vWOa[t & 7], base % 65536 + (t >> 3) * 256))
        if base >= 65536:
            for t in range(8): a("v_subrev_u32 v%d, 0x10000, v%d" % (vWOa[t], vWOa[t]))
    VQ = 64
    for r in range(64): a("v_mov_b32 v%d, 0" % (VQ + r))
    if wo_early == 2:
        wo_reads("woE", lambda t: VWE + 2 * t)
        a("s_add_u32 s36, s32, %d" % T0["kbig"])
        a("s_waitcnt lgkmcnt(0)")
        set_free("s36")
    for r in range(8): a("v_mov_b32 v%d, v%d" % (VF + 8 + r, VT + (r & 3)))
    def qloads():
        for kh in range(2):
            a("global_load_dwordx4 v[%d:%d], v%d, s[42:43] sc1" % (VF + 4 * kh, VF + 4 * kh + 3, (48, 36)[kh]))
        sk = lab("qs")
        a("s_cmp_eq_u32 s92, 0"); a("s_cbranch_scc1 " + sk)
        for kh in range(2):
            a("global_load_dwordx4 v[%d:%d], v%d, s[44:45] sc1" % (VF + 8 + 4 * kh, VF + 8 + 4 * kh + 3, (48, 36)[kh]))
        a(sk + ":")
    if qg_at: wait_word(sL, "v6", "v8", str(qg_at - 1), sleep=psleep)
    stamp(14)
    poll_valid(qloads, tagcheck(VF, 16, VF + 16, 8), sleep=qsleep)
    stamp(3)
    for r in range(4): a("v_add_f32 v%d, v%d, v%d" % (VF + r, VF + 16 + r, VF + 20 + r))
    for r in range(4): a("v_add_f32 v%d, v%d, v%d" % (VF + 4 + r, VF + 24 + r, VF + 28 + r))
    for r in range(4): a("v_cvt_pk_bf16_f32 v%d, v%d, v%d" % (VF + 16 + r, VF + 2 * r, VF + 2 * r + 1))
    a("ds_write_b64 v37, v[%d:%d]" % (VF + 16, VF + 17)); a("ds_write_b64 v37, v[%d:%d] offset:2048" % (VF + 18, VF + 19))
    set_stage(1)
    wait_min4(sST, "v12", 8, "0")
    a("s_mov_b32 exec_lo, 0x00ff00ff"); a("s_mov_b32 exec_hi, 0xff00ff00")
    for part in range(2):
        for s in range(8):
            d = VQ + 32 * part + 4 * s
            a("ds_read_b128 v[%d:%d], v%d offset:%d" % (d, d + 3, (35, 38)[part], 32 * s))
    a("s_mov_b64 exec, -1")
    stamp(4)
    hi = [False]
    def ktile(Tbase, q, sdst, nxt):
        a("s_add_u32 s36, s32, %d" % Tbase)
        wait_word(sL, "v6", "v8", "s36", sleep=psleep)
        sl = Tbase % NSLOT
        want_hi = sl >= 8
        if want_hi != hi[0]:
            for s in range(8): a("v_xor_b32 v%d, 0x10000, v%d" % (vKa[s], vKa[s]))
            hi[0] = want_hi
        for s in range(8):
            a("ds_read_b128 v[%d:%d], v%d offset:%d" % (VF + 4 * s, VF + 4 * s + 3, vKa[s], (sl % 8) * 8192))
        if nxt is None: a("s_add_u32 s36, s36, 4")
        else: a("s_mov_b32 s36, %d" % nxt)
        a("v_mov_b32 v8, s36")
        for s in range(8):
            a("s_waitcnt lgkmcnt(%d)" % (7 - s))
            if s == 7: a("ds_write_b32 v4, v8")
            c = "0" if s == 0 else "v[%d:%d]" % (sdst, sdst + 3)
            a("v_mfma_f32_16x16x32_bf16 v[%d:%d], v[%d:%d], v[%d:%d], %s" % (sdst, sdst + 3, VF + 4 * s, VF + 4 * s + 3, q + 4 * s, q + 4 * s + 3, c))
    assert T0["ksm"] == T0["kbig"] + 32
    for i in range(8):
        ktile(T0["kbig"] + 4 * i, VQ, VS + 4 * i, None)
    ktile(T0["ksm"], VQ + 32, VS + 32, T0["ksm"] + 4)
    stamp(5)
    a("s_mov_b32 s38, 0x%x" % f2u(CSCALE))
    a("v_max_f32 v35, v%d, v%d" % (VS, VS + 1))
    for r in range(2, 32, 2): a("v_max3_f32 v35, v35, v%d, v%d" % (VS + r, VS + r + 1))
    a("v_max3_f32 v34, v%d, v%d, v%d" % (VS + 32, VS + 33, VS + 34)); a("v_max_f32 v34, v34, v%d" % (VS + 35))
    bfly("v_max_f32", 34, 36, [3, 4, 5]); bfly("v_max_f32", 35, 36, [3, 4, 5])
    a("v_mul_f32 v34, s38, v34"); a("v_mul_f32 v35, s38, v35")
    a("v_and_b32 v17, 7, v0"); a("v_lshlrev_b32 v17, 2, v17")
    a("v_add_u32 v18, %d, v17" % L_MX)
    a("s_lshl_b32 s39, s32, 6"); a("v_add_u32 v17, s39, v18")
    a("ds_write_b32 v17, v35"); a("ds_write_b32 v17, v34 offset:32")
    set_stage(2)
    if wo_early == 2:
        for t in range(16):
            a("v_mov_b32 v%d, v%d" % (VW + 4 * t, VWE + 2 * t)); a("v_mov_b32 v%d, v%d" % (VW + 4 * t + 1, VWE + 2 * t + 1))
    wait_min4(sST, "v12", 8, "1")
    for w in range(4):
        a("ds_read_b32 v%d, v18 offset:%d" % (VF + w, 64 * w)); a("ds_read_b32 v%d, v18 offset:%d" % (VF + 4 + w, 64 * w + 32))
    a("s_waitcnt lgkmcnt(0)")
    a("v_max3_f32 v35, v%d, v%d, v%d" % (VF, VF + 1, VF + 2)); a("v_max_f32 v35, v35, v%d" % (VF + 3))
    a("v_max3_f32 v34, v%d, v%d, v%d" % (VF + 4, VF + 5, VF + 6)); a("v_max_f32 v34, v34, v%d" % (VF + 7))
    a("s_cmp_eq_u32 s92, 1"); a("s_cbranch_scc1 L_twomax")
    a("v_max_f32 v35, v35, v34"); a("v_mov_b32 v34, v35")
    a("L_twomax:")
    for r in range(36):
        a("v_fma_f32 v%d, v%d, s38, -v%d" % (VS + r, VS + r, 35 if r < 32 else 34))
    for r in range(36): a("v_exp_f32 v%d, v%d" % (VS + r, VS + r))
    a("s_nop 0")
    for tl in range(9):
        b = VS + 4 * tl
        a("v_cvt_pk_bf16_f32 v%d, v%d, v%d" % (VF + 2 * tl, b, b + 1)); a("v_cvt_pk_bf16_f32 v%d, v%d, v%d" % (VF + 2 * tl + 1, b + 2, b + 3))
        a("ds_write_b64 v32, v[%d:%d] offset:%d" % (VF + 2 * tl, VF + 2 * tl + 1, 2048 * tl))
    a("v_add_f32 v34, v%d, v%d" % (VS + 32, VS + 33)); a("v_add_f32 v36, v%d, v%d" % (VS + 34, VS + 35)); a("v_add_f32 v34, v34, v36")
    n = 32
    while n > 1:
        n //= 2
        for r in range(n): a("v_add_f32 v%d, v%d, v%d" % (VS + r, VS + r, VS + n + r))
    a("v_mov_b32 v35, v%d" % VS)
    bfly("v_add_f32", 34, 36, [3, 4, 5]); bfly("v_add_f32", 35, 36, [3, 4, 5])
    a("ds_write_b32 v17, v35 offset:%d" % (L_LW - L_MX)); a("ds_write_b32 v17, v34 offset:%d" % (L_LW - L_MX + 32))
    set_stage(3)
    a("v_and_b32 v37, 7, v0"); a("v_lshlrev_b32 v37, 15, v37")
    a("v_bfe_u32 v18, v0, 3, 1"); a("v_lshl_add_u32 v37, v18, 6, v37"); a("v_lshl_add_u32 v37, v1, 4, v37")
    a("s_bfe_u32 s38, s2, 0x20005"); a("s_lshl_b32 s38, s38, 18")
    a("s_lshl_b32 s39, s32, 13"); a("s_add_u32 s38, s38, s39")
    a("s_lshr_b32 s39, s2, 7"); a("s_lshl_b32 s39, s39, 12"); a("s_add_u32 s38, s38, s39")
    a("s_and_b32 s39, s2, 31"); a("s_lshl_b32 s39, s39, 7"); a("s_add_u32 s38, s38, s39")
    a("s_add_u32 s38, s38, 0x%x" % W_IN1); gl(42, "s38")
    a("s_add_u32 s44, s42, 0x100000"); a("s_addc_u32 s45, s43, 0")
    a("s_mov_b32 s46, 0xff00ff00"); a("s_mov_b32 s47, 0xff00ff00")
    a("s_lshl_b32 s38, s2, 13"); a("s_lshl_b32 s39, s32, 11"); a("s_add_u32 s38, s38, s39")
    a("s_add_u32 s38, s38, 0x%x" % W_IN1); gl(48, "s38")
    a("v_and_b32 v49, 1, v0"); a("v_lshlrev_b32 v49, 19, v49")
    a("v_bfe_u32 v18, v0, 2, 2"); a("v_lshl_add_u32 v49, v18, 14, v49")
    a("v_bfe_u32 v18, v0, 1, 1"); a("v_lshl_add_u32 v49, v18, 6, v49"); a("v_lshl_add_u32 v49, v1, 4, v49")
    a("s_lshr_b32 s38, s2, 7"); a("s_lshl_b32 s38, s38, 20")
    a("s_lshl_b32 s39, s32, 17"); a("s_add_u32 s38, s38, s39")
    a("s_and_b32 s39, s2, 127"); a("s_lshl_b32 s39, s39, 7"); a("s_add_u32 s38, s38, s39")
    a("s_add_u32 s38, s38, 0x%x" % W_IN2); gl(50, "s38")
    a("s_add_u32 s52, s50, 0x10000"); a("s_addc_u32 s53, s51, 0")
    a("s_and_b32 s38, s2, 127"); a("s_lshl_b32 s38, s38, 14"); a("s_lshl_b32 s39, s32, 12"); a("s_add_u32 s38, s38, s39")
    a("s_add_u32 s38, s38, 0x%x" % W_IN2); gl(54, "s38")
    a("s_bfe_u32 s38, s2, 0x10005"); a("s_lshl_b32 s38, s38, 12")
    a("s_bfe_u32 s39, s2, 0x10006"); a("s_lshl_b32 s39, s39, 11"); a("s_add_u32 s38, s38, s39")
    a("s_and_b32 s39, s2, 31"); a("s_lshl_b32 s39, s39, 6"); a("s_add_u32 s38, s38, s39")
    a("s_add_u32 s56, s24, s38"); a("s_addc_u32 s57, s25, 0")
    for t in range(8):
        m = (3 << (2 * t)) * 0x00010001
        a("s_mov_b32 s%d, 0x%x" % (64 + 2 * t, m)); a("s_mov_b32 s%d, 0x%x" % (65 + 2 * t, m))
    a("v_and_b32 v50, 7, v0"); a("v_lshlrev_b32 v50, 4, v50"); a("s_lshl_b32 s38, s32, 7"); a("v_add_u32 v50, s38, v50")
    a("v_add_u32 v50, %d, v50" % L_OX)
    a("v_and_b32 v51, 1, v0"); a("v_lshlrev_b32 v51, 8, v51"); a("v_lshl_add_u32 v51, v1, 4, v51")
    a("v_add_u32 v51, %d, v51" % L_OX)
    a("v_lshrrev_b32 v52, 3, v0"); a("s_lshl_b32 s38, s32, 4"); a("v_add_u32 v52, s38, v52"); a("v_lshlrev_b32 v52, 2, v52")
    a("v_add_u32 v52, %d, v52" % L_F)
    a("v_lshlrev_b32 v55, 3, v0")
    a("v_add_co_u32 v60, vcc, 1, v60"); a("s_nop 1"); a("v_addc_co_u32 v61, vcc, 0, v61, vcc")
    VH = 136; VR = 176
    a("s_bfe_u32 s38, s2, 0x20005"); a("s_lshr_b32 s39, s32, 1"); a("s_lshl_b32 s39, s39, 2"); a("s_add_u32 s38, s38, s39")
    a("s_lshl_b32 s38, s38, 3"); a("s_mov_b64 s[58:59], 0xff"); a("s_lshl_b64 s[58:59], s[58:59], s38")
    a("s_cmp_lt_u32 s2, 128"); a("s_cselect_b64 s[58:59], -1, s[58:59]")
    for r in range(8): a("v_mov_b32 v%d, v%d" % (VR + r, VT + (r & 3)))
    for r in range(8): a("v_mov_b32 v%d, 0" % (VO + r))
    a("s_cmp_eq_u32 s92, 1"); a("s_cselect_b32 s61, %d, 0" % T0["vsm"])
    wait_min4(sST, "v12", 8, "2")
    stamp(6)
    if wo_early == 1:
        wo_reads("woE", lambda t: VW + 4 * t)
        a("s_waitcnt lgkmcnt(0)")
        set_free(str(T0["vbig"]))
    def ostore(sp, d):
        for r in range(4): a("v_cndmask_b32 v%d, v%d, v%d, s[46:47]" % (d + r, VO + r, VO + 4 + r))
        tag4(d)
        a("global_store_dwordx4 v37, v[%d:%d], s[%d:%d] sc1" % (d, d + 3, sp, sp + 1))
    a("s_mov_b32 s36, %d" % T0["vbig"])
    a("L_v:")
    a("s_and_b32 s37, s36, %d" % (NSLOT - 1)); a("s_lshl_b32 s37, s37, 13")
    a("v_add_u32 v38, s37, v28"); a("v_add_u32 v39, s37, v29")
    wait_word(sL, "v6", "v8", "s36", sleep=psleep)
    a("ds_read_b128 v[%d:%d], v33" % (VF + 8, VF + 11))
    a("ds_read_b64_tr_b16 v[%d:%d], v38" % (VF, VF + 1)); a("ds_read_b64_tr_b16 v[%d:%d], v38 offset:4096" % (VF + 2, VF + 3))
    a("ds_read_b64_tr_b16 v[%d:%d], v39" % (VF + 4, VF + 5)); a("ds_read_b64_tr_b16 v[%d:%d], v39 offset:4096" % (VF + 6, VF + 7))
    a("v_add_u32 v33, 512, v33")
    a("s_add_u32 s36, s36, 1")
    a("v_mov_b32 v8, s36")
    a("s_waitcnt lgkmcnt(2)")
    a("v_mfma_f32_16x16x32_bf16 v[%d:%d], v[%d:%d], v[%d:%d], v[%d:%d]" % (VO, VO + 3, VF, VF + 3, VF + 8, VF + 11, VO, VO + 3))
    a("s_waitcnt lgkmcnt(0)")
    a("v_mfma_f32_16x16x32_bf16 v[%d:%d], v[%d:%d], v[%d:%d], v[%d:%d]" % (VO + 4, VO + 7, VF + 4, VF + 7, VF + 8, VF + 11, VO + 4, VO + 7))
    a("ds_write_b32 v4, v8")
    a("s_cmp_eq_u32 s36, s61")
    a("s_cbranch_scc1 L_vmid")
    a("s_cmp_lt_u32 s36, %d" % VEND)
    a("s_cbranch_scc1 L_v")
    a("s_nop 2")
    ostore(42, VO + 8)
    stamp(8)
    def h1loads():
        for i in range(2):
            a("global_load_dwordx4 v[%d:%d], v48, s[48:49] offset:%d sc1" % (VR + 4 * i, VR + 4 * i + 3, 1024 * i))
    if h1pre:
        a("s_mov_b64 exec, s[58:59]"); h1loads(); a("s_mov_b64 exec, -1")
    if not wo_early: wo_reads("woE", lambda t: VW + 4 * t)
    wo_reads("woL", lambda t: VW + 4 * t + 2)
    wait_word(sHS, "v7", "v8", "0")
    a("ds_read_b32 v53, v52"); a("ds_read_b32 v54, v52 offset:32")
    stamp(9)
    poll_valid(h1loads, tagcheck(VR, 8, VH, 8), sleep=h1sleep, first=not h1pre, mask0="s[58:59]")
    stamp(10)
    a("s_waitcnt lgkmcnt(0)")
    for r in range(4): a("v_mul_f32 v%d, v%d, v53" % (VH + r, VH + r))
    for r in range(4): a("v_fmac_f32 v%d, v%d, v54" % (VH + r, VH + 4 + r))
    bfly4("v_add_f32", VH, VH + 4, [3, 4, 5])
    a("s_mov_b64 exec, 0xff")
    a("ds_write_b128 v50, v[%d:%d]" % (VH, VH + 3))
    a("s_mov_b64 exec, -1")
    a("s_waitcnt lgkmcnt(0)")
    a("s_barrier")
    for k, off in enumerate((0, 64, 128, 192)):
        a("ds_read_b128 v[%d:%d], v51 offset:%d" % (VH + 4 * k, VH + 4 * k + 3, off))
    a("s_waitcnt lgkmcnt(0)")
    for r in range(8): a("v_add_f32 v%d, v%d, v%d" % (VH + r, VH + r, VH + 8 + r))
    for r in range(4): a("v_cvt_pk_bf16_f32 v%d, v%d, v%d" % (VH + 16 + r, VH + 2 * r, VH + 2 * r + 1))
    VB = 160
    def cnd(t):
        for r in range(4): a("v_cndmask_b32 v%d, 0, v%d, s[%d:%d]" % (VB + 4 * t + r, VH + 16 + r, 64 + 2 * t, 65 + 2 * t))
    def mm(t):
        for ch in range(2):
            w = VW + 4 * (8 * ch + t); d = VO + 4 * ch
            c = "0" if t == 0 else "v[%d:%d]" % (d, d + 3)
            a("v_mfma_f32_16x16x32_bf16 v[%d:%d], v[%d:%d], v[%d:%d], %s" % (d, d + 3, w, w + 3, VB + 4 * t, VB + 4 * t + 3, c))
    if ilv:
        cnd(0)
        for t in range(8):
            if t < 7: cnd(t + 1)
            mm(t)
    else:
        for t in range(8): cnd(t)
        for t in range(8): mm(t)
    a("s_nop 6")
    tag4(VO)
    a("global_store_dwordx4 v49, v[%d:%d], s[50:51] sc1" % (VO, VO + 3))
    tag4(VO + 4)
    a("global_store_dwordx4 v49, v[%d:%d], s[52:53] sc1" % (VO + 4, VO + 7))
    stamp(11)
    a("s_cmp_ge_u32 s2, 128")
    a("s_cbranch_scc1 L_fin")
    def h2loads():
        for i in range(4):
            a("global_load_dwordx4 v[%d:%d], v48, s[54:55] offset:%d sc1" % (VR + 4 * i, VR + 4 * i + 3, 1024 * i))
    if ackw: a("s_waitcnt vmcnt(0)")
    poll_valid(h2loads, tagcheck(VR, 16, VH, 8), sleep=h2sleep)
    stamp(12)
    for r in range(8): a("v_add_f32 v%d, v%d, v%d" % (VH + r, VH + r, VH + 8 + r))
    for r in range(4): a("v_add_f32 v%d, v%d, v%d" % (VH + r, VH + r, VH + 4 + r))
    bfly4("v_add_f32", VH, VH + 4, [3, 4, 5])
    a("s_mov_b64 exec, 0xff")
    a("ds_write_b128 v50, v[%d:%d] offset:%d" % (VH, VH + 3, L_RX - L_OX))
    a("s_waitcnt lgkmcnt(0)")
    a("s_barrier")
    a("s_cmp_lg_u32 s32, 0")
    a("s_cbranch_scc1 L_fin")
    for k in range(4):
        a("ds_read_b128 v[%d:%d], v50 offset:%d" % (VH + 4 * k, VH + 4 * k + 3, L_RX - L_OX + 128 * k))
    a("s_waitcnt lgkmcnt(0)")
    for r in range(8): a("v_add_f32 v%d, v%d, v%d" % (VH + r, VH + r, VH + 8 + r))
    for r in range(4): a("v_add_f32 v%d, v%d, v%d" % (VH + r, VH + r, VH + 4 + r))
    a("v_cvt_pk_bf16_f32 v%d, v%d, v%d" % (VH + 4, VH, VH + 1)); a("v_cvt_pk_bf16_f32 v%d, v%d, v%d" % (VH + 5, VH + 2, VH + 3))
    a("global_store_dwordx2 v55, v[%d:%d], s[56:57]" % (VH + 4, VH + 5))
    a("s_cmp_lg_u32 s2, 0")
    a("s_cbranch_scc1 L_fin")
    a("s_mov_b64 exec, 1")
    a("global_store_dwordx2 v55, v[60:61], s[62:63] sc1")
    a("L_fin:")
    stamp(13)
    diag_end(2)
    stamp_flush()
    a("L_end:")
    a("s_endpgm")
    a("L_vmid:")
    a("s_nop 4")
    ostore(44, 196)
    for r in range(8): a("v_mov_b32 v%d, 0" % (VO + r))
    stamp(7)
    a("s_branch L_v")
    gen.sites = sites
    nv = 256 if (stamps or wo_early == 2) else 216
    return (header(["grid=(256,1,1) block=(384,1,1) lds=%d" % LDS_BYTES]) + kernel_open(KNAME) + a.text()
            + RODATA + descriptor(KNAME, nv, 100, nv))

if __name__ == "__main__":
    open(sys.argv[1], "w").write(gen(**eval("dict(%s)" % (sys.argv[2] if len(sys.argv) > 2 else ""))))
```

```python
import sys, math, struct
from asmlib import *

NSLOT = 16
PBASE = NSLOT * 8192
QBASE = PBASE
SY = PBASE + 36 * 512
L_LANDED = SY
L_FREE = SY + 256
L_STAGE = SY + 1280
L_HST = SY + 2304
L_MX = SY + 2560
L_LW = SY + 2816
L_F = SY + 3072
L_OX = SY + 3328
L_RX = SY + 3840
L_LVL = SY + 4352
LDS_BYTES = SY + 4608
W_QP = 0x000000
W_ML = 0x020000
W_EP = 0x040000
W_PB = 0x050000
W_IN1 = 0x100000
W_IN2 = 0x300000
STAMP_OFF = 0x10000000
CSCALE = math.log2(math.e) / math.sqrt(128.0)
def f2u(x): return struct.unpack("<I", struct.pack("<f", x))[0]

def gen(win=20, win0=None, winT=None, tailT=0, stamps=False, wo_early=1, budget=1 << 27, psleep=0, qsleep=2, dbg='',
        ml_at=16, mlsleep=8, qg_at=14, h1sleep=0, h2sleep=0, h1pre=1, blate=0, epsc=1, ackw=1, ilv=1, qx=0, vst=0, burst=3, levels=None, cps=None, lvl0=1, thr=None, nsamp=16, redisp=4, ldpol='nt', wsoff=0, epoff=None, diag=0, dchk=0):
    dbg = dbg.split()
    win0 = win0 or win
    winT = winT or win
    a = Asm()
    uid = [0]
    def lab(p):
        uid[0] += 1
        return "L_%s_%d" % (p, uid[0])
    segs = [("wq", 8)]
    if wo_early == 2: segs += [("woE", 4)]
    segs += [("kbig", 32), ("ksm", 4)]
    if wo_early == 1: segs += [("woE", 4)]
    segs += [("vbig", 32), ("vsm", 4)]
    segs += [("woL", 4)] if wo_early else [("woE", 4), ("woL", 4)]
    T0 = {}; t = 0
    for n, c in segs:
        T0[n] = t; t += c
    NT = t
    VEND = T0["vsm"] + 4
    assert T0["wq"] == 0 and (T0["woE"] % NSLOT) <= NSLOT - 4 and (T0["woL"] % NSLOT) <= NSLOT - 4
    assert T0["kbig"] % 4 == 0
    def role():
        a("s_lshr_b32 s93, s2, 5"); a("s_and_b32 s92, s2, 7"); a("s_cmp_eq_u32 s92, s93"); a("s_cselect_b32 s92, 1, 0")

    sB = "s31"
    VST = 250
    def stamp(k):
        if stamps:
            a("s_memrealtime s[96:97]"); a("s_waitcnt lgkmcnt(0)"); a("v_writelane_b32 v%d, s96, %d" % (VST, k))
    def stamp_flush():
        if stamps:
            a("s_mov_b64 exec, -1")
            a("s_getreg_b32 s96, hwreg(HW_REG_XCC_ID)")
            a("v_writelane_b32 v%d, s96, 63" % VST)
            a("s_mul_i32 s96, s2, 6"); a("s_add_u32 s96, s96, s30"); a("s_lshl_b32 s96, s96, 8")
            a("v_lshl_add_u32 v251, v0, 2, s96")
            a("s_load_dwordx2 s[98:99], s[0:1], 96"); a("s_waitcnt lgkmcnt(0)")
            a("s_add_u32 s98, s98, 0x%x" % STAMP_OFF); a("s_addc_u32 s99, s99, 0")
            a("global_store_dword v251, v%d, s[98:99]" % VST)
            a("s_waitcnt vmcnt(0)")
    site = [0]; sites = []
    def diag_end(role):
        if diag:
            sk = lab("dg")
            a("s_cmp_eq_u32 s94, 0"); a("s_cbranch_scc1 " + sk)
            a("s_mov_b64 exec, 1")
            a("s_lshl_b32 s95, s2, 8"); a("s_or_b32 s95, s95, s94")
            a("v_mov_b32 v1, s95"); a("v_mov_b32 v2, 0"); a("v_mov_b32 v3, 1")
            a("global_store_dword v2, v1, s[26:27] offset:%d sc1" % (4 * role))
            a("global_atomic_add v2, v3, s[26:27] offset:%d sc1" % (4 * (4 + role)))
            a("s_waitcnt vmcnt(0)")
            a(sk + ":")
    def recheck(reads, n, phase):
        if not dchk: return
        reads(216)
        a("s_waitcnt lgkmcnt(0)")
        a("v_xor_b32 v248, v128, v216")
        for i in range(1, n): a("v_bitop3_b32 v248, v%d, v%d, v248 bitop3:0xbe" % (128 + i, 216 + i))
        a("v_cmp_ne_u32 vcc, 0, v248")
        sk = lab("rc")
        a("s_and_b64 vcc, vcc, vcc"); a("s_cbranch_scc0 " + sk)
        a("s_mov_b64 exec, 1")
        a("v_mov_b32 v246, 0"); a("v_mov_b32 v247, 1")
        a("global_atomic_add v246, v247, s[26:27] offset:%d sc1" % (4 * (8 + phase)))
        a("s_lshl_b32 s95, s36, 8"); a("s_or_b32 s95, s95, s2"); a("v_mov_b32 v247, s95")
        a("global_store_dword v246, v247, s[26:27] offset:%d sc1" % (4 * (12 + phase)))
        a("s_mov_b64 exec, -1")
        a(sk + ":")
    def budget_loop(label, cost=1):
        a("s_sub_u32 %s, %s, %d" % (sB, sB, cost))
        a("s_cbranch_scc0 %s" % label)
        a("s_mov_b32 %s, 0" % sB)
        if diag:
            site[0] += 1
            a("s_cmp_eq_u32 s94, 0"); a("s_cselect_b32 s94, %d, s94" % site[0])
            sites.append((site[0], label, len(a.l)))
    def wait_word(scache, vaddr, vtmp, thr, off=0, sleep=0):
        lp = lab("pw"); ok = lab("ok")
        a(lp + ":")
        a("s_cmp_gt_u32 %s, %s" % (scache, thr))
        a("s_cbranch_scc1 " + ok)
        if sleep: a("s_sleep %d" % sleep)
        a("ds_read_b32 %s, %s offset:%d" % (vtmp, vaddr, off))
        a("s_waitcnt lgkmcnt(0)")
        a("v_readfirstlane_b32 %s, %s" % (scache, vtmp))
        budget_loop(lp, 1 + sleep // 2)
        a(ok + ":")
    def wait_min4(scache, vaddr, vt, thr, off=0, sleep=0, cmp="s_cmp_gt_u32"):
        lp = lab("pm"); ok = lab("ok")
        a(lp + ":")
        a("%s %s, %s" % (cmp, scache, thr))
        a("s_cbranch_scc1 " + ok)
        if sleep: a("s_sleep %d" % sleep)
        a("ds_read_b128 v[%d:%d], %s offset:%d" % (vt, vt + 3, vaddr, off))
        a("s_waitcnt lgkmcnt(0)")
        a("v_min3_u32 v%d, v%d, v%d, v%d" % (vt, vt, vt + 1, vt + 2))
        a("v_min_u32 v%d, v%d, v%d" % (vt, vt, vt + 3))
        a("s_nop 0")
        a("v_readfirstlane_b32 %s, v%d" % (scache, vt))
        budget_loop(lp, 1 + sleep // 2)
        a(ok + ":")
    VT = 56
    def poll_valid(loads, check, sleep=1, first=True, mask0=None):
        if "nopoll" in dbg: return
        if first:
            if mask0: a("s_mov_b64 exec, %s" % mask0)
            loads()
        lp = lab("pv"); ok = lab("ok")
        a(lp + ":")
        a("s_mov_b64 exec, -1")
        a("s_waitcnt vmcnt(0)")
        check()
        a("s_and_b64 exec, vcc, vcc")
        a("s_cbranch_scc0 " + ok)
        if sleep: a("s_sleep %d" % sleep)
        loads()
        budget_loop(lp, 64)
        a(ok + ":")
        a("s_mov_b64 exec, -1")
        a("s_waitcnt vmcnt(0)")
    def tagcheck(base, n, dst, vtmp):
        def f():
            for i in range(n): a("v_xor_b32 v%d, v%d, v%d" % (dst + i, base + i, VT + (i & 3)))
            h = n // 2
            for c in range(2):
                r = list(range(dst + c * h, dst + (c + 1) * h))
                a("v_or3_b32 v%d, v%d, v%d, v%d" % (vtmp + c, r[0], r[1], r[2])); r = r[3:]
                while len(r) >= 2:
                    a("v_or3_b32 v%d, v%d, v%d, v%d" % (vtmp + c, vtmp + c, r[0], r[1])); r = r[2:]
                if r: a("v_or_b32 v%d, v%d, v%d" % (vtmp + c, vtmp + c, r[0]))
            a("v_bitop3_b32 v%d, v%d, v%d, s60 bitop3:0xa8" % (vtmp, vtmp, vtmp + 1))
            a("v_cmp_ne_u32 vcc, 0, v%d" % vtmp)
        return f
    def tag4(d, s=None):
        s = d if s is None else s
        for r in range(4): a("v_bfi_b32 v%d, s60, v%d, v%d" % (d + r, VT + r, s + r))
    def epoch_load():
        a("s_add_u32 s62, s28, 0x%x" % (W_EP + wsoff if epoff is None else epoff)); a("s_addc_u32 s63, s29, 0")
        if wsoff: a("s_add_u32 s28, s28, 0x%x" % wsoff); a("s_addc_u32 s29, s29, 0")
        if epsc: a("s_load_dwordx2 s[90:91], s[62:63], 0")
        else:
            a("v_mov_b32 v60, 0")
            a("global_load_dwordx2 v[60:61], v60, s[62:63] sc1")
    def epoch_tags():
        if epsc:
            a("s_waitcnt lgkmcnt(0)")
            a("v_mov_b32 v60, s90"); a("v_mov_b32 v61, s91")
        a("s_mov_b32 s60, 0x9e3779b1"); a("v_mul_lo_u32 v62, v60, s60")
        a("s_mov_b32 s60, 0x85ebca6b"); a("v_xor_b32 v63, v61, v62"); a("v_mul_lo_u32 v63, v63, s60")
        a("s_movk_i32 s60, 0x7ff")
        a("v_and_b32 v56, s60, v62")
        a("v_bfe_u32 v57, v62, 11, 10"); a("v_lshlrev_b32 v57, 1, v57")
        a("v_and_b32 v58, 1, v62"); a("v_xor_b32 v58, 1, v58"); a("v_or_b32 v57, v57, v58")
        a("v_lshrrev_b32 v58, 21, v62"); a("v_lshrrev_b32 v59, 21, v63")
    def bfly(op, v, vt, bits):
        for b in bits:
            if b <= 3:
                a("s_nop 1")
                a("%s_dpp v%d, v%d, v%d row_ror:%d row_mask:0xf bank_mask:0xf" % (op, v, v, v, 1 << b))
            else:
                a("v_mov_b32 v%d, v%d" % (vt, v))
                a("s_nop 1")
                a("v_permlane%d_swap_b32 v%d, v%d" % (1 << b, v, vt))
                a("%s v%d, v%d, v%d" % (op, v, v, vt))
    def bfly4(op, v, vt, bits):
        for b in bits:
            if b <= 3:
                for r in range(4):
                    a("%s_dpp v%d, v%d, v%d row_ror:%d row_mask:0xf bank_mask:0xf" % (op, v + r, v + r, v + r, 1 << b))
            else:
                for r in range(4): a("v_mov_b32 v%d, v%d" % (vt + r, v + r))
                for r in range(4): a("v_permlane%d_swap_b32 v%d, v%d" % (1 << b, v + r, vt + r))
                for r in range(4): a("%s v%d, v%d, v%d" % (op, v + r, v + r, vt + r))

    a("s_cmp_ge_u32 s2, 256")
    a("s_cbranch_scc1 L_end")
    a("s_load_dwordx16 s[4:19], s[0:1], 0")
    a("s_load_dwordx8 s[20:27], s[0:1], 64")
    a("s_load_dwordx2 s[28:29], s[0:1], 96")
    a("v_lshrrev_b32 v1, 6, v0")
    a("v_and_b32 v0, 63, v0")
    a("v_readfirstlane_b32 s30, v1")
    a("s_mov_b32 %s, %d" % (sB, budget))
    if diag: a("s_mov_b32 s94, 0")
    if stamps:
        a("v_mov_b32 v%d, 0" % VST); stamp(0)
    a("s_xor_b32 s3, s2, %d" % qx)
    a("v_lshrrev_b32 v1, 4, v0")
    a("v_and_b32 v2, 15, v0")
    a("s_cmp_lg_u32 s30, 0")
    a("s_cbranch_scc1 L_notloader")

    a("s_setprio 3")
    vA = list(range(4, 12))
    vK = [12, 13, 14, 15]; vV = [16, 17]; vWO = 18
    a("v_lshrrev_b32 v20, 3, v0"); a("v_and_b32 v21, 7, v0"); a("v_and_b32 v22, 1, v1")
    a("v_lshlrev_b32 v20, 13, v20"); a("v_lshlrev_b32 v22, 1, v22")
    a("v_xor_b32 v21, v21, v22")
    a("v_lshl_add_u32 v4, v21, 4, v20")
    a("v_xor_b32 v5, 64, v4")
    a("s_and_b32 s56, s3, 1"); a("s_lshl_b32 s56, s56, 22")
    a("s_bfe_u32 s57, s3, 0x60001"); a("s_lshl_b32 s57, s57, 7"); a("s_add_u32 s56, s56, s57")
    a("s_mov_b32 s34, 0x800000"); a("s_mov_b32 s35, 0x20000")
    a("s_mov_b32 s40, 0"); a("s_mov_b32 s41, 0")
    a("v_lshlrev_b32 v24, 2, v0"); a("v_add_u32 v24, %d, v24" % L_LANDED)
    a("v_mov_b32 v25, 0")
    a("s_cmp_lt_u32 s2, 128")
    a("s_waitcnt lgkmcnt(0)")
    a("s_cselect_b32 s32, s10, s20"); a("s_cselect_b32 s33, s11, s21")
    a("s_and_b32 s33, s33, 0xffff")
    stamp(21)
    def signal(w, j):
        js = (w - 1) % 8 or 8
        if j == js:
            d = (w - 1 - js) // 8
            if d: a("s_sub_i32 s42, s40, %d" % d); a("s_max_i32 s42, s42, 0"); a("v_mov_b32 v25, s42")
            else: a("v_mov_b32 v25, s40")
            a("ds_write_b32 v24, v25")
    def wq_tile(w, waits=True):
        for i in range(8):
            if i % 4 == 0: a("s_add_u32 m0, s41, %d" % (i * 1024)); a("s_nop 0")
            a("buffer_load_dwordx4 v%d, s[32:35], s56 offen offset:%d %s lds" % (vA[i & 1], (i % 4) * 1024, ldpol))
            a("s_add_u32 s56, s56, %d" % (64512 + (4096 if i % 4 == 3 else 0)))
            if waits:
                a("s_waitcnt vmcnt(%d)" % (w - 1)); signal(w, i + 1)
        a("s_add_u32 s40, s40, 1"); a("s_add_u32 s41, s41, 8192")
    assert win0 >= 8 * burst
    a("L_wq0:")
    wq_tile(win0, waits=False)
    a("s_cmp_lt_u32 s40, %d" % burst); a("s_cbranch_scc1 L_wq0")
    a("ds_write_b32 v24, v25")
    a("s_waitcnt lgkmcnt(0)")
    stamp(22)
    a("s_barrier")
    stamp(1)
    for i in range(4):
        a("v_add_u32 v20, %d, v1" % (4 * i)); a("v_xor_b32 v20, v20, v2"); a("v_lshlrev_b32 v20, 4, v20")
        a("v_lshl_add_u32 v%d, v1, 8, v20" % vK[i])
    for i in range(2):
        a("v_add_u32 v20, %d, v1" % (4 * i)); a("v_lshlrev_b32 v20, 1, v20"); a("v_xor_b32 v20, v20, v2")
        a("v_lshlrev_b32 v20, 4, v20"); a("v_lshl_add_u32 v%d, v1, 8, v20" % vV[i])
    a("v_lshlrev_b32 v18, 4, v0")
    a("v_mov_b32 v26, %d" % L_FREE); a("v_mov_b32 v19, %d" % L_LVL)
    a("s_cmp_lt_u32 s2, 128")
    a("s_cselect_b32 s52, s12, s22"); a("s_cselect_b32 s53, s13, s23")
    role()
    a("s_lshl_b32 s57, s2, 18")
    a("s_lshl_b32 s58, s93, 23"); a("s_bfe_u32 s59, s2, 0x20003"); a("s_lshl_b32 s55, s59, 18"); a("s_add_u32 s54, s58, s55")
    a("s_add_u32 s54, s54, %d" % ((32768 - 4096) * 256))
    a("s_lshl_b32 s55, s55, 3"); a("s_add_u32 s55, s55, s58"); a("s_lshl_b32 s58, s93, 18"); a("s_add_u32 s55, s55, s58")
    a("s_and_b32 s58, s2, 7"); a("s_lshl_b32 s58, s58, 15"); a("s_add_u32 s55, s55, s58")
    a("s_cmp_eq_u32 s92, 1")
    a("s_cselect_b32 s48, s16, s6"); a("s_cselect_b32 s49, s17, s7")
    a("s_cselect_b32 s50, s18, s8"); a("s_cselect_b32 s51, s19, s9")
    a("s_cselect_b32 s54, s54, s57")
    a("s_and_b32 s59, s2, 127"); a("s_lshl_b32 s59, s59, 16")
    a("s_mov_b32 s61, 0")
    a("L_wq1:")
    wq_tile(win0)
    a("s_cmp_lt_u32 s40, 8"); a("s_cbranch_scc1 L_wq1")
    def tile_loop(name, w, redispatch=False):
        a(name + ":")
        if "nofree" not in dbg:
            a("s_sub_i32 s42, s40, %d" % NSLOT)
            wait_min4("s61", "v26", 28, "s42", cmp="s_cmp_gt_i32")
        for h in range(2):
            if h == 0: a("s_mov_b32 m0, s41"); a("s_add_u32 s45, s56, 4096")
            else: a("s_add_u32 m0, s41, 4096"); a("s_nop 0")
            for i in range(4):
                a("buffer_load_dwordx4 v%d, s[32:35], %s offen offset:%d %s lds" % (vA[4 * h + i], "s45" if h else "s56", i * 1024, ldpol))
                a("s_waitcnt vmcnt(%d)" % (w - 1)); signal(w, 4 * h + i + 1)
        for i in range(8): a("v_xor_b32 v%d, s44, v%d" % (vA[i], vA[i]))
        a("s_add_u32 s56, s56, 8192")
        a("s_add_u32 s41, s41, 8192"); a("s_and_b32 s41, s41, %d" % (NSLOT * 8192 - 1))
        a("s_add_u32 s40, s40, 1")
        a("s_cmp_lt_u32 s40, s43")
        if redispatch:
            a("s_cbranch_scc0 L_ret")
            a("s_and_b32 s42, s40, %d" % (redisp - 1))
            a("s_cbranch_scc1 " + name)
            a("s_branch L_tile")
        else:
            a("s_cbranch_scc1 " + name)
            a("s_setpc_b64 s[46:47]")
    def seg_setup(name):
        lo, sreg, base, size = {"kbig": (48, 54, 0, 64 << 20), "ksm": (6, 55, 0, 64 << 20), "vbig": (50, 54, 0, 64 << 20), "vsm": (8, 55, 0, 64 << 20),
                                "woE": (52, 59, 0, 8 << 20), "woL": (52, 59, 32768, 8 << 20)}[name]
        a("s_mov_b32 s32, s%d" % lo); a("s_and_b32 s33, s%d, 0xffff" % (lo + 1)); a("s_mov_b32 s34, 0x%x" % size)
        a("s_add_u32 s56, s%d, %d" % (sreg, base))
        if name in ("kbig", "vbig", "woE", "woL"):
            for i in range(8):
                if name[0] == "k": a("v_mov_b32 v%d, v%d" % (vA[i], vK[i & 3]))
                elif name[0] == "v": a("v_mov_b32 v%d, v%d" % (vA[i], vV[i & 1]))
                else: a("v_xor_b32 v%d, %d, v18" % (vA[i], 32 * (i >> 1)))
            a("s_mov_b32 s44, %d" % (128 if name[0] == "w" else 0))
    stampat = {"kbig": 3, "ksm": 4, "vbig": 5, "vsm": 6}
    for name, cnt in segs[1:]:
        if name in stampat: stamp(stampat[name])
        seg_setup(name)
        end = T0[name] + cnt
        cut = NT - tailT
        if vst and name == "vbig":
            for q in range(1, 4):
                if T0[name] + 8 * q <= cut:
                    a("s_mov_b32 s43, %d" % (T0[name] + 8 * q)); a("s_call_b64 s[46:47], L_tile"); stamp(8 + q)
        if tailT and T0[name] < cut < end:
            a("s_mov_b32 s43, %d" % cut); a("s_call_b64 s[46:47], L_tile")
            a("s_mov_b32 s43, %d" % end); a("s_call_b64 s[46:47], L_tileT")
        else:
            a("s_mov_b32 s43, %d" % end)
            a("s_call_b64 s[46:47], %s" % ("L_tileT" if (tailT and T0[name] >= cut) else "L_tile"))
        if name == "vsm": stamp(7)
    wl = winT if tailT else (max(levels) if levels else win)
    done = (8 * NT - (wl - 1)) // 8
    while done < NT:
        done += 1
        a("s_waitcnt vmcnt(%d)" % (8 * (NT - done)))
        a("v_mov_b32 v25, %d" % done); a("ds_write_b32 v24, v25")
    a("s_waitcnt lgkmcnt(0)")
    stamp(8)
    diag_end(0)
    stamp_flush()
    a("s_endpgm")
    if levels:
        a("L_tile:")
        a("ds_read_b32 v27, v19")
        a("s_waitcnt lgkmcnt(0)")
        a("v_readfirstlane_b32 s42, v27")
        for k in range(1, len(levels)):
            a("s_cmp_eq_u32 s42, %d" % k); a("s_cbranch_scc1 L_tile_%d" % k)
        for k, w in enumerate(levels): tile_loop("L_tile_%d" % k, w, True)
        a("L_ret:")
        a("s_setpc_b64 s[46:47]")
    else:
        tile_loop("L_tile", win)
    if tailT: tile_loop("L_tileT", winT)

    a("L_notloader:")
    a("s_cmp_gt_u32 s30, 1")
    a("s_cbranch_scc1 L_cons")
    a("v_lshlrev_b32 v24, 2, v0"); a("v_add_u32 v24, %d, v24" % L_HST)
    a("v_mov_b32 v25, 0"); a("ds_write_b32 v24, v25")
    a("v_mov_b32 v25, %d" % lvl0); a("ds_write_b32 v24, v25 offset:%d" % (L_LVL - L_HST))
    a("s_waitcnt lgkmcnt(0)")
    epoch_load()
    a("s_barrier")
    a("s_mov_b32 s41, 0"); a("v_mov_b32 v26, %d" % L_STAGE)
    a("s_mov_b32 s42, 0"); a("v_mov_b32 v27, %d" % L_LANDED)
    a("s_lshl_b32 s32, s2, 8")
    a("s_add_u32 s33, s32, 0x%x" % W_ML); a("s_add_u32 s38, s28, s33"); a("s_addc_u32 s39, s29, 0")
    a("s_bfe_u32 s32, s2, 0x20005"); a("s_lshl_b32 s32, s32, 13")
    a("s_bfe_u32 s33, s2, 0x30002")
    a("s_lshr_b32 s34, s2, 7"); a("s_lshl_b32 s34, s34, 3"); a("s_add_u32 s33, s33, s34"); a("s_lshl_b32 s33, s33, 4")
    a("s_add_u32 s32, s32, s33"); a("s_add_u32 s32, s32, 0x%x" % W_ML)
    a("s_add_u32 s34, s28, s32"); a("s_addc_u32 s35, s29, 0")
    a("v_lshrrev_b32 v12, 5, v0"); a("v_lshlrev_b32 v12, 15, v12")
    a("v_and_b32 v16, 31, v0"); a("v_lshl_add_u32 v12, v16, 8, v12")
    a("v_and_b32 v13, 7, v0"); a("v_lshlrev_b32 v13, 2, v13"); a("v_add_u32 v13, %d, v13" % L_MX)
    a("v_lshlrev_b32 v11, 4, v2")
    role()
    a("s_bfe_u32 s32, s2, 0x20005")
    a("s_lshl_b32 s44, 0x01010101, s32"); a("s_lshl_b32 s45, s44, 4")
    a("s_cmp_lt_u32 s2, 128")
    a("s_cselect_b32 s44, -1, s44"); a("s_cselect_b32 s45, -1, s45")
    a("s_cmp_eq_u32 s92, 1")
    a("s_cselect_b32 s48, 0xff, 0"); a("s_mov_b32 s49, 0")
    a("s_cselect_b32 s50, 0xff00, 0"); a("s_mov_b32 s51, 0")
    a("s_or_b32 s46, s50, 0xff"); a("s_mov_b32 s47, 0")
    a("s_waitcnt vmcnt(0)")
    epoch_tags()
    a("v_mov_b32 v14, 0xff800000"); a("v_mov_b32 v15, 0"); a("v_mov_b32 v16, v62"); a("v_mov_b32 v17, v63")
    cpl = list(cps or [])
    if cpl:
        offs = [(9 + 33 * k + (16 if k >= 8 else 0)) & 255 for k in range(nsamp)]
        for k, d in enumerate(offs):
            a("s_add_u32 s%d, s2, %d" % (64 + k, d)); a("s_and_b32 s%d, s%d, 255" % (64 + k, 64 + k)); a("s_lshl_b32 s%d, s%d, 7" % (64 + k, 64 + k))
        a("s_add_u32 s52, s28, 0x%x" % W_PB); a("s_addc_u32 s53, s29, 0")
        a("s_lshl_b32 s32, s2, 7"); a("v_mov_b32 v20, s32")
        a("v_readfirstlane_b32 s54, v62")
        a("v_lshl_add_u32 v21, v0, 4, v20")
        for r in range(4): a("v_mov_b32 v%d, v62" % (64 + r))
    def checkpoints(upto):
        while cpl and cpl[0] <= upto:
            c = cpl.pop(0)
            wait_word("s42", "v27", "v28", str(c - 1), sleep=4)
            if "fullpb" in dbg:
                a("s_mov_b64 exec, 0xff")
                a("global_store_dwordx4 v21, v[64:67], s[52:53] sc1")
            elif "nopbst" not in dbg:
                a("s_mov_b64 exec, 1")
                a("global_store_dword v20, v62, s[52:53] sc1")
            a("s_mov_b64 exec, -1")
            if "nopbld" not in dbg:
                for k in range(0, nsamp): a("s_load_dword s%d, s[52:53], s%d" % (4 + k, 64 + k))
            a("s_mov_b32 s55, 0")
            a("s_waitcnt lgkmcnt(0)")
            for k in range(0, nsamp):
                a("s_cmp_eq_u32 s%d, s54" % (4 + k)); a("s_addc_u32 s55, s55, 0")
            a("s_mov_b32 s56, 0")
            for tv in thr:
                a("s_cmp_ge_u32 s55, %d" % tv); a("s_addc_u32 s56, s56, 0")
            a("v_mov_b32 v25, s56"); a("ds_write_b32 v24, v25 offset:%d" % (L_LVL - L_HST))
            if stamps: a("v_writelane_b32 v%d, s55, %d" % (VST, 32 + len(cpl)))
            a("s_add_u32 s52, s52, 0x8000"); a("s_addc_u32 s53, s53, 0")
    checkpoints(T0["ksm"] + 4)
    wait_min4("s41", "v26", 28, "2", sleep=8)
    for w in range(4):
        a("ds_read_b32 v%d, v13 offset:%d" % (32 + w, 64 * w))
        a("ds_read_b32 v%d, v13 offset:%d" % (36 + w, 64 * w + 32))
        a("ds_read_b32 v%d, v13 offset:%d" % (40 + w, L_LW - L_MX + 64 * w))
        a("ds_read_b32 v%d, v13 offset:%d" % (44 + w, L_LW - L_MX + 64 * w + 32))
    a("s_waitcnt lgkmcnt(0)")
    a("v_max3_f32 v32, v32, v33, v34"); a("v_max_f32 v32, v32, v35")
    a("v_max3_f32 v36, v36, v37, v38"); a("v_max_f32 v36, v36, v39")
    a("v_add_f32 v40, v40, v41"); a("v_add_f32 v42, v42, v43"); a("v_add_f32 v40, v40, v42")
    a("v_add_f32 v44, v44, v45"); a("v_add_f32 v46, v46, v47"); a("v_add_f32 v44, v44, v46")
    a("v_max_f32 v60, v32, v36"); a("v_add_f32 v61, v40, v44")
    a("v_cndmask_b32 v60, v60, v36, s[48:49]"); a("v_cndmask_b32 v61, v61, v44, s[48:49]")
    a("v_cndmask_b32 v60, v60, v32, s[50:51]"); a("v_cndmask_b32 v61, v61, v40, s[50:51]")
    a("s_mov_b64 exec, s[46:47]")
    a("global_store_dwordx4 v11, v[60:63], s[38:39] sc1")
    a("s_mov_b64 exec, -1")
    stamp(4)
    checkpoints(T0["vbig"] + ml_at)
    if ml_at: wait_word("s42", "v27", "v28", str(T0["vbig"] + ml_at), sleep=8)
    def mlcheck():
        a("v_xor_b32 v18, v16, v62"); a("v_bitop3_b32 v18, v17, v63, v18 bitop3:0xbe")
        a("v_cmp_ne_u32 vcc, 0, v18")
    poll_valid(lambda: a("global_load_dwordx4 v[14:17], v12, s[34:35] sc1"), mlcheck, sleep=mlsleep, mask0="s[44:45]")
    a("v_mov_b32 v17, v14")
    bfly("v_max_f32", 17, 18, [0, 1, 2, 3, 4])
    a("v_sub_f32 v14, v14, v17"); a("v_exp_f32 v14, v14"); a("s_nop 0")
    a("v_mul_f32 v15, v15, v14")
    bfly("v_add_f32", 15, 18, [0, 1, 2, 3, 4])
    a("v_rcp_f32 v15, v15"); a("s_nop 0"); a("v_mul_f32 v14, v14, v15")
    a("v_lshlrev_b32 v13, 2, v0")
    a("v_add_u32 v13, %d, v13" % L_F)
    a("ds_write_b32 v13, v14")
    a("v_mov_b32 v25, 1"); a("ds_write_b32 v24, v25")
    checkpoints(NT)
    a("s_waitcnt lgkmcnt(0)")
    stamp(5)
    diag_end(1)
    stamp_flush()
    a("s_endpgm")

    a("L_cons:")
    sL = "s33"; sHS = "s34"; sST = "s35"
    a("s_sub_u32 s32, s30, 2")
    a("s_mov_b32 s33, 0"); a("s_mov_b32 s34, 0"); a("s_mov_b32 s35, 0")
    a("s_lshl_b32 s38, s32, 2")
    a("v_lshl_add_u32 v4, v0, 4, s38")
    a("v_add_u32 v5, %d, v4" % L_STAGE); a("v_add_u32 v4, %d, v4" % L_FREE)
    a("v_mov_b32 v6, %d" % L_LANDED); a("v_mov_b32 v7, %d" % L_HST); a("v_mov_b32 v12, %d" % L_STAGE)
    a("v_mov_b32 v8, 0")
    a("ds_write_b32 v4, v8"); a("ds_write_b32 v5, v8")
    a("v_bfe_u32 v13, v0, 2, 2"); a("v_and_b32 v14, 3, v0")
    VX = 64
    a("v_and_b32 v15, 1, v0"); a("v_lshlrev_b32 v15, 11, v15"); a("v_lshl_add_u32 v15, v1, 4, v15")
    a("s_waitcnt lgkmcnt(0)")
    a("s_barrier")
    a("s_cmp_lt_u32 s2, 128")
    a("s_cselect_b32 s40, s4, s14"); a("s_cselect_b32 s41, s5, s15")
    a("s_and_b32 s38, s3, 1"); a("s_lshl_b32 s38, s38, 10")
    a("s_add_u32 s40, s40, s38"); a("s_addc_u32 s41, s41, 0")
    for s in range(16):
        a("global_load_dwordx4 v[%d:%d], v15, s[40:41] offset:%d" % (VX + 4 * s, VX + 4 * s + 3, 64 * s))
    epoch_load()
    if "nocons" in dbg:
        a("s_waitcnt vmcnt(0)")
        a("s_endpgm")
    def set_free(val):
        a("v_mov_b32 v8, %s" % val); a("ds_write_b32 v4, v8")
    def set_stage(val):
        a("v_mov_b32 v8, %d" % val); a("ds_write_b32 v5, v8")
    a("v_lshl_add_u32 v16, v1, 3, v13"); a("v_lshlrev_b32 v16, 7, v16")
    a("v_lshrrev_b32 v17, 1, v13"); a("v_and_b32 v18, 1, v1"); a("v_lshl_or_b32 v17, v18, 1, v17")
    a("v_lshlrev_b32 v17, 1, v17")
    a("v_lshrrev_b32 v18, 1, v14"); a("s_lshl_b32 s38, s32, 1"); a("v_add_u32 v18, s38, v18")
    a("v_xor_b32 v17, v17, v18"); a("v_lshl_add_u32 v16, v17, 4, v16")
    a("v_and_b32 v18, 1, v14"); a("v_lshl_add_u32 v16, v18, 3, v16")
    vKa = list(range(20, 28))
    a("v_lshrrev_b32 v17, 1, v1"); a("v_lshl_add_u32 v17, v17, 4, v2"); a("v_lshlrev_b32 v17, 8, v17")
    a("s_lshl_b32 s38, s32, 13"); a("v_add_u32 v17, s38, v17")
    a("v_and_b32 v18, 1, v1"); a("v_xor_b32 v18, v18, v2"); a("v_lshl_add_u32 v20, v18, 4, v17")
    for s in range(1, 8): a("v_xor_b32 v%d, %d, v20" % (vKa[s], 32 * s))
    a("v_lshl_add_u32 v17, v1, 2, v13")
    a("v_and_b32 v18, 7, v17"); a("v_lshlrev_b32 v18, 1, v18")
    a("v_lshrrev_b32 v19, 1, v14")
    a("v_xor_b32 v30, v18, v19")
    a("v_and_b32 v31, 1, v14"); a("v_lshlrev_b32 v31, 3, v31")
    a("v_lshl_add_u32 v30, v30, 4, v31")
    a("s_lshl_b32 s38, s32, 6")
    a("v_xor_b32 v28, s38, v30"); a("v_lshl_add_u32 v28, v17, 8, v28")
    a("v_xor_b32 v29, 32, v28")
    vWOa = list(range(40, 48))
    a("s_lshl_b32 s38, s32, 9")
    a("v_lshl_add_u32 v40, v17, 11, v30"); a("v_add_u32 v40, s38, v40")
    for t in range(1, 8): a("v_xor_b32 v%d, %d, v40" % (vWOa[t], 32 * t))
    a("v_and_b32 v17, 7, v0"); a("v_lshl_add_u32 v17, v1, 3, v17"); a("v_lshlrev_b32 v17, 4, v17")
    a("v_add_u32 v33, %d, v17" % PBASE)
    a("v_bfe_u32 v18, v0, 3, 1"); a("v_lshl_add_u32 v32, v18, 3, v33")
    a("s_lshl_b32 s38, s32, 9"); a("v_add_u32 v32, s38, v32")
    gl = lambda d, off: (a("s_add_u32 s%d, s28, %s" % (d, off)), a("s_addc_u32 s%d, s29, 0" % (d + 1)))
    a("s_lshr_b32 s38, s2, 7"); a("s_lshl_b32 s38, s38, 16")
    a("s_and_b32 s39, s3, 1"); a("s_lshl_b32 s39, s39, 14"); a("s_add_u32 s38, s38, s39")
    a("s_bfe_u32 s39, s3, 0x60001"); a("s_lshl_b32 s39, s39, 8"); a("s_add_u32 s38, s38, s39")
    a("s_lshl_b32 s39, s32, 6"); a("s_add_u32 s38, s38, s39")
    gl(40, "s38")
    a("v_and_b32 v34, 1, v0"); a("v_lshlrev_b32 v34, 15, v34"); a("v_lshl_add_u32 v34, v1, 4, v34")
    role()
    a("s_lshr_b32 s39, s2, 7"); a("s_lshl_b32 s38, s39, 15")
    a("s_bfe_u32 s39, s2, 0x20005"); a("s_lshl_b32 s39, s39, 12"); a("s_add_u32 s38, s38, s39")
    a("s_lshl_b32 s39, s32, 10"); a("s_add_u32 s38, s38, s39")
    gl(44, "s38")
    a("s_lshl_b32 s39, s92, 16"); a("s_add_u32 s38, s38, s39")
    gl(42, "s38")
    a("v_lshlrev_b32 v48, 4, v0"); a("v_add_u32 v36, 16384, v48")
    a("s_lshl_b32 s38, s32, 9"); a("s_add_u32 s38, s38, %d" % QBASE)
    a("v_lshl_add_u32 v37, v0, 3, s38")
    a("v_and_b32 v17, 7, v0"); a("v_lshlrev_b32 v17, 8, v17"); a("v_and_b32 v18, 1, v1"); a("v_lshl_add_u32 v17, v18, 4, v17")
    a("v_add_u32 v35, %d, v17" % QBASE)
    a("s_lshl_b32 s39, s92, 11"); a("v_add_u32 v38, s39, v35")
    a("s_waitcnt vmcnt(0)")
    epoch_tags()
    VF = 128
    VS = 160
    VQA = 200
    VWE = 216
    for u in range(8):
        wait_word(sL, "v6", "v8", str(u), sleep=psleep)
        for s in range(2):
            for h in range(2):
                a("ds_read_b64_tr_b16 v[%d:%d], v16 offset:%d" % (VF + 4 * s + 2 * h, VF + 4 * s + 2 * h + 1, u * 8192 + s * 4096 + h * 512))
        a("s_waitcnt lgkmcnt(0)")
        for s in range(2):
            c = "0" if (u == 0 and s == 0) else "v[%d:%d]" % (VQA, VQA + 3)
            x = VX + 4 * (2 * u + s)
            a("v_mfma_f32_16x16x32_bf16 v[%d:%d], v[%d:%d], v[%d:%d], %s" % (VQA, VQA + 3, VF + 4 * s, VF + 4 * s + 3, x, x + 3, c))
        def rd(base, u=u):
            for s in range(2):
                for h in range(2):
                    a("ds_read_b64_tr_b16 v[%d:%d], v16 offset:%d" % (base + 4 * s + 2 * h, base + 4 * s + 2 * h + 1, u * 8192 + s * 4096 + h * 512))
        if dchk: a("s_mov_b32 s36, %d" % u)
        recheck(rd, 8, 0)
        if u < 7 or wo_early == 2: set_free(str(u + 1))
        else:
            a("s_add_u32 s36, s32, %d" % T0["kbig"]); set_free("s36")
    stamp(1)
    a("s_mov_b32 exec_lo, 0x00030003"); a("s_mov_b32 exec_hi, 0x00030003")
    a("s_nop 3")
    tag4(VQA)
    a("global_store_dwordx4 v34, v[%d:%d], s[40:41] sc1" % (VQA, VQA + 3))
    a("s_mov_b64 exec, -1")
    stamp(2)
    VO = 204
    VW = 64
    def wo_reads(name, dst):
        T = T0[name]
        wait_word(sL, "v6", "v8", str(T + 3))
        base = (T % NSLOT) * 8192
        if base >= 65536:
            for t in range(8): a("v_add_u32 v%d, 0x10000, v%d" % (vWOa[t], vWOa[t]))
        for t in range(16):
            d = dst(t)
            a("ds_read_b64_tr_b16 v[%d:%d], v%d offset:%d" % (d, d + 1, vWOa[t & 7], base % 65536 + (t >> 3) * 256))
        if base >= 65536:
            for t in range(8): a("v_subrev_u32 v%d, 0x10000, v%d" % (vWOa[t], vWOa[t]))
    VQ = 64
    for r in range(64): a("v_mov_b32 v%d, 0" % (VQ + r))
    if wo_early == 2:
        wo_reads("woE", lambda t: VWE + 2 * t)
        a("s_add_u32 s36, s32, %d" % T0["kbig"])
        a("s_waitcnt lgkmcnt(0)")
        set_free("s36")
    for r in range(8): a("v_mov_b32 v%d, v%d" % (VF + 8 + r, VT + (r & 3)))
    def qloads():
        for kh in range(2):
            a("global_load_dwordx4 v[%d:%d], v%d, s[42:43] sc1" % (VF + 4 * kh, VF + 4 * kh + 3, (48, 36)[kh]))
        sk = lab("qs")
        a("s_cmp_eq_u32 s92, 0"); a("s_cbranch_scc1 " + sk)
        for kh in range(2):
            a("global_load_dwordx4 v[%d:%d], v%d, s[44:45] sc1" % (VF + 8 + 4 * kh, VF + 8 + 4 * kh + 3, (48, 36)[kh]))
        a(sk + ":")
    if qg_at: wait_word(sL, "v6", "v8", str(qg_at - 1), sleep=psleep)
    stamp(14)
    poll_valid(qloads, tagcheck(VF, 16, VF + 16, 8), sleep=qsleep)
    stamp(3)
    for r in range(4): a("v_add_f32 v%d, v%d, v%d" % (VF + r, VF + 16 + r, VF + 20 + r))
    for r in range(4): a("v_add_f32 v%d, v%d, v%d" % (VF + 4 + r, VF + 24 + r, VF + 28 + r))
    for r in range(4): a("v_cvt_pk_bf16_f32 v%d, v%d, v%d" % (VF + 16 + r, VF + 2 * r, VF + 2 * r + 1))
    a("ds_write_b64 v37, v[%d:%d]" % (VF + 16, VF + 17)); a("ds_write_b64 v37, v[%d:%d] offset:2048" % (VF + 18, VF + 19))
    set_stage(1)
    wait_min4(sST, "v12", 8, "0")
    a("s_mov_b32 exec_lo, 0x00ff00ff"); a("s_mov_b32 exec_hi, 0xff00ff00")
    for part in range(2):
        for s in range(8):
            d = VQ + 32 * part + 4 * s
            a("ds_read_b128 v[%d:%d], v%d offset:%d" % (d, d + 3, (35, 38)[part], 32 * s))
    a("s_mov_b64 exec, -1")
    stamp(4)
    hi = [False]
    def ktile(Tbase, q, sdst, nxt):
        a("s_add_u32 s36, s32, %d" % Tbase)
        wait_word(sL, "v6", "v8", "s36", sleep=psleep)
        sl = Tbase % NSLOT
        want_hi = sl >= 8
        if want_hi != hi[0]:
            for s in range(8): a("v_xor_b32 v%d, 0x10000, v%d" % (vKa[s], vKa[s]))
            hi[0] = want_hi
        for s in range(8):
            a("ds_read_b128 v[%d:%d], v%d offset:%d" % (VF + 4 * s, VF + 4 * s + 3, vKa[s], (sl % 8) * 8192))
        if nxt is None: a("s_add_u32 s36, s36, 4")
        else: a("s_mov_b32 s36, %d" % nxt)
        a("v_mov_b32 v8, s36")
        for s in range(8):
            a("s_waitcnt lgkmcnt(%d)" % (7 - s))
            if s == 7 and not dchk: a("ds_write_b32 v4, v8")
            c = "0" if s == 0 else "v[%d:%d]" % (sdst, sdst + 3)
            a("v_mfma_f32_16x16x32_bf16 v[%d:%d], v[%d:%d], v[%d:%d], %s" % (sdst, sdst + 3, VF + 4 * s, VF + 4 * s + 3, q + 4 * s, q + 4 * s + 3, c))
        if dchk:
            def rd(base):
                for s in range(7):
                    a("ds_read_b128 v[%d:%d], v%d offset:%d" % (base + 4 * s, base + 4 * s + 3, vKa[s], (sl % 8) * 8192))
            recheck(rd, 28, 1)
            a("ds_write_b32 v4, v8")
    assert T0["ksm"] == T0["kbig"] + 32
    for i in range(8):
        ktile(T0["kbig"] + 4 * i, VQ, VS + 4 * i, None)
    ktile(T0["ksm"], VQ + 32, VS + 32, T0["ksm"] + 4)
    stamp(5)
    a("s_mov_b32 s38, 0x%x" % f2u(CSCALE))
    a("v_max_f32 v35, v%d, v%d" % (VS, VS + 1))
    for r in range(2, 32, 2): a("v_max3_f32 v35, v35, v%d, v%d" % (VS + r, VS + r + 1))
    a("v_max3_f32 v34, v%d, v%d, v%d" % (VS + 32, VS + 33, VS + 34)); a("v_max_f32 v34, v34, v%d" % (VS + 35))
    bfly("v_max_f32", 34, 36, [3, 4, 5]); bfly("v_max_f32", 35, 36, [3, 4, 5])
    a("v_mul_f32 v34, s38, v34"); a("v_mul_f32 v35, s38, v35")
    a("v_and_b32 v17, 7, v0"); a("v_lshlrev_b32 v17, 2, v17")
    a("v_add_u32 v18, %d, v17" % L_MX)
    a("s_lshl_b32 s39, s32, 6"); a("v_add_u32 v17, s39, v18")
    a("ds_write_b32 v17, v35"); a("ds_write_b32 v17, v34 offset:32")
    set_stage(2)
    if wo_early == 2:
        for t in range(16):
            a("v_mov_b32 v%d, v%d" % (VW + 4 * t, VWE + 2 * t)); a("v_mov_b32 v%d, v%d" % (VW + 4 * t + 1, VWE + 2 * t + 1))
    wait_min4(sST, "v12", 8, "1")
    for w in range(4):
        a("ds_read_b32 v%d, v18 offset:%d" % (VF + w, 64 * w)); a("ds_read_b32 v%d, v18 offset:%d" % (VF + 4 + w, 64 * w + 32))
    a("s_waitcnt lgkmcnt(0)")
    a("v_max3_f32 v35, v%d, v%d, v%d" % (VF, VF + 1, VF + 2)); a("v_max_f32 v35, v35, v%d" % (VF + 3))
    a("v_max3_f32 v34, v%d, v%d, v%d" % (VF + 4, VF + 5, VF + 6)); a("v_max_f32 v34, v34, v%d" % (VF + 7))
    a("s_cmp_eq_u32 s92, 1"); a("s_cbranch_scc1 L_twomax")
    a("v_max_f32 v35, v35, v34"); a("v_mov_b32 v34, v35")
    a("L_twomax:")
    for r in range(36):
        a("v_fma_f32 v%d, v%d, s38, -v%d" % (VS + r, VS + r, 35 if r < 32 else 34))
    for r in range(36): a("v_exp_f32 v%d, v%d" % (VS + r, VS + r))
    a("s_nop 0")
    for tl in range(9):
        b = VS + 4 * tl
        a("v_cvt_pk_bf16_f32 v%d, v%d, v%d" % (VF + 2 * tl, b, b + 1)); a("v_cvt_pk_bf16_f32 v%d, v%d, v%d" % (VF + 2 * tl + 1, b + 2, b + 3))
        a("ds_write_b64 v32, v[%d:%d] offset:%d" % (VF + 2 * tl, VF + 2 * tl + 1, 2048 * tl))
    a("v_add_f32 v34, v%d, v%d" % (VS + 32, VS + 33)); a("v_add_f32 v36, v%d, v%d" % (VS + 34, VS + 35)); a("v_add_f32 v34, v34, v36")
    n = 32
    while n > 1:
        n //= 2
        for r in range(n): a("v_add_f32 v%d, v%d, v%d" % (VS + r, VS + r, VS + n + r))
    a("v_mov_b32 v35, v%d" % VS)
    bfly("v_add_f32", 34, 36, [3, 4, 5]); bfly("v_add_f32", 35, 36, [3, 4, 5])
    a("ds_write_b32 v17, v35 offset:%d" % (L_LW - L_MX)); a("ds_write_b32 v17, v34 offset:%d" % (L_LW - L_MX + 32))
    set_stage(3)
    a("v_and_b32 v37, 7, v0"); a("v_lshlrev_b32 v37, 15, v37")
    a("v_bfe_u32 v18, v0, 3, 1"); a("v_lshl_add_u32 v37, v18, 6, v37"); a("v_lshl_add_u32 v37, v1, 4, v37")
    a("s_bfe_u32 s38, s2, 0x20005"); a("s_lshl_b32 s38, s38, 18")
    a("s_lshl_b32 s39, s32, 13"); a("s_add_u32 s38, s38, s39")
    a("s_lshr_b32 s39, s2, 7"); a("s_lshl_b32 s39, s39, 12"); a("s_add_u32 s38, s38, s39")
    a("s_and_b32 s39, s2, 31"); a("s_lshl_b32 s39, s39, 7"); a("s_add_u32 s38, s38, s39")
    a("s_add_u32 s38, s38, 0x%x" % W_IN1); gl(42, "s38")
    a("s_add_u32 s44, s42, 0x100000"); a("s_addc_u32 s45, s43, 0")
    a("s_mov_b32 s46, 0xff00ff00"); a("s_mov_b32 s47, 0xff00ff00")
    a("s_lshl_b32 s38, s2, 13"); a("s_lshl_b32 s39, s32, 11"); a("s_add_u32 s38, s38, s39")
    a("s_add_u32 s38, s38, 0x%x" % W_IN1); gl(48, "s38")
    a("v_and_b32 v49, 1, v0"); a("v_lshlrev_b32 v49, 19, v49")
    a("v_bfe_u32 v18, v0, 2, 2"); a("v_lshl_add_u32 v49, v18, 14, v49")
    a("v_bfe_u32 v18, v0, 1, 1"); a("v_lshl_add_u32 v49, v18, 6, v49"); a("v_lshl_add_u32 v49, v1, 4, v49")
    a("s_lshr_b32 s38, s2, 7"); a("s_lshl_b32 s38, s38, 20")
    a("s_lshl_b32 s39, s32, 17"); a("s_add_u32 s38, s38, s39")
    a("s_and_b32 s39, s2, 127"); a("s_lshl_b32 s39, s39, 7"); a("s_add_u32 s38, s38, s39")
    a("s_add_u32 s38, s38, 0x%x" % W_IN2); gl(50, "s38")
    a("s_add_u32 s52, s50, 0x10000"); a("s_addc_u32 s53, s51, 0")
    a("s_and_b32 s38, s2, 127"); a("s_lshl_b32 s38, s38, 14"); a("s_lshl_b32 s39, s32, 12"); a("s_add_u32 s38, s38, s39")
    a("s_add_u32 s38, s38, 0x%x" % W_IN2); gl(54, "s38")
    a("s_bfe_u32 s38, s2, 0x10005"); a("s_lshl_b32 s38, s38, 12")
    a("s_bfe_u32 s39, s2, 0x10006"); a("s_lshl_b32 s39, s39, 11"); a("s_add_u32 s38, s38, s39")
    a("s_and_b32 s39, s2, 31"); a("s_lshl_b32 s39, s39, 6"); a("s_add_u32 s38, s38, s39")
    a("s_add_u32 s56, s24, s38"); a("s_addc_u32 s57, s25, 0")
    for t in range(8):
        m = (3 << (2 * t)) * 0x00010001
        a("s_mov_b32 s%d, 0x%x" % (64 + 2 * t, m)); a("s_mov_b32 s%d, 0x%x" % (65 + 2 * t, m))
    a("v_and_b32 v50, 7, v0"); a("v_lshlrev_b32 v50, 4, v50"); a("s_lshl_b32 s38, s32, 7"); a("v_add_u32 v50, s38, v50")
    a("v_add_u32 v50, %d, v50" % L_OX)
    a("v_and_b32 v51, 1, v0"); a("v_lshlrev_b32 v51, 8, v51"); a("v_lshl_add_u32 v51, v1, 4, v51")
    a("v_add_u32 v51, %d, v51" % L_OX)
    a("v_lshrrev_b32 v52, 3, v0"); a("s_lshl_b32 s38, s32, 4"); a("v_add_u32 v52, s38, v52"); a("v_lshlrev_b32 v52, 2, v52")
    a("v_add_u32 v52, %d, v52" % L_F)
    a("v_lshlrev_b32 v55, 3, v0")
    a("v_add_co_u32 v60, vcc, 1, v60"); a("s_nop 1"); a("v_addc_co_u32 v61, vcc, 0, v61, vcc")
    VH = 136; VR = 176
    a("s_bfe_u32 s38, s2, 0x20005"); a("s_lshr_b32 s39, s32, 1"); a("s_lshl_b32 s39, s39, 2"); a("s_add_u32 s38, s38, s39")
    a("s_lshl_b32 s38, s38, 3"); a("s_mov_b64 s[58:59], 0xff"); a("s_lshl_b64 s[58:59], s[58:59], s38")
    a("s_cmp_lt_u32 s2, 128"); a("s_cselect_b64 s[58:59], -1, s[58:59]")
    for r in range(8): a("v_mov_b32 v%d, v%d" % (VR + r, VT + (r & 3)))
    for r in range(8): a("v_mov_b32 v%d, 0" % (VO + r))
    a("s_cmp_eq_u32 s92, 1"); a("s_cselect_b32 s61, %d, 0" % T0["vsm"])
    wait_min4(sST, "v12", 8, "2")
    stamp(6)
    if wo_early == 1:
        wo_reads("woE", lambda t: VW + 4 * t)
        a("s_waitcnt lgkmcnt(0)")
        set_free(str(T0["vbig"]))
    def ostore(sp, d):
        for r in range(4): a("v_cndmask_b32 v%d, v%d, v%d, s[46:47]" % (d + r, VO + r, VO + 4 + r))
        tag4(d)
        a("global_store_dwordx4 v37, v[%d:%d], s[%d:%d] sc1" % (d, d + 3, sp, sp + 1))
    a("s_mov_b32 s36, %d" % T0["vbig"])
    a("L_v:")
    a("s_and_b32 s37, s36, %d" % (NSLOT - 1)); a("s_lshl_b32 s37, s37, 13")
    a("v_add_u32 v38, s37, v28"); a("v_add_u32 v39, s37, v29")
    wait_word(sL, "v6", "v8", "s36", sleep=psleep)
    a("ds_read_b128 v[%d:%d], v33" % (VF + 8, VF + 11))
    a("ds_read_b64_tr_b16 v[%d:%d], v38" % (VF, VF + 1)); a("ds_read_b64_tr_b16 v[%d:%d], v38 offset:4096" % (VF + 2, VF + 3))
    a("ds_read_b64_tr_b16 v[%d:%d], v39" % (VF + 4, VF + 5)); a("ds_read_b64_tr_b16 v[%d:%d], v39 offset:4096" % (VF + 6, VF + 7))
    a("v_add_u32 v33, 512, v33")
    a("s_add_u32 s36, s36, 1")
    a("v_mov_b32 v8, s36")
    a("s_waitcnt lgkmcnt(2)")
    a("v_mfma_f32_16x16x32_bf16 v[%d:%d], v[%d:%d], v[%d:%d], v[%d:%d]" % (VO, VO + 3, VF, VF + 3, VF + 8, VF + 11, VO, VO + 3))
    a("s_waitcnt lgkmcnt(0)")
    a("v_mfma_f32_16x16x32_bf16 v[%d:%d], v[%d:%d], v[%d:%d], v[%d:%d]" % (VO + 4, VO + 7, VF + 4, VF + 7, VF + 8, VF + 11, VO + 4, VO + 7))
    def rdv(base):
        a("ds_read_b64_tr_b16 v[%d:%d], v38" % (base, base + 1)); a("ds_read_b64_tr_b16 v[%d:%d], v38 offset:4096" % (base + 2, base + 3))
        a("ds_read_b64_tr_b16 v[%d:%d], v39" % (base + 4, base + 5)); a("ds_read_b64_tr_b16 v[%d:%d], v39 offset:4096" % (base + 6, base + 7))
    recheck(rdv, 8, 2)
    a("ds_write_b32 v4, v8")
    a("s_cmp_eq_u32 s36, s61")
    a("s_cbranch_scc1 L_vmid")
    a("s_cmp_lt_u32 s36, %d" % VEND)
    a("s_cbranch_scc1 L_v")
    a("s_nop 2")
    ostore(42, VO + 8)
    stamp(8)
    def h1loads():
        for i in range(2):
            a("global_load_dwordx4 v[%d:%d], v48, s[48:49] offset:%d sc1" % (VR + 4 * i, VR + 4 * i + 3, 1024 * i))
    if h1pre:
        a("s_mov_b64 exec, s[58:59]"); h1loads(); a("s_mov_b64 exec, -1")
    if not wo_early: wo_reads("woE", lambda t: VW + 4 * t)
    wo_reads("woL", lambda t: VW + 4 * t + 2)
    wait_word(sHS, "v7", "v8", "0")
    a("ds_read_b32 v53, v52"); a("ds_read_b32 v54, v52 offset:32")
    stamp(9)
    poll_valid(h1loads, tagcheck(VR, 8, VH, 8), sleep=h1sleep, first=not h1pre, mask0="s[58:59]")
    stamp(10)
    a("s_waitcnt lgkmcnt(0)")
    for r in range(4): a("v_mul_f32 v%d, v%d, v53" % (VH + r, VH + r))
    for r in range(4): a("v_fmac_f32 v%d, v%d, v54" % (VH + r, VH + 4 + r))
    bfly4("v_add_f32", VH, VH + 4, [3, 4, 5])
    a("s_mov_b64 exec, 0xff")
    a("ds_write_b128 v50, v[%d:%d]" % (VH, VH + 3))
    a("s_mov_b64 exec, -1")
    a("s_waitcnt lgkmcnt(0)")
    a("s_barrier")
    for k, off in enumerate((0, 64, 128, 192)):
        a("ds_read_b128 v[%d:%d], v51 offset:%d" % (VH + 4 * k, VH + 4 * k + 3, off))
    a("s_waitcnt lgkmcnt(0)")
    for r in range(8): a("v_add_f32 v%d, v%d, v%d" % (VH + r, VH + r, VH + 8 + r))
    for r in range(4): a("v_cvt_pk_bf16_f32 v%d, v%d, v%d" % (VH + 16 + r, VH + 2 * r, VH + 2 * r + 1))
    VB = 160
    def cnd(t):
        for r in range(4): a("v_cndmask_b32 v%d, 0, v%d, s[%d:%d]" % (VB + 4 * t + r, VH + 16 + r, 64 + 2 * t, 65 + 2 * t))
    def mm(t):
        for ch in range(2):
            w = VW + 4 * (8 * ch + t); d = VO + 4 * ch
            c = "0" if t == 0 else "v[%d:%d]" % (d, d + 3)
            a("v_mfma_f32_16x16x32_bf16 v[%d:%d], v[%d:%d], v[%d:%d], %s" % (d, d + 3, w, w + 3, VB + 4 * t, VB + 4 * t + 3, c))
    if ilv:
        cnd(0)
        for t in range(8):
            if t < 7: cnd(t + 1)
            mm(t)
    else:
        for t in range(8): cnd(t)
        for t in range(8): mm(t)
    a("s_nop 6")
    tag4(VO)
    a("global_store_dwordx4 v49, v[%d:%d], s[50:51] sc1" % (VO, VO + 3))
    tag4(VO + 4)
    a("global_store_dwordx4 v49, v[%d:%d], s[52:53] sc1" % (VO + 4, VO + 7))
    stamp(11)
    a("s_cmp_ge_u32 s2, 128")
    a("s_cbranch_scc1 L_fin")
    def h2loads():
        for i in range(4):
            a("global_load_dwordx4 v[%d:%d], v48, s[54:55] offset:%d sc1" % (VR + 4 * i, VR + 4 * i + 3, 1024 * i))
    if ackw: a("s_waitcnt vmcnt(0)")
    poll_valid(h2loads, tagcheck(VR, 16, VH, 8), sleep=h2sleep)
    stamp(12)
    for r in range(8): a("v_add_f32 v%d, v%d, v%d" % (VH + r, VH + r, VH + 8 + r))
    for r in range(4): a("v_add_f32 v%d, v%d, v%d" % (VH + r, VH + r, VH + 4 + r))
    bfly4("v_add_f32", VH, VH + 4, [3, 4, 5])
    a("s_mov_b64 exec, 0xff")
    a("ds_write_b128 v50, v[%d:%d] offset:%d" % (VH, VH + 3, L_RX - L_OX))
    a("s_waitcnt lgkmcnt(0)")
    a("s_barrier")
    a("s_cmp_lg_u32 s32, 0")
    a("s_cbranch_scc1 L_fin")
    for k in range(4):
        a("ds_read_b128 v[%d:%d], v50 offset:%d" % (VH + 4 * k, VH + 4 * k + 3, L_RX - L_OX + 128 * k))
    a("s_waitcnt lgkmcnt(0)")
    for r in range(8): a("v_add_f32 v%d, v%d, v%d" % (VH + r, VH + r, VH + 8 + r))
    for r in range(4): a("v_add_f32 v%d, v%d, v%d" % (VH + r, VH + r, VH + 4 + r))
    a("v_cvt_pk_bf16_f32 v%d, v%d, v%d" % (VH + 4, VH, VH + 1)); a("v_cvt_pk_bf16_f32 v%d, v%d, v%d" % (VH + 5, VH + 2, VH + 3))
    a("global_store_dwordx2 v55, v[%d:%d], s[56:57]" % (VH + 4, VH + 5))
    a("s_cmp_lg_u32 s2, 0")
    a("s_cbranch_scc1 L_fin")
    a("s_mov_b64 exec, 1")
    a("global_store_dwordx2 v55, v[60:61], s[62:63] sc1")
    a("L_fin:")
    stamp(13)
    diag_end(2)
    stamp_flush()
    a("L_end:")
    a("s_endpgm")
    a("L_vmid:")
    a("s_nop 4")
    ostore(44, 196)
    for r in range(8): a("v_mov_b32 v%d, 0" % (VO + r))
    stamp(7)
    a("s_branch L_v")
    gen.sites = sites
    nv = 256 if (stamps or wo_early == 2 or dchk) else 216
    return (header(["grid=(256,1,1) block=(384,1,1) lds=%d" % LDS_BYTES]) + kernel_open(KNAME) + a.text()
            + RODATA + descriptor(KNAME, nv, 100, nv))

if __name__ == "__main__":
    open(sys.argv[1], "w").write(gen(**eval("dict(%s)" % (sys.argv[2] if len(sys.argv) > 2 else ""))))
```

```python
import sys, math, struct
from asmlib import *

NSLOT = 16
PBASE = NSLOT * 8192
QBASE = PBASE
SY = PBASE + 36 * 512
L_LANDED = SY
L_FREE = SY + 256
L_STAGE = SY + 1280
L_HST = SY + 2304
L_MX = SY + 2560
L_LW = SY + 2816
L_F = SY + 3072
L_OX = SY + 3328
L_RX = SY + 3840
L_LVL = SY + 4352
L_NON = SY + 4608
LDS_BYTES = SY + 4608 + 512
W_QP = 0x000000
W_ML = 0x020000
W_EP = 0x040000
W_PB = 0x050000
W_IN1 = 0x100000
W_IN2 = 0x300000
STAMP_OFF = 0x10000000
CSCALE = math.log2(math.e) / math.sqrt(128.0)
def f2u(x): return struct.unpack("<I", struct.pack("<f", x))[0]

def gen(win=20, win0=None, winT=None, tailT=0, stamps=False, wo_early=1, budget=1 << 27, psleep=0, qsleep=2, dbg='',
        ml_at=16, mlsleep=8, qg_at=14, h1sleep=0, h2sleep=0, h1pre=1, blate=0, epsc=1, ackw=1, ilv=1, qx=0, vst=0, burst=3, levels=None, cps=None, lvl0=1, thr=None, nsamp=16, redisp=4, ldpol='nt', wsoff=0, epoff=None, diag=0, dchk=0, nz_at=1, tag_at=5):
    dbg = dbg.split()
    win0 = win0 or win
    winT = winT or win
    a = Asm()
    uid = [0]
    def lab(p):
        uid[0] += 1
        return "L_%s_%d" % (p, uid[0])
    segs = [("wq", 8)]
    if wo_early == 2: segs += [("woE", 4)]
    segs += [("kbig", 32), ("ksm", 4)]
    if wo_early == 1: segs += [("woE", 4)]
    segs += [("vbig", 32), ("vsm", 4)]
    segs += [("woL", 4)] if wo_early else [("woE", 4), ("woL", 4)]
    T0 = {}; t = 0
    for n, c in segs:
        T0[n] = t; t += c
    NT = t
    VEND = T0["vsm"] + 4
    assert T0["wq"] == 0 and (T0["woE"] % NSLOT) <= NSLOT - 4 and (T0["woL"] % NSLOT) <= NSLOT - 4
    assert T0["kbig"] % 4 == 0
    def role():
        a("s_lshr_b32 s93, s2, 5"); a("s_and_b32 s92, s2, 7"); a("s_cmp_eq_u32 s92, s93"); a("s_cselect_b32 s92, 1, 0")

    sB = "s31"
    VST = 250
    def stamp(k):
        if stamps:
            a("s_memrealtime s[96:97]"); a("s_waitcnt lgkmcnt(0)"); a("v_writelane_b32 v%d, s96, %d" % (VST, k))
    def stamp_flush():
        if stamps:
            a("s_mov_b64 exec, -1")
            a("s_getreg_b32 s96, hwreg(HW_REG_XCC_ID)")
            a("v_writelane_b32 v%d, s96, 63" % VST)
            a("s_mul_i32 s96, s2, 6"); a("s_add_u32 s96, s96, s30"); a("s_lshl_b32 s96, s96, 8")
            a("v_lshl_add_u32 v251, v0, 2, s96")
            a("s_load_dwordx2 s[98:99], s[0:1], 96"); a("s_waitcnt lgkmcnt(0)")
            a("s_add_u32 s98, s98, 0x%x" % STAMP_OFF); a("s_addc_u32 s99, s99, 0")
            a("global_store_dword v251, v%d, s[98:99]" % VST)
            a("s_waitcnt vmcnt(0)")
    site = [0]; sites = []
    def diag_end(role):
        if diag:
            sk = lab("dg")
            a("s_cmp_eq_u32 s94, 0"); a("s_cbranch_scc1 " + sk)
            a("s_mov_b64 exec, 1")
            a("s_lshl_b32 s95, s2, 8"); a("s_or_b32 s95, s95, s94")
            a("v_mov_b32 v1, s95"); a("v_mov_b32 v2, 0"); a("v_mov_b32 v3, 1")
            a("global_store_dword v2, v1, s[26:27] offset:%d sc1" % (4 * role))
            a("global_atomic_add v2, v3, s[26:27] offset:%d sc1" % (4 * (4 + role)))
            a("s_waitcnt vmcnt(0)")
            a(sk + ":")
    def recheck(reads, n, phase):
        if not dchk: return
        reads(216)
        a("s_waitcnt lgkmcnt(0)")
        a("v_xor_b32 v248, v128, v216")
        for i in range(1, n): a("v_bitop3_b32 v248, v%d, v%d, v248 bitop3:0xbe" % (128 + i, 216 + i))
        a("v_cmp_ne_u32 vcc, 0, v248")
        sk = lab("rc")
        a("s_and_b64 vcc, vcc, vcc"); a("s_cbranch_scc0 " + sk)
        a("s_mov_b64 exec, 1")
        a("v_mov_b32 v246, 0"); a("v_mov_b32 v247, 1")
        a("global_atomic_add v246, v247, s[26:27] offset:%d sc1" % (4 * (8 + phase)))
        a("s_lshl_b32 s95, s36, 8"); a("s_or_b32 s95, s95, s2"); a("v_mov_b32 v247, s95")
        a("global_store_dword v246, v247, s[26:27] offset:%d sc1" % (4 * (12 + phase)))
        a("s_mov_b64 exec, -1")
        a(sk + ":")
    def budget_loop(label, cost=1):
        a("s_sub_u32 %s, %s, %d" % (sB, sB, cost))
        a("s_cbranch_scc0 %s" % label)
        a("s_mov_b32 %s, 0" % sB)
        if diag:
            site[0] += 1
            a("s_cmp_eq_u32 s94, 0"); a("s_cselect_b32 s94, %d, s94" % site[0])
            sites.append((site[0], label, len(a.l)))
    def wait_word(scache, vaddr, vtmp, thr, off=0, sleep=0):
        lp = lab("pw"); ok = lab("ok")
        a(lp + ":")
        a("s_cmp_gt_u32 %s, %s" % (scache, thr))
        a("s_cbranch_scc1 " + ok)
        if sleep: a("s_sleep %d" % sleep)
        a("ds_read_b32 %s, %s offset:%d" % (vtmp, vaddr, off))
        a("s_waitcnt lgkmcnt(0)")
        a("v_readfirstlane_b32 %s, %s" % (scache, vtmp))
        budget_loop(lp, 1 + sleep // 2)
        a(ok + ":")
    def wait_min4(scache, vaddr, vt, thr, off=0, sleep=0, cmp="s_cmp_gt_u32"):
        lp = lab("pm"); ok = lab("ok")
        a(lp + ":")
        a("%s %s, %s" % (cmp, scache, thr))
        a("s_cbranch_scc1 " + ok)
        if sleep: a("s_sleep %d" % sleep)
        a("ds_read_b128 v[%d:%d], %s offset:%d" % (vt, vt + 3, vaddr, off))
        a("s_waitcnt lgkmcnt(0)")
        a("v_min3_u32 v%d, v%d, v%d, v%d" % (vt, vt, vt + 1, vt + 2))
        a("v_min_u32 v%d, v%d, v%d" % (vt, vt, vt + 3))
        a("s_nop 0")
        a("v_readfirstlane_b32 %s, v%d" % (scache, vt))
        budget_loop(lp, 1 + sleep // 2)
        a(ok + ":")
    VT = 56
    def poll_valid(loads, check, sleep=1, first=True, mask0=None):
        if "nopoll" in dbg: return
        if first:
            if mask0: a("s_mov_b64 exec, %s" % mask0)
            loads()
        lp = lab("pv"); ok = lab("ok")
        a(lp + ":")
        a("s_mov_b64 exec, -1")
        a("s_waitcnt vmcnt(0)")
        check()
        a("s_and_b64 exec, vcc, vcc")
        a("s_cbranch_scc0 " + ok)
        if sleep: a("s_sleep %d" % sleep)
        loads()
        budget_loop(lp, 64)
        a(ok + ":")
        a("s_mov_b64 exec, -1")
        a("s_waitcnt vmcnt(0)")
    def tagcheck(base, n, dst, vtmp):
        def f():
            for i in range(n): a("v_xor_b32 v%d, v%d, v%d" % (dst + i, base + i, VT + (i & 3)))
            h = n // 2
            for c in range(2):
                r = list(range(dst + c * h, dst + (c + 1) * h))
                a("v_or3_b32 v%d, v%d, v%d, v%d" % (vtmp + c, r[0], r[1], r[2])); r = r[3:]
                while len(r) >= 2:
                    a("v_or3_b32 v%d, v%d, v%d, v%d" % (vtmp + c, vtmp + c, r[0], r[1])); r = r[2:]
                if r: a("v_or_b32 v%d, v%d, v%d" % (vtmp + c, vtmp + c, r[0]))
            a("v_bitop3_b32 v%d, v%d, v%d, s60 bitop3:0xa8" % (vtmp, vtmp, vtmp + 1))
            a("v_cmp_ne_u32 vcc, 0, v%d" % vtmp)
        return f
    def tag4(d, s=None):
        s = d if s is None else s
        for r in range(4): a("v_bfi_b32 v%d, s60, v%d, v%d" % (d + r, VT + r, s + r))
    def epoch_load():
        if wsoff: a("s_add_u32 s28, s28, 0x%x" % wsoff); a("s_addc_u32 s29, s29, 0")
    def epoch_tags():
        a("s_mov_b32 s60, 0x9e3779b1"); a("v_mul_lo_u32 v62, v60, s60")
        a("s_mov_b32 s60, 0x85ebca6b"); a("v_xor_b32 v63, v61, v62"); a("v_mul_lo_u32 v63, v63, s60")
        a("s_movk_i32 s60, 0x7ff")
        a("v_and_b32 v56, s60, v62")
        a("v_bfe_u32 v57, v62, 11, 10"); a("v_lshlrev_b32 v57, 1, v57")
        a("v_and_b32 v58, 1, v62"); a("v_xor_b32 v58, 1, v58"); a("v_or_b32 v57, v57, v58")
        a("v_lshrrev_b32 v58, 21, v62"); a("v_lshrrev_b32 v59, 21, v63")
    def bfly(op, v, vt, bits):
        for b in bits:
            if b <= 3:
                a("s_nop 1")
                a("%s_dpp v%d, v%d, v%d row_ror:%d row_mask:0xf bank_mask:0xf" % (op, v, v, v, 1 << b))
            else:
                a("v_mov_b32 v%d, v%d" % (vt, v))
                a("s_nop 1")
                a("v_permlane%d_swap_b32 v%d, v%d" % (1 << b, v, vt))
                a("%s v%d, v%d, v%d" % (op, v, v, vt))
    def bfly4(op, v, vt, bits):
        for b in bits:
            if b <= 3:
                for r in range(4):
                    a("%s_dpp v%d, v%d, v%d row_ror:%d row_mask:0xf bank_mask:0xf" % (op, v + r, v + r, v + r, 1 << b))
            else:
                for r in range(4): a("v_mov_b32 v%d, v%d" % (vt + r, v + r))
                for r in range(4): a("v_permlane%d_swap_b32 v%d, v%d" % (1 << b, v + r, vt + r))
                for r in range(4): a("%s v%d, v%d, v%d" % (op, v + r, v + r, vt + r))

    a("s_cmp_ge_u32 s2, 256")
    a("s_cbranch_scc1 L_end")
    a("s_load_dwordx16 s[4:19], s[0:1], 0")
    a("s_load_dwordx8 s[20:27], s[0:1], 64")
    a("s_load_dwordx2 s[28:29], s[0:1], 96")
    a("v_lshrrev_b32 v1, 6, v0")
    a("v_and_b32 v0, 63, v0")
    a("v_readfirstlane_b32 s30, v1")
    a("s_mov_b32 %s, %d" % (sB, budget))
    if diag: a("s_mov_b32 s94, 0")
    if stamps:
        a("v_mov_b32 v%d, 0" % VST); stamp(0)
    a("s_xor_b32 s3, s2, %d" % qx)
    a("v_lshrrev_b32 v1, 4, v0")
    a("v_and_b32 v2, 15, v0")
    a("s_cmp_lg_u32 s30, 0")
    a("s_cbranch_scc1 L_notloader")

    a("s_setprio 3")
    vA = list(range(4, 12))
    vK = [12, 13, 14, 15]; vV = [16, 17]; vWO = 18
    a("v_lshrrev_b32 v20, 3, v0"); a("v_and_b32 v21, 7, v0"); a("v_and_b32 v22, 1, v1")
    a("v_lshlrev_b32 v20, 13, v20"); a("v_lshlrev_b32 v22, 1, v22")
    a("v_xor_b32 v21, v21, v22")
    a("v_lshl_add_u32 v4, v21, 4, v20")
    a("v_xor_b32 v5, 64, v4")
    a("s_and_b32 s56, s3, 1"); a("s_lshl_b32 s56, s56, 22")
    a("s_bfe_u32 s57, s3, 0x60001"); a("s_lshl_b32 s57, s57, 7"); a("s_add_u32 s56, s56, s57")
    a("s_mov_b32 s34, 0x800000"); a("s_mov_b32 s35, 0x20000")
    a("s_mov_b32 s40, 0"); a("s_mov_b32 s41, 0")
    a("v_lshlrev_b32 v24, 2, v0"); a("v_add_u32 v24, %d, v24" % L_LANDED)
    a("v_mov_b32 v25, 0")
    a("s_cmp_lt_u32 s2, 128")
    a("s_waitcnt lgkmcnt(0)")
    a("s_cselect_b32 s32, s10, s20"); a("s_cselect_b32 s33, s11, s21")
    a("s_and_b32 s33, s33, 0xffff")
    stamp(21)
    def signal(w, j):
        js = (w - 1) % 8 or 8
        if j == js:
            d = (w - 1 - js) // 8
            if d: a("s_sub_i32 s42, s40, %d" % d); a("s_max_i32 s42, s42, 0"); a("v_mov_b32 v25, s42")
            else: a("v_mov_b32 v25, s40")
            a("ds_write_b32 v24, v25")
    def wq_tile(w, waits=True):
        for i in range(8):
            if i % 4 == 0: a("s_add_u32 m0, s41, %d" % (i * 1024)); a("s_nop 0")
            a("buffer_load_dwordx4 v%d, s[32:35], s56 offen offset:%d %s lds" % (vA[i & 1], (i % 4) * 1024, ldpol))
            a("s_add_u32 s56, s56, %d" % (64512 + (4096 if i % 4 == 3 else 0)))
            if waits:
                a("s_waitcnt vmcnt(%d)" % (w - 1)); signal(w, i + 1)
        a("s_add_u32 s40, s40, 1"); a("s_add_u32 s41, s41, 8192")
    assert win0 >= 8 * burst
    a("L_wq0:")
    wq_tile(win0, waits=False)
    a("s_cmp_lt_u32 s40, %d" % burst); a("s_cbranch_scc1 L_wq0")
    a("ds_write_b32 v24, v25")
    a("s_waitcnt lgkmcnt(0)")
    stamp(22)
    a("s_barrier")
    stamp(1)
    for i in range(4):
        a("v_add_u32 v20, %d, v1" % (4 * i)); a("v_xor_b32 v20, v20, v2"); a("v_lshlrev_b32 v20, 4, v20")
        a("v_lshl_add_u32 v%d, v1, 8, v20" % vK[i])
    for i in range(2):
        a("v_add_u32 v20, %d, v1" % (4 * i)); a("v_lshlrev_b32 v20, 1, v20"); a("v_xor_b32 v20, v20, v2")
        a("v_lshlrev_b32 v20, 4, v20"); a("v_lshl_add_u32 v%d, v1, 8, v20" % vV[i])
    a("v_lshlrev_b32 v18, 4, v0")
    a("v_mov_b32 v26, %d" % L_FREE); a("v_mov_b32 v19, %d" % L_LVL)
    a("s_cmp_lt_u32 s2, 128")
    a("s_cselect_b32 s52, s12, s22"); a("s_cselect_b32 s53, s13, s23")
    role()
    a("s_lshl_b32 s57, s2, 18")
    a("s_lshl_b32 s58, s93, 23"); a("s_bfe_u32 s59, s2, 0x20003"); a("s_lshl_b32 s55, s59, 18"); a("s_add_u32 s54, s58, s55")
    a("s_add_u32 s54, s54, %d" % ((32768 - 4096) * 256))
    a("s_lshl_b32 s55, s55, 3"); a("s_add_u32 s55, s55, s58"); a("s_lshl_b32 s58, s93, 18"); a("s_add_u32 s55, s55, s58")
    a("s_and_b32 s58, s2, 7"); a("s_lshl_b32 s58, s58, 15"); a("s_add_u32 s55, s55, s58")
    a("s_cmp_eq_u32 s92, 1")
    a("s_cselect_b32 s48, s16, s6"); a("s_cselect_b32 s49, s17, s7")
    a("s_cselect_b32 s50, s18, s8"); a("s_cselect_b32 s51, s19, s9")
    a("s_cselect_b32 s54, s54, s57")
    a("s_and_b32 s59, s2, 127"); a("s_lshl_b32 s59, s59, 16")
    a("s_mov_b32 s61, 0")
    a("L_wq1:")
    wq_tile(win0)
    a("s_cmp_lt_u32 s40, 8"); a("s_cbranch_scc1 L_wq1")
    def tile_loop(name, w, redispatch=False):
        a(name + ":")
        if "nofree" not in dbg:
            a("s_sub_i32 s42, s40, %d" % NSLOT)
            wait_min4("s61", "v26", 28, "s42", cmp="s_cmp_gt_i32")
        for h in range(2):
            if h == 0: a("s_mov_b32 m0, s41"); a("s_add_u32 s45, s56, 4096")
            else: a("s_add_u32 m0, s41, 4096"); a("s_nop 0")
            for i in range(4):
                a("buffer_load_dwordx4 v%d, s[32:35], %s offen offset:%d %s lds" % (vA[4 * h + i], "s45" if h else "s56", i * 1024, ldpol))
                a("s_waitcnt vmcnt(%d)" % (w - 1)); signal(w, 4 * h + i + 1)
        for i in range(8): a("v_xor_b32 v%d, s44, v%d" % (vA[i], vA[i]))
        a("s_add_u32 s56, s56, 8192")
        a("s_add_u32 s41, s41, 8192"); a("s_and_b32 s41, s41, %d" % (NSLOT * 8192 - 1))
        a("s_add_u32 s40, s40, 1")
        a("s_cmp_lt_u32 s40, s43")
        if redispatch:
            a("s_cbranch_scc0 L_ret")
            a("s_and_b32 s42, s40, %d" % (redisp - 1))
            a("s_cbranch_scc1 " + name)
            a("s_branch L_tile")
        else:
            a("s_cbranch_scc1 " + name)
            a("s_setpc_b64 s[46:47]")
    def seg_setup(name):
        lo, sreg, base, size = {"kbig": (48, 54, 0, 64 << 20), "ksm": (6, 55, 0, 64 << 20), "vbig": (50, 54, 0, 64 << 20), "vsm": (8, 55, 0, 64 << 20),
                                "woE": (52, 59, 0, 8 << 20), "woL": (52, 59, 32768, 8 << 20)}[name]
        a("s_mov_b32 s32, s%d" % lo); a("s_and_b32 s33, s%d, 0xffff" % (lo + 1)); a("s_mov_b32 s34, 0x%x" % size)
        a("s_add_u32 s56, s%d, %d" % (sreg, base))
        if name in ("kbig", "vbig", "woE", "woL"):
            for i in range(8):
                if name[0] == "k": a("v_mov_b32 v%d, v%d" % (vA[i], vK[i & 3]))
                elif name[0] == "v": a("v_mov_b32 v%d, v%d" % (vA[i], vV[i & 1]))
                else: a("v_xor_b32 v%d, %d, v18" % (vA[i], 32 * (i >> 1)))
            a("s_mov_b32 s44, %d" % (128 if name[0] == "w" else 0))
    stampat = {"kbig": 3, "ksm": 4, "vbig": 5, "vsm": 6}
    for name, cnt in segs[1:]:
        if name in stampat: stamp(stampat[name])
        seg_setup(name)
        end = T0[name] + cnt
        cut = NT - tailT
        if vst and name == "vbig":
            for q in range(1, 4):
                if T0[name] + 8 * q <= cut:
                    a("s_mov_b32 s43, %d" % (T0[name] + 8 * q)); a("s_call_b64 s[46:47], L_tile"); stamp(8 + q)
        if tailT and T0[name] < cut < end:
            a("s_mov_b32 s43, %d" % cut); a("s_call_b64 s[46:47], L_tile")
            a("s_mov_b32 s43, %d" % end); a("s_call_b64 s[46:47], L_tileT")
        else:
            a("s_mov_b32 s43, %d" % end)
            a("s_call_b64 s[46:47], %s" % ("L_tileT" if (tailT and T0[name] >= cut) else "L_tile"))
        if name == "vsm": stamp(7)
    wl = winT if tailT else (max(levels) if levels else win)
    done = (8 * NT - (wl - 1)) // 8
    while done < NT:
        done += 1
        a("s_waitcnt vmcnt(%d)" % (8 * (NT - done)))
        a("v_mov_b32 v25, %d" % done); a("ds_write_b32 v24, v25")
    a("s_waitcnt lgkmcnt(0)")
    stamp(8)
    diag_end(0)
    stamp_flush()
    a("s_endpgm")
    if levels:
        a("L_tile:")
        a("ds_read_b32 v27, v19")
        a("s_waitcnt lgkmcnt(0)")
        a("v_readfirstlane_b32 s42, v27")
        for k in range(1, len(levels)):
            a("s_cmp_eq_u32 s42, %d" % k); a("s_cbranch_scc1 L_tile_%d" % k)
        for k, w in enumerate(levels): tile_loop("L_tile_%d" % k, w, True)
        a("L_ret:")
        a("s_setpc_b64 s[46:47]")
    else:
        tile_loop("L_tile", win)
    if tailT: tile_loop("L_tileT", winT)

    a("L_notloader:")
    a("s_cmp_gt_u32 s30, 1")
    a("s_cbranch_scc1 L_cons")
    a("v_lshlrev_b32 v24, 2, v0"); a("v_add_u32 v24, %d, v24" % L_HST)
    a("v_mov_b32 v25, 0"); a("ds_write_b32 v24, v25")
    a("v_mov_b32 v25, %d" % lvl0); a("ds_write_b32 v24, v25 offset:%d" % (L_LVL - L_HST))
    a("v_mov_b32 v10, 0")
    a("s_memrealtime s[90:91]")
    a("s_waitcnt lgkmcnt(0)")
    a("s_cmp_lg_u32 s2, 0"); a("s_cbranch_scc1 L_nononce")
    a("s_or_b32 s90, s90, 1"); a("s_or_b32 s91, s91, 0x80000000")
    a("v_mov_b32 v60, s90"); a("v_mov_b32 v61, s91")
    a("s_mov_b64 exec, 1")
    a("global_store_dwordx2 v10, v[60:61], s[26:27] offset:128 sc1")
    a("s_mov_b64 exec, -1")
    a("L_nononce:")
    epoch_load()
    a("s_barrier")
    a("s_mov_b32 s41, 0"); a("v_mov_b32 v26, %d" % L_STAGE)
    a("s_mov_b32 s42, 0"); a("v_mov_b32 v27, %d" % L_LANDED)
    a("s_lshl_b32 s32, s2, 8")
    a("s_add_u32 s33, s32, 0x%x" % W_ML); a("s_add_u32 s38, s28, s33"); a("s_addc_u32 s39, s29, 0")
    a("s_bfe_u32 s32, s2, 0x20005"); a("s_lshl_b32 s32, s32, 13")
    a("s_bfe_u32 s33, s2, 0x30002")
    a("s_lshr_b32 s34, s2, 7"); a("s_lshl_b32 s34, s34, 3"); a("s_add_u32 s33, s33, s34"); a("s_lshl_b32 s33, s33, 4")
    a("s_add_u32 s32, s32, s33"); a("s_add_u32 s32, s32, 0x%x" % W_ML)
    a("s_add_u32 s34, s28, s32"); a("s_addc_u32 s35, s29, 0")
    a("v_lshrrev_b32 v12, 5, v0"); a("v_lshlrev_b32 v12, 15, v12")
    a("v_and_b32 v16, 31, v0"); a("v_lshl_add_u32 v12, v16, 8, v12")
    a("v_and_b32 v13, 7, v0"); a("v_lshlrev_b32 v13, 2, v13"); a("v_add_u32 v13, %d, v13" % L_MX)
    a("v_lshlrev_b32 v11, 4, v2")
    role()
    a("s_bfe_u32 s32, s2, 0x20005")
    a("s_lshl_b32 s44, 0x01010101, s32"); a("s_lshl_b32 s45, s44, 4")
    a("s_cmp_lt_u32 s2, 128")
    a("s_cselect_b32 s44, -1, s44"); a("s_cselect_b32 s45, -1, s45")
    a("s_cmp_eq_u32 s92, 1")
    a("s_cselect_b32 s48, 0xff, 0"); a("s_mov_b32 s49, 0")
    a("s_cselect_b32 s50, 0xff00, 0"); a("s_mov_b32 s51, 0")
    a("s_or_b32 s46, s50, 0xff"); a("s_mov_b32 s47, 0")
    if nz_at: wait_word("s42", "v27", "v28", str(nz_at - 1), sleep=2)
    def nzcheck():
        a("v_min_u32 v18, v60, v61"); a("v_cmp_eq_u32 vcc, 0, v18")
    poll_valid(lambda: a("global_load_dwordx2 v[60:61], v10, s[26:27] offset:128 sc1"), nzcheck, sleep=4)
    a("v_lshlrev_b32 v18, 3, v0"); a("v_add_u32 v18, %d, v18" % L_NON)
    a("ds_write_b64 v18, v[60:61]")
    a("v_mov_b32 v25, 1"); a("ds_write_b32 v24, v25")
    stamp(2)
    epoch_tags()
    a("v_mov_b32 v14, 0xff800000"); a("v_mov_b32 v15, 0"); a("v_mov_b32 v16, v62"); a("v_mov_b32 v17, v63")
    cpl = list(cps or [])
    if cpl:
        offs = [(9 + 33 * k + (16 if k >= 8 else 0)) & 255 for k in range(nsamp)]
        for k, d in enumerate(offs):
            a("s_add_u32 s%d, s2, %d" % (64 + k, d)); a("s_and_b32 s%d, s%d, 255" % (64 + k, 64 + k)); a("s_lshl_b32 s%d, s%d, 7" % (64 + k, 64 + k))
        a("s_add_u32 s52, s28, 0x%x" % W_PB); a("s_addc_u32 s53, s29, 0")
        a("s_lshl_b32 s32, s2, 7"); a("v_mov_b32 v20, s32")
        a("v_readfirstlane_b32 s54, v62")
        a("v_lshl_add_u32 v21, v0, 4, v20")
        for r in range(4): a("v_mov_b32 v%d, v62" % (64 + r))
    def checkpoints(upto):
        while cpl and cpl[0] <= upto:
            c = cpl.pop(0)
            wait_word("s42", "v27", "v28", str(c - 1), sleep=4)
            if "fullpb" in dbg:
                a("s_mov_b64 exec, 0xff")
                a("global_store_dwordx4 v21, v[64:67], s[52:53] sc1")
            elif "nopbst" not in dbg:
                a("s_mov_b64 exec, 1")
                a("global_store_dword v20, v62, s[52:53] sc1")
            a("s_mov_b64 exec, -1")
            if "nopbld" not in dbg:
                for k in range(0, nsamp): a("s_load_dword s%d, s[52:53], s%d" % (4 + k, 64 + k))
            a("s_mov_b32 s55, 0")
            a("s_waitcnt lgkmcnt(0)")
            for k in range(0, nsamp):
                a("s_cmp_eq_u32 s%d, s54" % (4 + k)); a("s_addc_u32 s55, s55, 0")
            a("s_mov_b32 s56, 0")
            for tv in thr:
                a("s_cmp_ge_u32 s55, %d" % tv); a("s_addc_u32 s56, s56, 0")
            a("v_mov_b32 v25, s56"); a("ds_write_b32 v24, v25 offset:%d" % (L_LVL - L_HST))
            if stamps: a("v_writelane_b32 v%d, s55, %d" % (VST, 32 + len(cpl)))
            a("s_add_u32 s52, s52, 0x8000"); a("s_addc_u32 s53, s53, 0")
    checkpoints(T0["ksm"] + 4)
    wait_min4("s41", "v26", 28, "2", sleep=8)
    for w in range(4):
        a("ds_read_b32 v%d, v13 offset:%d" % (32 + w, 64 * w))
        a("ds_read_b32 v%d, v13 offset:%d" % (36 + w, 64 * w + 32))
        a("ds_read_b32 v%d, v13 offset:%d" % (40 + w, L_LW - L_MX + 64 * w))
        a("ds_read_b32 v%d, v13 offset:%d" % (44 + w, L_LW - L_MX + 64 * w + 32))
    a("s_waitcnt lgkmcnt(0)")
    a("v_max3_f32 v32, v32, v33, v34"); a("v_max_f32 v32, v32, v35")
    a("v_max3_f32 v36, v36, v37, v38"); a("v_max_f32 v36, v36, v39")
    a("v_add_f32 v40, v40, v41"); a("v_add_f32 v42, v42, v43"); a("v_add_f32 v40, v40, v42")
    a("v_add_f32 v44, v44, v45"); a("v_add_f32 v46, v46, v47"); a("v_add_f32 v44, v44, v46")
    a("v_max_f32 v60, v32, v36"); a("v_add_f32 v61, v40, v44")
    a("v_cndmask_b32 v60, v60, v36, s[48:49]"); a("v_cndmask_b32 v61, v61, v44, s[48:49]")
    a("v_cndmask_b32 v60, v60, v32, s[50:51]"); a("v_cndmask_b32 v61, v61, v40, s[50:51]")
    a("s_mov_b64 exec, s[46:47]")
    a("global_store_dwordx4 v11, v[60:63], s[38:39] sc1")
    a("s_mov_b64 exec, -1")
    stamp(4)
    checkpoints(T0["vbig"] + ml_at)
    if ml_at: wait_word("s42", "v27", "v28", str(T0["vbig"] + ml_at), sleep=8)
    def mlcheck():
        a("v_xor_b32 v18, v16, v62"); a("v_bitop3_b32 v18, v17, v63, v18 bitop3:0xbe")
        a("v_cmp_ne_u32 vcc, 0, v18")
    poll_valid(lambda: a("global_load_dwordx4 v[14:17], v12, s[34:35] sc1"), mlcheck, sleep=mlsleep, mask0="s[44:45]")
    a("v_mov_b32 v17, v14")
    bfly("v_max_f32", 17, 18, [0, 1, 2, 3, 4])
    a("v_sub_f32 v14, v14, v17"); a("v_exp_f32 v14, v14"); a("s_nop 0")
    a("v_mul_f32 v15, v15, v14")
    bfly("v_add_f32", 15, 18, [0, 1, 2, 3, 4])
    a("v_rcp_f32 v15, v15"); a("s_nop 0"); a("v_mul_f32 v14, v14, v15")
    a("v_lshlrev_b32 v13, 2, v0")
    a("v_add_u32 v13, %d, v13" % L_F)
    a("ds_write_b32 v13, v14")
    a("v_mov_b32 v25, 2"); a("ds_write_b32 v24, v25")
    checkpoints(NT)
    a("s_waitcnt lgkmcnt(0)")
    stamp(5)
    diag_end(1)
    stamp_flush()
    a("s_endpgm")

    a("L_cons:")
    sL = "s33"; sHS = "s34"; sST = "s35"
    a("s_sub_u32 s32, s30, 2")
    a("s_mov_b32 s33, 0"); a("s_mov_b32 s34, 0"); a("s_mov_b32 s35, 0")
    a("s_lshl_b32 s38, s32, 2")
    a("v_lshl_add_u32 v4, v0, 4, s38")
    a("v_add_u32 v5, %d, v4" % L_STAGE); a("v_add_u32 v4, %d, v4" % L_FREE)
    a("v_mov_b32 v6, %d" % L_LANDED); a("v_mov_b32 v7, %d" % L_HST); a("v_mov_b32 v12, %d" % L_STAGE)
    a("v_mov_b32 v8, 0")
    a("ds_write_b32 v4, v8"); a("ds_write_b32 v5, v8")
    a("v_bfe_u32 v13, v0, 2, 2"); a("v_and_b32 v14, 3, v0")
    VX = 64
    a("v_and_b32 v15, 1, v0"); a("v_lshlrev_b32 v15, 11, v15"); a("v_lshl_add_u32 v15, v1, 4, v15")
    a("s_waitcnt lgkmcnt(0)")
    a("s_barrier")
    a("s_cmp_lt_u32 s2, 128")
    a("s_cselect_b32 s40, s4, s14"); a("s_cselect_b32 s41, s5, s15")
    a("s_and_b32 s38, s3, 1"); a("s_lshl_b32 s38, s38, 10")
    a("s_add_u32 s40, s40, s38"); a("s_addc_u32 s41, s41, 0")
    for s in range(16):
        a("global_load_dwordx4 v[%d:%d], v15, s[40:41] offset:%d" % (VX + 4 * s, VX + 4 * s + 3, 64 * s))
    epoch_load()
    if "nocons" in dbg:
        a("s_waitcnt vmcnt(0)")
        a("s_endpgm")
    def set_free(val):
        a("v_mov_b32 v8, %s" % val); a("ds_write_b32 v4, v8")
    def set_stage(val):
        a("v_mov_b32 v8, %d" % val); a("ds_write_b32 v5, v8")
    a("v_lshl_add_u32 v16, v1, 3, v13"); a("v_lshlrev_b32 v16, 7, v16")
    a("v_lshrrev_b32 v17, 1, v13"); a("v_and_b32 v18, 1, v1"); a("v_lshl_or_b32 v17, v18, 1, v17")
    a("v_lshlrev_b32 v17, 1, v17")
    a("v_lshrrev_b32 v18, 1, v14"); a("s_lshl_b32 s38, s32, 1"); a("v_add_u32 v18, s38, v18")
    a("v_xor_b32 v17, v17, v18"); a("v_lshl_add_u32 v16, v17, 4, v16")
    a("v_and_b32 v18, 1, v14"); a("v_lshl_add_u32 v16, v18, 3, v16")
    vKa = list(range(20, 28))
    a("v_lshrrev_b32 v17, 1, v1"); a("v_lshl_add_u32 v17, v17, 4, v2"); a("v_lshlrev_b32 v17, 8, v17")
    a("s_lshl_b32 s38, s32, 13"); a("v_add_u32 v17, s38, v17")
    a("v_and_b32 v18, 1, v1"); a("v_xor_b32 v18, v18, v2"); a("v_lshl_add_u32 v20, v18, 4, v17")
    for s in range(1, 8): a("v_xor_b32 v%d, %d, v20" % (vKa[s], 32 * s))
    a("v_lshl_add_u32 v17, v1, 2, v13")
    a("v_and_b32 v18, 7, v17"); a("v_lshlrev_b32 v18, 1, v18")
    a("v_lshrrev_b32 v19, 1, v14")
    a("v_xor_b32 v30, v18, v19")
    a("v_and_b32 v31, 1, v14"); a("v_lshlrev_b32 v31, 3, v31")
    a("v_lshl_add_u32 v30, v30, 4, v31")
    a("s_lshl_b32 s38, s32, 6")
    a("v_xor_b32 v28, s38, v30"); a("v_lshl_add_u32 v28, v17, 8, v28")
    a("v_xor_b32 v29, 32, v28")
    vWOa = list(range(40, 48))
    a("s_lshl_b32 s38, s32, 9")
    a("v_lshl_add_u32 v40, v17, 11, v30"); a("v_add_u32 v40, s38, v40")
    for t in range(1, 8): a("v_xor_b32 v%d, %d, v40" % (vWOa[t], 32 * t))
    a("v_and_b32 v17, 7, v0"); a("v_lshl_add_u32 v17, v1, 3, v17"); a("v_lshlrev_b32 v17, 4, v17")
    a("v_add_u32 v33, %d, v17" % PBASE)
    a("v_bfe_u32 v18, v0, 3, 1"); a("v_lshl_add_u32 v32, v18, 3, v33")
    a("s_lshl_b32 s38, s32, 9"); a("v_add_u32 v32, s38, v32")
    gl = lambda d, off: (a("s_add_u32 s%d, s28, %s" % (d, off)), a("s_addc_u32 s%d, s29, 0" % (d + 1)))
    a("s_lshr_b32 s38, s2, 7"); a("s_lshl_b32 s38, s38, 16")
    a("s_and_b32 s39, s3, 1"); a("s_lshl_b32 s39, s39, 14"); a("s_add_u32 s38, s38, s39")
    a("s_bfe_u32 s39, s3, 0x60001"); a("s_lshl_b32 s39, s39, 8"); a("s_add_u32 s38, s38, s39")
    a("s_lshl_b32 s39, s32, 6"); a("s_add_u32 s38, s38, s39")
    gl(40, "s38")
    a("v_and_b32 v34, 1, v0"); a("v_lshlrev_b32 v34, 15, v34"); a("v_lshl_add_u32 v34, v1, 4, v34")
    role()
    a("s_lshr_b32 s39, s2, 7"); a("s_lshl_b32 s38, s39, 15")
    a("s_bfe_u32 s39, s2, 0x20005"); a("s_lshl_b32 s39, s39, 12"); a("s_add_u32 s38, s38, s39")
    a("s_lshl_b32 s39, s32, 10"); a("s_add_u32 s38, s38, s39")
    gl(44, "s38")
    a("s_lshl_b32 s39, s92, 16"); a("s_add_u32 s38, s38, s39")
    gl(42, "s38")
    a("v_lshlrev_b32 v48, 4, v0"); a("v_add_u32 v36, 16384, v48")
    a("s_lshl_b32 s38, s32, 9"); a("s_add_u32 s38, s38, %d" % QBASE)
    a("v_lshl_add_u32 v37, v0, 3, s38")
    a("v_and_b32 v17, 7, v0"); a("v_lshlrev_b32 v17, 8, v17"); a("v_and_b32 v18, 1, v1"); a("v_lshl_add_u32 v17, v18, 4, v17")
    a("v_add_u32 v35, %d, v17" % QBASE)
    a("s_lshl_b32 s39, s92, 11"); a("v_add_u32 v38, s39, v35")
    a("s_waitcnt vmcnt(0)")
    VF = 128
    VS = 160
    VQA = 200
    VWE = 216
    for u in range(8):
        if u == tag_at:
            wait_word(sHS, "v7", "v8", "0")
            a("ds_read_b64 v[60:61], v7 offset:%d" % (L_NON - L_HST))
            a("s_waitcnt lgkmcnt(0)")
            epoch_tags()
        wait_word(sL, "v6", "v8", str(u), sleep=psleep)
        for s in range(2):
            for h in range(2):
                a("ds_read_b64_tr_b16 v[%d:%d], v16 offset:%d" % (VF + 4 * s + 2 * h, VF + 4 * s + 2 * h + 1, u * 8192 + s * 4096 + h * 512))
        a("s_waitcnt lgkmcnt(0)")
        for s in range(2):
            c = "0" if (u == 0 and s == 0) else "v[%d:%d]" % (VQA, VQA + 3)
            x = VX + 4 * (2 * u + s)
            a("v_mfma_f32_16x16x32_bf16 v[%d:%d], v[%d:%d], v[%d:%d], %s" % (VQA, VQA + 3, VF + 4 * s, VF + 4 * s + 3, x, x + 3, c))
        def rd(base, u=u):
            for s in range(2):
                for h in range(2):
                    a("ds_read_b64_tr_b16 v[%d:%d], v16 offset:%d" % (base + 4 * s + 2 * h, base + 4 * s + 2 * h + 1, u * 8192 + s * 4096 + h * 512))
        if dchk: a("s_mov_b32 s36, %d" % u)
        recheck(rd, 8, 0)
        if u < 7 or wo_early == 2: set_free(str(u + 1))
        else:
            a("s_add_u32 s36, s32, %d" % T0["kbig"]); set_free("s36")
    stamp(1)
    a("s_mov_b32 exec_lo, 0x00030003"); a("s_mov_b32 exec_hi, 0x00030003")
    a("s_nop 3")
    tag4(VQA)
    a("global_store_dwordx4 v34, v[%d:%d], s[40:41] sc1" % (VQA, VQA + 3))
    a("s_mov_b64 exec, -1")
    stamp(2)
    VO = 204
    VW = 64
    def wo_reads(name, dst):
        T = T0[name]
        wait_word(sL, "v6", "v8", str(T + 3))
        base = (T % NSLOT) * 8192
        if base >= 65536:
            for t in range(8): a("v_add_u32 v%d, 0x10000, v%d" % (vWOa[t], vWOa[t]))
        for t in range(16):
            d = dst(t)
            a("ds_read_b64_tr_b16 v[%d:%d], v%d offset:%d" % (d, d + 1, vWOa[t & 7], base % 65536 + (t >> 3) * 256))
        if base >= 65536:
            for t in range(8): a("v_subrev_u32 v%d, 0x10000, v%d" % (vWOa[t], vWOa[t]))
    VQ = 64
    for r in range(64): a("v_mov_b32 v%d, 0" % (VQ + r))
    if wo_early == 2:
        wo_reads("woE", lambda t: VWE + 2 * t)
        a("s_add_u32 s36, s32, %d" % T0["kbig"])
        a("s_waitcnt lgkmcnt(0)")
        set_free("s36")
    for r in range(8): a("v_mov_b32 v%d, v%d" % (VF + 8 + r, VT + (r & 3)))
    def qloads():
        for kh in range(2):
            a("global_load_dwordx4 v[%d:%d], v%d, s[42:43] sc1" % (VF + 4 * kh, VF + 4 * kh + 3, (48, 36)[kh]))
        sk = lab("qs")
        a("s_cmp_eq_u32 s92, 0"); a("s_cbranch_scc1 " + sk)
        for kh in range(2):
            a("global_load_dwordx4 v[%d:%d], v%d, s[44:45] sc1" % (VF + 8 + 4 * kh, VF + 8 + 4 * kh + 3, (48, 36)[kh]))
        a(sk + ":")
    if qg_at: wait_word(sL, "v6", "v8", str(qg_at - 1), sleep=psleep)
    stamp(14)
    poll_valid(qloads, tagcheck(VF, 16, VF + 16, 8), sleep=qsleep)
    stamp(3)
    for r in range(4): a("v_add_f32 v%d, v%d, v%d" % (VF + r, VF + 16 + r, VF + 20 + r))
    for r in range(4): a("v_add_f32 v%d, v%d, v%d" % (VF + 4 + r, VF + 24 + r, VF + 28 + r))
    for r in range(4): a("v_cvt_pk_bf16_f32 v%d, v%d, v%d" % (VF + 16 + r, VF + 2 * r, VF + 2 * r + 1))
    a("ds_write_b64 v37, v[%d:%d]" % (VF + 16, VF + 17)); a("ds_write_b64 v37, v[%d:%d] offset:2048" % (VF + 18, VF + 19))
    set_stage(1)
    wait_min4(sST, "v12", 8, "0")
    a("s_mov_b32 exec_lo, 0x00ff00ff"); a("s_mov_b32 exec_hi, 0xff00ff00")
    for part in range(2):
        for s in range(8):
            d = VQ + 32 * part + 4 * s
            a("ds_read_b128 v[%d:%d], v%d offset:%d" % (d, d + 3, (35, 38)[part], 32 * s))
    a("s_mov_b64 exec, -1")
    stamp(4)
    hi = [False]
    def ktile(Tbase, q, sdst, nxt):
        a("s_add_u32 s36, s32, %d" % Tbase)
        wait_word(sL, "v6", "v8", "s36", sleep=psleep)
        sl = Tbase % NSLOT
        want_hi = sl >= 8
        if want_hi != hi[0]:
            for s in range(8): a("v_xor_b32 v%d, 0x10000, v%d" % (vKa[s], vKa[s]))
            hi[0] = want_hi
        for s in range(8):
            a("ds_read_b128 v[%d:%d], v%d offset:%d" % (VF + 4 * s, VF + 4 * s + 3, vKa[s], (sl % 8) * 8192))
        if nxt is None: a("s_add_u32 s36, s36, 4")
        else: a("s_mov_b32 s36, %d" % nxt)
        a("v_mov_b32 v8, s36")
        for s in range(8):
            a("s_waitcnt lgkmcnt(%d)" % (7 - s))
            if s == 7 and not dchk: a("ds_write_b32 v4, v8")
            c = "0" if s == 0 else "v[%d:%d]" % (sdst, sdst + 3)
            a("v_mfma_f32_16x16x32_bf16 v[%d:%d], v[%d:%d], v[%d:%d], %s" % (sdst, sdst + 3, VF + 4 * s, VF + 4 * s + 3, q + 4 * s, q + 4 * s + 3, c))
        if dchk:
            def rd(base):
                for s in range(7):
                    a("ds_read_b128 v[%d:%d], v%d offset:%d" % (base + 4 * s, base + 4 * s + 3, vKa[s], (sl % 8) * 8192))
            recheck(rd, 28, 1)
            a("ds_write_b32 v4, v8")
    assert T0["ksm"] == T0["kbig"] + 32
    for i in range(8):
        ktile(T0["kbig"] + 4 * i, VQ, VS + 4 * i, None)
    ktile(T0["ksm"], VQ + 32, VS + 32, T0["ksm"] + 4)
    stamp(5)
    a("s_mov_b32 s38, 0x%x" % f2u(CSCALE))
    a("v_max_f32 v35, v%d, v%d" % (VS, VS + 1))
    for r in range(2, 32, 2): a("v_max3_f32 v35, v35, v%d, v%d" % (VS + r, VS + r + 1))
    a("v_max3_f32 v34, v%d, v%d, v%d" % (VS + 32, VS + 33, VS + 34)); a("v_max_f32 v34, v34, v%d" % (VS + 35))
    bfly("v_max_f32", 34, 36, [3, 4, 5]); bfly("v_max_f32", 35, 36, [3, 4, 5])
    a("v_mul_f32 v34, s38, v34"); a("v_mul_f32 v35, s38, v35")
    a("v_and_b32 v17, 7, v0"); a("v_lshlrev_b32 v17, 2, v17")
    a("v_add_u32 v18, %d, v17" % L_MX)
    a("s_lshl_b32 s39, s32, 6"); a("v_add_u32 v17, s39, v18")
    a("ds_write_b32 v17, v35"); a("ds_write_b32 v17, v34 offset:32")
    set_stage(2)
    if wo_early == 2:
        for t in range(16):
            a("v_mov_b32 v%d, v%d" % (VW + 4 * t, VWE + 2 * t)); a("v_mov_b32 v%d, v%d" % (VW + 4 * t + 1, VWE + 2 * t + 1))
    wait_min4(sST, "v12", 8, "1")
    for w in range(4):
        a("ds_read_b32 v%d, v18 offset:%d" % (VF + w, 64 * w)); a("ds_read_b32 v%d, v18 offset:%d" % (VF + 4 + w, 64 * w + 32))
    a("s_waitcnt lgkmcnt(0)")
    a("v_max3_f32 v35, v%d, v%d, v%d" % (VF, VF + 1, VF + 2)); a("v_max_f32 v35, v35, v%d" % (VF + 3))
    a("v_max3_f32 v34, v%d, v%d, v%d" % (VF + 4, VF + 5, VF + 6)); a("v_max_f32 v34, v34, v%d" % (VF + 7))
    a("s_cmp_eq_u32 s92, 1"); a("s_cbranch_scc1 L_twomax")
    a("v_max_f32 v35, v35, v34"); a("v_mov_b32 v34, v35")
    a("L_twomax:")
    for r in range(36):
        a("v_fma_f32 v%d, v%d, s38, -v%d" % (VS + r, VS + r, 35 if r < 32 else 34))
    for r in range(36): a("v_exp_f32 v%d, v%d" % (VS + r, VS + r))
    a("s_nop 0")
    for tl in range(9):
        b = VS + 4 * tl
        a("v_cvt_pk_bf16_f32 v%d, v%d, v%d" % (VF + 2 * tl, b, b + 1)); a("v_cvt_pk_bf16_f32 v%d, v%d, v%d" % (VF + 2 * tl + 1, b + 2, b + 3))
        a("ds_write_b64 v32, v[%d:%d] offset:%d" % (VF + 2 * tl, VF + 2 * tl + 1, 2048 * tl))
    a("v_add_f32 v34, v%d, v%d" % (VS + 32, VS + 33)); a("v_add_f32 v36, v%d, v%d" % (VS + 34, VS + 35)); a("v_add_f32 v34, v34, v36")
    n = 32
    while n > 1:
        n //= 2
        for r in range(n): a("v_add_f32 v%d, v%d, v%d" % (VS + r, VS + r, VS + n + r))
    a("v_mov_b32 v35, v%d" % VS)
    bfly("v_add_f32", 34, 36, [3, 4, 5]); bfly("v_add_f32", 35, 36, [3, 4, 5])
    a("ds_write_b32 v17, v35 offset:%d" % (L_LW - L_MX)); a("ds_write_b32 v17, v34 offset:%d" % (L_LW - L_MX + 32))
    set_stage(3)
    a("v_and_b32 v37, 7, v0"); a("v_lshlrev_b32 v37, 15, v37")
    a("v_bfe_u32 v18, v0, 3, 1"); a("v_lshl_add_u32 v37, v18, 6, v37"); a("v_lshl_add_u32 v37, v1, 4, v37")
    a("s_bfe_u32 s38, s2, 0x20005"); a("s_lshl_b32 s38, s38, 18")
    a("s_lshl_b32 s39, s32, 13"); a("s_add_u32 s38, s38, s39")
    a("s_lshr_b32 s39, s2, 7"); a("s_lshl_b32 s39, s39, 12"); a("s_add_u32 s38, s38, s39")
    a("s_and_b32 s39, s2, 31"); a("s_lshl_b32 s39, s39, 7"); a("s_add_u32 s38, s38, s39")
    a("s_add_u32 s38, s38, 0x%x" % W_IN1); gl(42, "s38")
    a("s_add_u32 s44, s42, 0x100000"); a("s_addc_u32 s45, s43, 0")
    a("s_mov_b32 s46, 0xff00ff00"); a("s_mov_b32 s47, 0xff00ff00")
    a("s_lshl_b32 s38, s2, 13"); a("s_lshl_b32 s39, s32, 11"); a("s_add_u32 s38, s38, s39")
    a("s_add_u32 s38, s38, 0x%x" % W_IN1); gl(48, "s38")
    a("v_and_b32 v49, 1, v0"); a("v_lshlrev_b32 v49, 19, v49")
    a("v_bfe_u32 v18, v0, 2, 2"); a("v_lshl_add_u32 v49, v18, 14, v49")
    a("v_bfe_u32 v18, v0, 1, 1"); a("v_lshl_add_u32 v49, v18, 6, v49"); a("v_lshl_add_u32 v49, v1, 4, v49")
    a("s_lshr_b32 s38, s2, 7"); a("s_lshl_b32 s38, s38, 20")
    a("s_lshl_b32 s39, s32, 17"); a("s_add_u32 s38, s38, s39")
    a("s_and_b32 s39, s2, 127"); a("s_lshl_b32 s39, s39, 7"); a("s_add_u32 s38, s38, s39")
    a("s_add_u32 s38, s38, 0x%x" % W_IN2); gl(50, "s38")
    a("s_add_u32 s52, s50, 0x10000"); a("s_addc_u32 s53, s51, 0")
    a("s_and_b32 s38, s2, 127"); a("s_lshl_b32 s38, s38, 14"); a("s_lshl_b32 s39, s32, 12"); a("s_add_u32 s38, s38, s39")
    a("s_add_u32 s38, s38, 0x%x" % W_IN2); gl(54, "s38")
    a("s_bfe_u32 s38, s2, 0x10005"); a("s_lshl_b32 s38, s38, 12")
    a("s_bfe_u32 s39, s2, 0x10006"); a("s_lshl_b32 s39, s39, 11"); a("s_add_u32 s38, s38, s39")
    a("s_and_b32 s39, s2, 31"); a("s_lshl_b32 s39, s39, 6"); a("s_add_u32 s38, s38, s39")
    a("s_add_u32 s56, s24, s38"); a("s_addc_u32 s57, s25, 0")
    for t in range(8):
        m = (3 << (2 * t)) * 0x00010001
        a("s_mov_b32 s%d, 0x%x" % (64 + 2 * t, m)); a("s_mov_b32 s%d, 0x%x" % (65 + 2 * t, m))
    a("v_and_b32 v50, 7, v0"); a("v_lshlrev_b32 v50, 4, v50"); a("s_lshl_b32 s38, s32, 7"); a("v_add_u32 v50, s38, v50")
    a("v_add_u32 v50, %d, v50" % L_OX)
    a("v_and_b32 v51, 1, v0"); a("v_lshlrev_b32 v51, 8, v51"); a("v_lshl_add_u32 v51, v1, 4, v51")
    a("v_add_u32 v51, %d, v51" % L_OX)
    a("v_lshrrev_b32 v52, 3, v0"); a("s_lshl_b32 s38, s32, 4"); a("v_add_u32 v52, s38, v52"); a("v_lshlrev_b32 v52, 2, v52")
    a("v_add_u32 v52, %d, v52" % L_F)
    a("v_lshlrev_b32 v55, 3, v0")
    VH = 136; VR = 176
    a("s_bfe_u32 s38, s2, 0x20005"); a("s_lshr_b32 s39, s32, 1"); a("s_lshl_b32 s39, s39, 2"); a("s_add_u32 s38, s38, s39")
    a("s_lshl_b32 s38, s38, 3"); a("s_mov_b64 s[58:59], 0xff"); a("s_lshl_b64 s[58:59], s[58:59], s38")
    a("s_cmp_lt_u32 s2, 128"); a("s_cselect_b64 s[58:59], -1, s[58:59]")
    for r in range(8): a("v_mov_b32 v%d, v%d" % (VR + r, VT + (r & 3)))
    for r in range(8): a("v_mov_b32 v%d, 0" % (VO + r))
    a("s_cmp_eq_u32 s92, 1"); a("s_cselect_b32 s61, %d, 0" % T0["vsm"])
    wait_min4(sST, "v12", 8, "2")
    stamp(6)
    if wo_early == 1:
        wo_reads("woE", lambda t: VW + 4 * t)
        a("s_waitcnt lgkmcnt(0)")
        set_free(str(T0["vbig"]))
    def ostore(sp, d):
        for r in range(4): a("v_cndmask_b32 v%d, v%d, v%d, s[46:47]" % (d + r, VO + r, VO + 4 + r))
        tag4(d)
        a("global_store_dwordx4 v37, v[%d:%d], s[%d:%d] sc1" % (d, d + 3, sp, sp + 1))
    a("s_mov_b32 s36, %d" % T0["vbig"])
    a("L_v:")
    a("s_and_b32 s37, s36, %d" % (NSLOT - 1)); a("s_lshl_b32 s37, s37, 13")
    a("v_add_u32 v38, s37, v28"); a("v_add_u32 v39, s37, v29")
    wait_word(sL, "v6", "v8", "s36", sleep=psleep)
    a("ds_read_b128 v[%d:%d], v33" % (VF + 8, VF + 11))
    a("ds_read_b64_tr_b16 v[%d:%d], v38" % (VF, VF + 1)); a("ds_read_b64_tr_b16 v[%d:%d], v38 offset:4096" % (VF + 2, VF + 3))
    a("ds_read_b64_tr_b16 v[%d:%d], v39" % (VF + 4, VF + 5)); a("ds_read_b64_tr_b16 v[%d:%d], v39 offset:4096" % (VF + 6, VF + 7))
    a("v_add_u32 v33, 512, v33")
    a("s_add_u32 s36, s36, 1")
    a("v_mov_b32 v8, s36")
    a("s_waitcnt lgkmcnt(2)")
    a("v_mfma_f32_16x16x32_bf16 v[%d:%d], v[%d:%d], v[%d:%d], v[%d:%d]" % (VO, VO + 3, VF, VF + 3, VF + 8, VF + 11, VO, VO + 3))
    a("s_waitcnt lgkmcnt(0)")
    a("v_mfma_f32_16x16x32_bf16 v[%d:%d], v[%d:%d], v[%d:%d], v[%d:%d]" % (VO + 4, VO + 7, VF + 4, VF + 7, VF + 8, VF + 11, VO + 4, VO + 7))
    def rdv(base):
        a("ds_read_b64_tr_b16 v[%d:%d], v38" % (base, base + 1)); a("ds_read_b64_tr_b16 v[%d:%d], v38 offset:4096" % (base + 2, base + 3))
        a("ds_read_b64_tr_b16 v[%d:%d], v39" % (base + 4, base + 5)); a("ds_read_b64_tr_b16 v[%d:%d], v39 offset:4096" % (base + 6, base + 7))
    recheck(rdv, 8, 2)
    a("ds_write_b32 v4, v8")
    a("s_cmp_eq_u32 s36, s61")
    a("s_cbranch_scc1 L_vmid")
    a("s_cmp_lt_u32 s36, %d" % VEND)
    a("s_cbranch_scc1 L_v")
    a("s_nop 2")
    ostore(42, VO + 8)
    stamp(8)
    def h1loads():
        for i in range(2):
            a("global_load_dwordx4 v[%d:%d], v48, s[48:49] offset:%d sc1" % (VR + 4 * i, VR + 4 * i + 3, 1024 * i))
    if h1pre:
        a("s_mov_b64 exec, s[58:59]"); h1loads(); a("s_mov_b64 exec, -1")
    if not wo_early: wo_reads("woE", lambda t: VW + 4 * t)
    wo_reads("woL", lambda t: VW + 4 * t + 2)
    wait_word(sHS, "v7", "v8", "1")
    a("ds_read_b32 v53, v52"); a("ds_read_b32 v54, v52 offset:32")
    stamp(9)
    poll_valid(h1loads, tagcheck(VR, 8, VH, 8), sleep=h1sleep, first=not h1pre, mask0="s[58:59]")
    stamp(10)
    a("s_waitcnt lgkmcnt(0)")
    for r in range(4): a("v_mul_f32 v%d, v%d, v53" % (VH + r, VH + r))
    for r in range(4): a("v_fmac_f32 v%d, v%d, v54" % (VH + r, VH + 4 + r))
    bfly4("v_add_f32", VH, VH + 4, [3, 4, 5])
    a("s_mov_b64 exec, 0xff")
    a("ds_write_b128 v50, v[%d:%d]" % (VH, VH + 3))
    a("s_mov_b64 exec, -1")
    a("s_waitcnt lgkmcnt(0)")
    a("s_barrier")
    for k, off in enumerate((0, 64, 128, 192)):
        a("ds_read_b128 v[%d:%d], v51 offset:%d" % (VH + 4 * k, VH + 4 * k + 3, off))
    a("s_waitcnt lgkmcnt(0)")
    for r in range(8): a("v_add_f32 v%d, v%d, v%d" % (VH + r, VH + r, VH + 8 + r))
    for r in range(4): a("v_cvt_pk_bf16_f32 v%d, v%d, v%d" % (VH + 16 + r, VH + 2 * r, VH + 2 * r + 1))
    VB = 160
    def cnd(t):
        for r in range(4): a("v_cndmask_b32 v%d, 0, v%d, s[%d:%d]" % (VB + 4 * t + r, VH + 16 + r, 64 + 2 * t, 65 + 2 * t))
    def mm(t):
        for ch in range(2):
            w = VW + 4 * (8 * ch + t); d = VO + 4 * ch
            c = "0" if t == 0 else "v[%d:%d]" % (d, d + 3)
            a("v_mfma_f32_16x16x32_bf16 v[%d:%d], v[%d:%d], v[%d:%d], %s" % (d, d + 3, w, w + 3, VB + 4 * t, VB + 4 * t + 3, c))
    if ilv:
        cnd(0)
        for t in range(8):
            if t < 7: cnd(t + 1)
            mm(t)
    else:
        for t in range(8): cnd(t)
        for t in range(8): mm(t)
    a("s_nop 6")
    tag4(VO)
    a("global_store_dwordx4 v49, v[%d:%d], s[50:51] sc1" % (VO, VO + 3))
    tag4(VO + 4)
    a("global_store_dwordx4 v49, v[%d:%d], s[52:53] sc1" % (VO + 4, VO + 7))
    stamp(11)
    a("s_cmp_ge_u32 s2, 128")
    a("s_cbranch_scc1 L_fin")
    def h2loads():
        for i in range(4):
            a("global_load_dwordx4 v[%d:%d], v48, s[54:55] offset:%d sc1" % (VR + 4 * i, VR + 4 * i + 3, 1024 * i))
    if ackw: a("s_waitcnt vmcnt(0)")
    poll_valid(h2loads, tagcheck(VR, 16, VH, 8), sleep=h2sleep)
    stamp(12)
    for r in range(8): a("v_add_f32 v%d, v%d, v%d" % (VH + r, VH + r, VH + 8 + r))
    for r in range(4): a("v_add_f32 v%d, v%d, v%d" % (VH + r, VH + r, VH + 4 + r))
    bfly4("v_add_f32", VH, VH + 4, [3, 4, 5])
    a("s_mov_b64 exec, 0xff")
    a("ds_write_b128 v50, v[%d:%d] offset:%d" % (VH, VH + 3, L_RX - L_OX))
    a("s_waitcnt lgkmcnt(0)")
    a("s_barrier")
    a("s_cmp_lg_u32 s32, 0")
    a("s_cbranch_scc1 L_fin")
    for k in range(4):
        a("ds_read_b128 v[%d:%d], v50 offset:%d" % (VH + 4 * k, VH + 4 * k + 3, L_RX - L_OX + 128 * k))
    a("s_waitcnt lgkmcnt(0)")
    for r in range(8): a("v_add_f32 v%d, v%d, v%d" % (VH + r, VH + r, VH + 8 + r))
    for r in range(4): a("v_add_f32 v%d, v%d, v%d" % (VH + r, VH + r, VH + 4 + r))
    a("v_cvt_pk_bf16_f32 v%d, v%d, v%d" % (VH + 4, VH, VH + 1)); a("v_cvt_pk_bf16_f32 v%d, v%d, v%d" % (VH + 5, VH + 2, VH + 3))
    a("global_store_dwordx2 v55, v[%d:%d], s[56:57]" % (VH + 4, VH + 5))
    a("L_fin:")
    stamp(13)
    diag_end(2)
    stamp_flush()
    a("L_end:")
    a("s_endpgm")
    a("L_vmid:")
    a("s_nop 4")
    ostore(44, 196)
    for r in range(8): a("v_mov_b32 v%d, 0" % (VO + r))
    stamp(7)
    a("s_branch L_v")
    gen.sites = sites
    nv = 256 if (stamps or wo_early == 2 or dchk) else 216
    return (header(["grid=(256,1,1) block=(384,1,1) lds=%d" % LDS_BYTES]) + kernel_open(KNAME) + a.text()
            + RODATA + descriptor(KNAME, nv, 100, nv))

if __name__ == "__main__":
    open(sys.argv[1], "w").write(gen(**eval("dict(%s)" % (sys.argv[2] if len(sys.argv) > 2 else ""))))
```

```python
import sys, math, struct
from asmlib import *

NSLOT = 16
PBASE = NSLOT * 8192
QBASE = PBASE
XBASE = PBASE + 8192
SY = PBASE + 36 * 512
L_LANDED = SY
L_FREE = SY + 256
L_STAGE = SY + 1280
L_HST = SY + 2304
L_MX = SY + 2560
L_LW = SY + 2816
L_F = SY + 3072
L_OX = SY + 3328
L_RX = SY + 3840
L_LVL = SY + 4352
L_NON = SY + 4608
LDS_BYTES = SY + 4608 + 512
W_QP = 0x000000
W_ML = 0x020000
W_EP = 0x040000
W_PB = 0x050000
W_IN1 = 0x100000
GAP = 0x10000
W_IN2 = 0x300000 + GAP
STAMP_OFF = 0x10000000
CSCALE = math.log2(math.e) / math.sqrt(128.0)
def f2u(x): return struct.unpack("<I", struct.pack("<f", x))[0]

def gen(win=20, win0=None, winT=None, tailT=0, stamps=False, wo_early=1, budget=1 << 27, psleep=0, qsleep=2, dbg='',
        ml_at=16, mlsleep=8, qg_at=14, h1sleep=0, h2sleep=0, h1pre=1, blate=0, epsc=1, ackw=1, ilv=1, qx=0, vst=0, burst=3, levels=None, cps=None, lvl0=1, thr=None, nsamp=16, redisp=4, ldpol='nt', wsoff=0, epoff=None, diag=0, dchk=0, nz_at=1, tag_at=5, touch=0, bar_at=3, cbar=0, rank1=0):
    dbg = dbg.split()
    win0 = win0 or win
    winT = winT or win
    a = Asm()
    uid = [0]
    def lab(p):
        uid[0] += 1
        return "L_%s_%d" % (p, uid[0])
    segs = [("wq", 8)]
    if wo_early == 2: segs += [("woE", 4)]
    segs += [("kbig", 32), ("ksm", 4)]
    if wo_early == 1: segs += [("woE", 4)]
    segs += [("vbig", 32), ("vsm", 4)]
    segs += [("woL", 4)] if wo_early else [("woE", 4), ("woL", 4)]
    T0 = {}; t = 0
    for n, c in segs:
        T0[n] = t; t += c
    NT = t
    VEND = T0["vsm"] + 4
    assert T0["wq"] == 0 and (T0["woE"] % NSLOT) <= NSLOT - 4 and (T0["woL"] % NSLOT) <= NSLOT - 4
    assert T0["kbig"] % 4 == 0
    def role():
        a("s_lshr_b32 s93, s2, 5"); a("s_and_b32 s92, s2, 7"); a("s_cmp_eq_u32 s92, s93"); a("s_cselect_b32 s92, 1, 0")

    def offsets():
        a("s_lshl_b32 s57, s2, 18")
        a("s_lshl_b32 s58, s93, 23"); a("s_bfe_u32 s59, s2, 0x20003"); a("s_lshl_b32 s55, s59, 18"); a("s_add_u32 s54, s58, s55")
        a("s_add_u32 s54, s54, %d" % ((32768 - 4096) * 256))
        a("s_lshl_b32 s55, s55, 3"); a("s_add_u32 s55, s55, s58"); a("s_lshl_b32 s58, s93, 18"); a("s_add_u32 s55, s55, s58")
        a("s_and_b32 s58, s2, 7"); a("s_lshl_b32 s58, s58, 15"); a("s_add_u32 s55, s55, s58")
        a("s_cmp_eq_u32 s92, 1")
        a("s_cselect_b32 s48, s16, s6"); a("s_cselect_b32 s49, s17, s7")
        a("s_cselect_b32 s50, s18, s8"); a("s_cselect_b32 s51, s19, s9")
        a("s_cselect_b32 s54, s54, s57")
        a("s_and_b32 s59, s2, 127"); a("s_lshl_b32 s59, s59, 16")

    sB = "s31"
    VST = 250
    def stamp(k):
        if stamps:
            a("s_memrealtime s[96:97]"); a("s_waitcnt lgkmcnt(0)"); a("v_writelane_b32 v%d, s96, %d" % (VST, k))
    def stamp_flush():
        if stamps:
            a("s_mov_b64 exec, -1")
            a("s_getreg_b32 s96, hwreg(HW_REG_XCC_ID)")
            a("v_writelane_b32 v%d, s96, 63" % VST)
            a("s_mul_i32 s96, s2, 6"); a("s_add_u32 s96, s96, s30"); a("s_lshl_b32 s96, s96, 8")
            a("v_lshl_add_u32 v251, v0, 2, s96")
            a("s_load_dwordx2 s[98:99], s[0:1], 96"); a("s_waitcnt lgkmcnt(0)")
            a("s_add_u32 s98, s98, 0x%x" % STAMP_OFF); a("s_addc_u32 s99, s99, 0")
            a("global_store_dword v251, v%d, s[98:99]" % VST)
            a("s_waitcnt vmcnt(0)")
    site = [0]; sites = []
    def diag_end(role):
        if diag:
            sk = lab("dg")
            a("s_cmp_eq_u32 s94, 0"); a("s_cbranch_scc1 " + sk)
            a("s_mov_b64 exec, 1")
            a("s_lshl_b32 s95, s2, 8"); a("s_or_b32 s95, s95, s94")
            a("v_mov_b32 v1, s95"); a("v_mov_b32 v2, 0"); a("v_mov_b32 v3, 1")
            a("global_store_dword v2, v1, s[26:27] offset:%d sc1" % (4 * role))
            a("global_atomic_add v2, v3, s[26:27] offset:%d sc1" % (4 * (4 + role)))
            a("s_waitcnt vmcnt(0)")
            a(sk + ":")
    def recheck(reads, n, phase):
        if not dchk: return
        reads(216)
        a("s_waitcnt lgkmcnt(0)")
        a("v_xor_b32 v248, v128, v216")
        for i in range(1, n): a("v_bitop3_b32 v248, v%d, v%d, v248 bitop3:0xbe" % (128 + i, 216 + i))
        a("v_cmp_ne_u32 vcc, 0, v248")
        sk = lab("rc")
        a("s_and_b64 vcc, vcc, vcc"); a("s_cbranch_scc0 " + sk)
        a("s_mov_b64 exec, 1")
        a("v_mov_b32 v246, 0"); a("v_mov_b32 v247, 1")
        a("global_atomic_add v246, v247, s[26:27] offset:%d sc1" % (4 * (8 + phase)))
        a("s_lshl_b32 s95, s36, 8"); a("s_or_b32 s95, s95, s2"); a("v_mov_b32 v247, s95")
        a("global_store_dword v246, v247, s[26:27] offset:%d sc1" % (4 * (12 + phase)))
        a("s_mov_b64 exec, -1")
        a(sk + ":")
    def budget_loop(label, cost=1):
        a("s_sub_u32 %s, %s, %d" % (sB, sB, cost))
        a("s_cbranch_scc0 %s" % label)
        a("s_mov_b32 %s, 0" % sB)
        if diag:
            site[0] += 1
            a("s_cmp_eq_u32 s94, 0"); a("s_cselect_b32 s94, %d, s94" % site[0])
            sites.append((site[0], label, len(a.l)))
    def wait_word(scache, vaddr, vtmp, thr, off=0, sleep=0):
        lp = lab("pw"); ok = lab("ok")
        a(lp + ":")
        a("s_cmp_gt_u32 %s, %s" % (scache, thr))
        a("s_cbranch_scc1 " + ok)
        if sleep: a("s_sleep %d" % sleep)
        a("ds_read_b32 %s, %s offset:%d" % (vtmp, vaddr, off))
        a("s_waitcnt lgkmcnt(0)")
        a("v_readfirstlane_b32 %s, %s" % (scache, vtmp))
        budget_loop(lp, 1 + sleep // 2)
        a(ok + ":")
    def wait_min4(scache, vaddr, vt, thr, off=0, sleep=0, cmp="s_cmp_gt_u32"):
        lp = lab("pm"); ok = lab("ok")
        a(lp + ":")
        a("%s %s, %s" % (cmp, scache, thr))
        a("s_cbranch_scc1 " + ok)
        if sleep: a("s_sleep %d" % sleep)
        a("ds_read_b128 v[%d:%d], %s offset:%d" % (vt, vt + 3, vaddr, off))
        a("s_waitcnt lgkmcnt(0)")
        a("v_min3_u32 v%d, v%d, v%d, v%d" % (vt, vt, vt + 1, vt + 2))
        a("v_min_u32 v%d, v%d, v%d" % (vt, vt, vt + 3))
        a("s_nop 0")
        a("v_readfirstlane_b32 %s, v%d" % (scache, vt))
        budget_loop(lp, 1 + sleep // 2)
        a(ok + ":")
    VT = 56
    def poll_valid(loads, check, sleep=1, first=True, mask0=None):
        if "nopoll" in dbg: return
        if first:
            if mask0: a("s_mov_b64 exec, %s" % mask0)
            loads()
        lp = lab("pv"); ok = lab("ok")
        a(lp + ":")
        a("s_mov_b64 exec, -1")
        a("s_waitcnt vmcnt(0)")
        check()
        a("s_and_b64 exec, vcc, vcc")
        a("s_cbranch_scc0 " + ok)
        if sleep: a("s_sleep %d" % sleep)
        loads()
        budget_loop(lp, 64)
        a(ok + ":")
        a("s_mov_b64 exec, -1")
        a("s_waitcnt vmcnt(0)")
    def tagcheck(base, n, dst, vtmp):
        def f():
            for i in range(n): a("v_xor_b32 v%d, v%d, v%d" % (dst + i, base + i, VT + (i & 3)))
            h = n // 2
            for c in range(2):
                r = list(range(dst + c * h, dst + (c + 1) * h))
                a("v_or3_b32 v%d, v%d, v%d, v%d" % (vtmp + c, r[0], r[1], r[2])); r = r[3:]
                while len(r) >= 2:
                    a("v_or3_b32 v%d, v%d, v%d, v%d" % (vtmp + c, vtmp + c, r[0], r[1])); r = r[2:]
                if r: a("v_or_b32 v%d, v%d, v%d" % (vtmp + c, vtmp + c, r[0]))
            a("v_bitop3_b32 v%d, v%d, v%d, s60 bitop3:0xa8" % (vtmp, vtmp, vtmp + 1))
            a("v_cmp_ne_u32 vcc, 0, v%d" % vtmp)
        return f
    def tag4(d, s=None):
        s = d if s is None else s
        for r in range(4): a("v_bfi_b32 v%d, s60, v%d, v%d" % (d + r, VT + r, s + r))
    def epoch_load():
        if wsoff: a("s_add_u32 s28, s28, 0x%x" % wsoff); a("s_addc_u32 s29, s29, 0")
    def epoch_tags():
        a("s_mov_b32 s60, 0x9e3779b1"); a("v_mul_lo_u32 v62, v60, s60")
        a("s_mov_b32 s60, 0x85ebca6b"); a("v_xor_b32 v63, v61, v62"); a("v_mul_lo_u32 v63, v63, s60")
        a("s_movk_i32 s60, 0x7ff")
        a("v_and_b32 v56, s60, v62")
        a("v_bfe_u32 v57, v62, 11, 10"); a("v_lshlrev_b32 v57, 1, v57")
        a("v_and_b32 v58, 1, v62"); a("v_xor_b32 v58, 1, v58"); a("v_or_b32 v57, v57, v58")
        a("v_lshrrev_b32 v58, 21, v62"); a("v_lshrrev_b32 v59, 21, v63")
    def bfly(op, v, vt, bits):
        for b in bits:
            if b <= 3:
                a("s_nop 1")
                a("%s_dpp v%d, v%d, v%d row_ror:%d row_mask:0xf bank_mask:0xf" % (op, v, v, v, 1 << b))
            else:
                a("v_mov_b32 v%d, v%d" % (vt, v))
                a("s_nop 1")
                a("v_permlane%d_swap_b32 v%d, v%d" % (1 << b, v, vt))
                a("%s v%d, v%d, v%d" % (op, v, v, vt))
    def bfly4(op, v, vt, bits):
        for b in bits:
            if b <= 3:
                for r in range(4):
                    a("%s_dpp v%d, v%d, v%d row_ror:%d row_mask:0xf bank_mask:0xf" % (op, v + r, v + r, v + r, 1 << b))
            else:
                for r in range(4): a("v_mov_b32 v%d, v%d" % (vt + r, v + r))
                for r in range(4): a("v_permlane%d_swap_b32 v%d, v%d" % (1 << b, v + r, vt + r))
                for r in range(4): a("%s v%d, v%d, v%d" % (op, v + r, v + r, vt + r))

    a("s_cmp_ge_u32 s2, 256")
    a("s_cbranch_scc1 L_end")
    a("s_load_dwordx16 s[4:19], s[0:1], 0")
    a("s_load_dwordx8 s[20:27], s[0:1], 64")
    a("s_load_dwordx2 s[28:29], s[0:1], 96")
    a("v_lshrrev_b32 v1, 6, v0")
    a("v_lshlrev_b32 v3, 3, v0")
    a("v_mov_b32 v4, 0"); a("v_mov_b32 v5, 0")
    a("v_readfirstlane_b32 s30, v1")
    a("v_add_u32 v3, %d, v3" % SY)
    a("v_and_b32 v0, 63, v0")
    a("ds_write_b64 v3, v[4:5]")
    a("s_mov_b32 %s, %d" % (sB, budget))
    if diag: a("s_mov_b32 s94, 0")
    if stamps:
        a("v_mov_b32 v%d, 0" % VST); stamp(0)
    a("s_xor_b32 s3, s2, %d" % qx)
    a("v_lshrrev_b32 v1, 4, v0")
    a("v_and_b32 v2, 15, v0")
    a("s_cmp_lg_u32 s30, 0")
    a("s_cbranch_scc1 L_notloader")

    a("s_setprio 3")
    vA = list(range(4, 12))
    vK = [12, 13, 14, 15]; vV = [16, 17]; vWO = 18
    a("v_lshrrev_b32 v20, 3, v0"); a("v_and_b32 v21, 7, v0"); a("v_and_b32 v22, 1, v1")
    a("v_lshlrev_b32 v20, 13, v20"); a("v_lshlrev_b32 v22, 1, v22")
    a("v_xor_b32 v21, v21, v22")
    a("v_lshl_add_u32 v4, v21, 4, v20")
    a("v_xor_b32 v5, 64, v4")
    a("s_and_b32 s56, s3, 1"); a("s_lshl_b32 s56, s56, 22")
    a("s_bfe_u32 s57, s3, 0x60001"); a("s_lshl_b32 s57, s57, 7"); a("s_add_u32 s56, s56, s57")
    a("s_mov_b32 s34, 0x800000"); a("s_mov_b32 s35, 0x20000")
    a("s_movk_i32 s38, 0x1000"); a("s_mov_b32 s39, 0x20000")
    a("s_and_b32 s57, s3, 1"); a("s_lshl_b32 s57, s57, 10")
    a("v_lshlrev_b32 v18, 4, v0"); a("s_mov_b32 m0, %d" % XBASE)
    a("s_mov_b32 s40, 0"); a("s_mov_b32 s41, 0")
    a("v_lshlrev_b32 v24, 2, v0"); a("v_add_u32 v24, %d, v24" % L_LANDED)
    a("v_mov_b32 v25, 0")
    a("s_cmp_lt_u32 s2, 128")
    a("s_waitcnt lgkmcnt(0)")
    a("s_cselect_b32 s32, s10, s20"); a("s_cselect_b32 s33, s11, s21")
    a("s_cselect_b32 s36, s4, s14"); a("s_cselect_b32 s37, s5, s15")
    a("s_and_b32 s33, s33, 0xffff"); a("s_and_b32 s37, s37, 0xffff")
    stamp(21)
    a("buffer_load_dwordx4 v18, s[36:39], s57 offen lds")
    a("s_add_u32 s57, s57, 1024")
    a("buffer_load_dwordx4 v18, s[36:39], s57 offen offset:1024 lds")
    def signal(w, j):
        js = (w - 1) % 8 or 8
        if j == js:
            d = (w - 1 - js) // 8
            if d: a("s_sub_i32 s42, s40, %d" % d); a("s_max_i32 s42, s42, 0"); a("v_mov_b32 v25, s42")
            else: a("v_mov_b32 v25, s40")
            a("ds_write_b32 v24, v25")
    def wq_tile(w, waits=True):
        for i in range(8):
            if i % 4 == 0: a("s_add_u32 m0, s41, %d" % (i * 1024)); a("s_nop 0")
            a("buffer_load_dwordx4 v%d, s[32:35], s56 offen offset:%d %s lds" % (vA[i & 1], (i % 4) * 1024, ldpol))
            a("s_add_u32 s56, s56, %d" % (64512 + (4096 if i % 4 == 3 else 0)))
            if waits:
                a("s_waitcnt vmcnt(%d)" % (w - 1)); signal(w, i + 1)
        a("s_add_u32 s40, s40, 1"); a("s_add_u32 s41, s41, 8192")
    assert win0 >= 8 * burst
    a("L_wq0:")
    wq_tile(win0, waits=False)
    a("s_cmp_lt_u32 s40, %d" % burst); a("s_cbranch_scc1 L_wq0")
    stamp(22)
    if bar_at <= burst:
        a("s_barrier"); stamp(1)
    for i in range(4):
        a("v_add_u32 v20, %d, v1" % (4 * i)); a("v_xor_b32 v20, v20, v2"); a("v_lshlrev_b32 v20, 4, v20")
        a("v_lshl_add_u32 v%d, v1, 8, v20" % vK[i])
    for i in range(2):
        a("v_add_u32 v20, %d, v1" % (4 * i)); a("v_lshlrev_b32 v20, 1, v20"); a("v_xor_b32 v20, v20, v2")
        a("v_lshlrev_b32 v20, 4, v20"); a("v_lshl_add_u32 v%d, v1, 8, v20" % vV[i])
    a("v_mov_b32 v26, %d" % L_FREE); a("v_mov_b32 v19, %d" % L_LVL)
    a("s_cmp_lt_u32 s2, 128")
    a("s_cselect_b32 s52, s12, s22"); a("s_cselect_b32 s53, s13, s23")
    role()
    offsets()
    a("s_mov_b32 s61, 0")
    a("L_wq1:")
    wq_tile(win0)
    if bar_at > burst:
        a("s_cmp_lg_u32 s40, %d" % bar_at); a("s_cbranch_scc1 L_nobar")
        a("s_barrier"); stamp(1)
        a("L_nobar:")
    a("s_cmp_lt_u32 s40, 8"); a("s_cbranch_scc1 L_wq1")
    def tile_loop(name, w, redispatch=False):
        a(name + ":")
        if "nofree" not in dbg:
            a("s_sub_i32 s42, s40, %d" % NSLOT)
            wait_min4("s61", "v26", 28, "s42", cmp="s_cmp_gt_i32")
        for h in range(2):
            if h == 0: a("s_mov_b32 m0, s41"); a("s_add_u32 s45, s56, 4096")
            else: a("s_add_u32 m0, s41, 4096"); a("s_nop 0")
            for i in range(4):
                a("buffer_load_dwordx4 v%d, s[32:35], %s offen offset:%d %s lds" % (vA[4 * h + i], "s45" if h else "s56", i * 1024, ldpol))
                a("s_waitcnt vmcnt(%d)" % (w - 1)); signal(w, 4 * h + i + 1)
        for i in range(8): a("v_xor_b32 v%d, s44, v%d" % (vA[i], vA[i]))
        a("s_add_u32 s56, s56, 8192")
        a("s_add_u32 s41, s41, 8192"); a("s_and_b32 s41, s41, %d" % (NSLOT * 8192 - 1))
        a("s_add_u32 s40, s40, 1")
        a("s_cmp_lt_u32 s40, s43")
        if redispatch:
            a("s_cbranch_scc0 L_ret")
            a("s_and_b32 s42, s40, %d" % (redisp - 1))
            a("s_cbranch_scc1 " + name)
            a("s_branch L_tile")
        else:
            a("s_cbranch_scc1 " + name)
            a("s_setpc_b64 s[46:47]")
    def seg_setup(name):
        lo, sreg, base, size = {"kbig": (48, 54, 0, 64 << 20), "ksm": (6, 55, 0, 64 << 20), "vbig": (50, 54, 0, 64 << 20), "vsm": (8, 55, 0, 64 << 20),
                                "woE": (52, 59, 0, 8 << 20), "woL": (52, 59, 32768, 8 << 20)}[name]
        a("s_mov_b32 s32, s%d" % lo); a("s_and_b32 s33, s%d, 0xffff" % (lo + 1)); a("s_mov_b32 s34, 0x%x" % size)
        a("s_add_u32 s56, s%d, %d" % (sreg, base))
        if name in ("kbig", "vbig", "woE", "woL"):
            for i in range(8):
                if name[0] == "k": a("v_mov_b32 v%d, v%d" % (vA[i], vK[i & 3]))
                elif name[0] == "v": a("v_mov_b32 v%d, v%d" % (vA[i], vV[i & 1]))
                else: a("v_xor_b32 v%d, %d, v18" % (vA[i], 32 * (i >> 1)))
            a("s_mov_b32 s44, %d" % (128 if name[0] == "w" else 0))
    stampat = {"kbig": 3, "ksm": 4, "vbig": 5, "vsm": 6}
    for name, cnt in segs[1:]:
        if name in stampat: stamp(stampat[name])
        seg_setup(name)
        end = T0[name] + cnt
        cut = NT - tailT
        if vst and name == "vbig":
            for q in range(1, 4):
                if T0[name] + 8 * q <= cut:
                    a("s_mov_b32 s43, %d" % (T0[name] + 8 * q)); a("s_call_b64 s[46:47], L_tile"); stamp(8 + q)
        if tailT and T0[name] < cut < end:
            a("s_mov_b32 s43, %d" % cut); a("s_call_b64 s[46:47], L_tile")
            a("s_mov_b32 s43, %d" % end); a("s_call_b64 s[46:47], L_tileT")
        else:
            a("s_mov_b32 s43, %d" % end)
            a("s_call_b64 s[46:47], %s" % ("L_tileT" if (tailT and T0[name] >= cut) else "L_tile"))
        if name == "vsm": stamp(7)
    wl = winT if tailT else (max(levels) if levels else win)
    done = (8 * NT - (wl - 1)) // 8
    while done < NT:
        done += 1
        a("s_waitcnt vmcnt(%d)" % (8 * (NT - done)))
        a("v_mov_b32 v25, %d" % done); a("ds_write_b32 v24, v25")
    a("s_waitcnt lgkmcnt(0)")
    stamp(8)
    diag_end(0)
    stamp_flush()
    a("s_endpgm")
    if levels:
        a("L_tile:")
        a("ds_read_b32 v27, v19")
        a("s_waitcnt lgkmcnt(0)")
        a("v_readfirstlane_b32 s42, v27")
        for k in range(1, len(levels)):
            a("s_cmp_eq_u32 s42, %d" % k); a("s_cbranch_scc1 L_tile_%d" % k)
        for k, w in enumerate(levels): tile_loop("L_tile_%d" % k, w, True)
        a("L_ret:")
        a("s_setpc_b64 s[46:47]")
    else:
        tile_loop("L_tile", win)
    if tailT: tile_loop("L_tileT", winT)

    a("L_notloader:")
    a("s_cmp_gt_u32 s30, 1")
    a("s_cbranch_scc1 L_cons")
    a("v_lshlrev_b32 v24, 2, v0"); a("v_add_u32 v24, %d, v24" % L_HST)
    if levels: a("v_mov_b32 v25, %d" % lvl0); a("ds_write_b32 v24, v25 offset:%d" % (L_LVL - L_HST))
    a("v_mov_b32 v10, 0")
    a("s_memrealtime s[90:91]")
    a("s_waitcnt lgkmcnt(0)")
    a("s_cmp_lg_u32 s2, 0"); a("s_cbranch_scc1 L_nononce")
    a("s_or_b32 s90, s90, 1"); a("s_or_b32 s91, s91, 0x80000000")
    a("v_mov_b32 v60, s90"); a("v_mov_b32 v61, s91")
    a("s_mov_b64 exec, 1")
    a("global_store_dwordx2 v10, v[60:61], s[26:27] offset:128 sc1")
    a("s_mov_b64 exec, -1")
    a("L_nononce:")
    epoch_load()
    a("s_mov_b32 s41, 0"); a("v_mov_b32 v26, %d" % L_STAGE)
    a("s_mov_b32 s42, 0"); a("v_mov_b32 v27, %d" % L_LANDED)
    a("s_lshl_b32 s32, s2, 8")
    a("s_add_u32 s33, s32, 0x%x" % W_ML); a("s_add_u32 s38, s28, s33"); a("s_addc_u32 s39, s29, 0")
    a("s_bfe_u32 s32, s2, 0x20005"); a("s_lshl_b32 s32, s32, 13")
    a("s_bfe_u32 s33, s2, 0x30002")
    a("s_lshr_b32 s34, s2, 7"); a("s_lshl_b32 s34, s34, 3"); a("s_add_u32 s33, s33, s34"); a("s_lshl_b32 s33, s33, 4")
    a("s_add_u32 s32, s32, s33"); a("s_add_u32 s32, s32, 0x%x" % W_ML)
    a("s_add_u32 s34, s28, s32"); a("s_addc_u32 s35, s29, 0")
    a("v_lshrrev_b32 v12, 5, v0"); a("v_lshlrev_b32 v12, 15, v12")
    a("v_and_b32 v16, 31, v0"); a("v_lshl_add_u32 v12, v16, 8, v12")
    a("v_and_b32 v13, 7, v0"); a("v_lshlrev_b32 v13, 2, v13"); a("v_add_u32 v13, %d, v13" % L_MX)
    a("v_lshlrev_b32 v11, 4, v2")
    role()
    a("s_bfe_u32 s32, s2, 0x20005")
    a("s_lshl_b32 s44, 0x01010101, s32"); a("s_lshl_b32 s45, s44, 4")
    a("s_cmp_lt_u32 s2, 128")
    a("s_cselect_b32 s44, -1, s44"); a("s_cselect_b32 s45, -1, s45")
    a("s_cmp_eq_u32 s92, 1")
    a("s_cselect_b32 s48, 0xff, 0"); a("s_mov_b32 s49, 0")
    a("s_cselect_b32 s50, 0xff00, 0"); a("s_mov_b32 s51, 0")
    a("s_or_b32 s46, s50, 0xff"); a("s_mov_b32 s47, 0")
    if touch:
        a("s_mov_b64 s[64:65], s[48:49]"); a("s_mov_b64 s[66:67], s[50:51]"); a("s_mov_b64 s[68:69], s[44:45]"); a("s_mov_b64 s[70:71], s[46:47]")
        a("s_cmp_lt_u32 s2, 128")
        a("s_cselect_b32 s52, s12, s22"); a("s_cselect_b32 s53, s13, s23")
        offsets()
        a("s_mov_b64 exec, 1")
        a("v_mov_b32 v32, s54"); a("v_mov_b32 v33, s55"); a("v_mov_b32 v34, s59")
        a("global_load_dword v36, v32, s[48:49] nt"); a("global_load_dword v37, v32, s[50:51] nt")
        a("global_load_dword v38, v33, s[6:7] nt"); a("global_load_dword v39, v33, s[8:9] nt")
        a("global_load_dword v40, v34, s[52:53] nt")
        if touch > 1:
            for k, off in enumerate((0x0f0000, 0x300000 + GAP // 2, 0x500000 + GAP)):
                a("v_mov_b32 v35, 0x%x" % off); a("global_load_dword v%d, v35, s[28:29] nt" % (41 + k))
            a("global_load_dword v44, v10, s[24:25] nt")
        a("s_mov_b64 exec, -1")
        a("s_mov_b64 s[48:49], s[64:65]"); a("s_mov_b64 s[50:51], s[66:67]"); a("s_mov_b64 s[44:45], s[68:69]"); a("s_mov_b64 s[46:47], s[70:71]")
    stamp(22)
    a("s_barrier")
    if nz_at: wait_word("s42", "v27", "v28", str(nz_at - 1), sleep=2)
    def nzcheck():
        a("v_min_u32 v18, v60, v61"); a("v_cmp_eq_u32 vcc, 0, v18")
    poll_valid(lambda: a("global_load_dwordx2 v[60:61], v10, s[26:27] offset:128 sc1"), nzcheck, sleep=4)
    a("v_lshlrev_b32 v18, 3, v0"); a("v_add_u32 v18, %d, v18" % L_NON)
    a("ds_write_b64 v18, v[60:61]")
    a("v_mov_b32 v25, 1"); a("ds_write_b32 v24, v25")
    stamp(2)
    epoch_tags()
    a("v_mov_b32 v14, 0xff800000"); a("v_mov_b32 v15, 0"); a("v_mov_b32 v16, v62"); a("v_mov_b32 v17, v63")
    cpl = list(cps or [])
    if cpl:
        offs = [(9 + 33 * k + (16 if k >= 8 else 0)) & 255 for k in range(nsamp)]
        for k, d in enumerate(offs):
            a("s_add_u32 s%d, s2, %d" % (64 + k, d)); a("s_and_b32 s%d, s%d, 255" % (64 + k, 64 + k)); a("s_lshl_b32 s%d, s%d, 7" % (64 + k, 64 + k))
        a("s_add_u32 s52, s28, 0x%x" % W_PB); a("s_addc_u32 s53, s29, 0")
        a("s_lshl_b32 s32, s2, 7"); a("v_mov_b32 v20, s32")
        a("v_readfirstlane_b32 s54, v62")
        a("v_lshl_add_u32 v21, v0, 4, v20")
        for r in range(4): a("v_mov_b32 v%d, v62" % (64 + r))
    if rank1:
        offs = [(9 + 33 * k + (16 if k >= 8 else 0)) & 255 for k in range(nsamp)]
        for k, d in enumerate(offs):
            a("s_add_u32 s%d, s2, %d" % (64 + k, d)); a("s_and_b32 s%d, s%d, 255" % (64 + k, 64 + k)); a("s_lshl_b32 s%d, s%d, 8" % (64 + k, 64 + k))
        a("s_add_u32 s52, s28, 0x%x" % (W_ML + 8)); a("s_addc_u32 s53, s29, 0")
        a("v_readfirstlane_b32 s54, v62")
    def checkpoints(upto):
        while cpl and cpl[0] <= upto:
            c = cpl.pop(0)
            wait_word("s42", "v27", "v28", str(c - 1), sleep=4)
            if "fullpb" in dbg:
                a("s_mov_b64 exec, 0xff")
                a("global_store_dwordx4 v21, v[64:67], s[52:53] sc1")
            elif "nopbst" not in dbg:
                a("s_mov_b64 exec, 1")
                a("global_store_dword v20, v62, s[52:53] sc1")
            a("s_mov_b64 exec, -1")
            if "nopbld" not in dbg:
                for k in range(0, nsamp): a("s_load_dword s%d, s[52:53], s%d" % (4 + k, 64 + k))
            a("s_mov_b32 s55, 0")
            a("s_waitcnt lgkmcnt(0)")
            for k in range(0, nsamp):
                a("s_cmp_eq_u32 s%d, s54" % (4 + k)); a("s_addc_u32 s55, s55, 0")
            a("s_mov_b32 s56, 0")
            for tv in thr:
                a("s_cmp_ge_u32 s55, %d" % tv); a("s_addc_u32 s56, s56, 0")
            a("v_mov_b32 v25, s56"); a("ds_write_b32 v24, v25 offset:%d" % (L_LVL - L_HST))
            if stamps: a("v_writelane_b32 v%d, s55, %d" % (VST, 32 + len(cpl)))
            a("s_add_u32 s52, s52, 0x8000"); a("s_addc_u32 s53, s53, 0")
    checkpoints(T0["ksm"] + 4)
    wait_min4("s41", "v26", 28, "2", sleep=8)
    for w in range(4):
        a("ds_read_b32 v%d, v13 offset:%d" % (32 + w, 64 * w))
        a("ds_read_b32 v%d, v13 offset:%d" % (36 + w, 64 * w + 32))
        a("ds_read_b32 v%d, v13 offset:%d" % (40 + w, L_LW - L_MX + 64 * w))
        a("ds_read_b32 v%d, v13 offset:%d" % (44 + w, L_LW - L_MX + 64 * w + 32))
    a("s_waitcnt lgkmcnt(0)")
    a("v_max3_f32 v32, v32, v33, v34"); a("v_max_f32 v32, v32, v35")
    a("v_max3_f32 v36, v36, v37, v38"); a("v_max_f32 v36, v36, v39")
    a("v_add_f32 v40, v40, v41"); a("v_add_f32 v42, v42, v43"); a("v_add_f32 v40, v40, v42")
    a("v_add_f32 v44, v44, v45"); a("v_add_f32 v46, v46, v47"); a("v_add_f32 v44, v44, v46")
    a("v_max_f32 v60, v32, v36"); a("v_add_f32 v61, v40, v44")
    a("v_cndmask_b32 v60, v60, v36, s[48:49]"); a("v_cndmask_b32 v61, v61, v44, s[48:49]")
    a("v_cndmask_b32 v60, v60, v32, s[50:51]"); a("v_cndmask_b32 v61, v61, v40, s[50:51]")
    a("s_mov_b64 exec, s[46:47]")
    a("global_store_dwordx4 v11, v[60:63], s[38:39] sc1")
    a("s_mov_b64 exec, -1")
    if rank1:
        for k in range(0, nsamp): a("s_load_dword s%d, s[52:53], s%d" % (4 + k, 64 + k))
        a("s_mov_b32 s55, 0")
        a("s_waitcnt lgkmcnt(0)")
        for k in range(0, nsamp):
            a("s_cmp_eq_u32 s%d, s54" % (4 + k)); a("s_addc_u32 s55, s55, 0")
        a("s_mov_b32 s56, 0")
        for tv in thr:
            a("s_cmp_ge_u32 s55, %d" % tv); a("s_addc_u32 s56, s56, 0")
        a("v_mov_b32 v25, s56"); a("ds_write_b32 v24, v25 offset:%d" % (L_LVL - L_HST))
    stamp(4)
    checkpoints(T0["vbig"] + ml_at)
    if ml_at: wait_word("s42", "v27", "v28", str(T0["vbig"] + ml_at), sleep=8)
    def mlcheck():
        a("v_xor_b32 v18, v16, v62"); a("v_bitop3_b32 v18, v17, v63, v18 bitop3:0xbe")
        a("v_cmp_ne_u32 vcc, 0, v18")
    poll_valid(lambda: a("global_load_dwordx4 v[14:17], v12, s[34:35] sc1"), mlcheck, sleep=mlsleep, mask0="s[44:45]")
    a("v_mov_b32 v17, v14")
    bfly("v_max_f32", 17, 18, [0, 1, 2, 3, 4])
    a("v_sub_f32 v14, v14, v17"); a("v_exp_f32 v14, v14"); a("s_nop 0")
    a("v_mul_f32 v15, v15, v14")
    bfly("v_add_f32", 15, 18, [0, 1, 2, 3, 4])
    a("v_rcp_f32 v15, v15"); a("s_nop 0"); a("v_mul_f32 v14, v14, v15")
    a("v_lshlrev_b32 v13, 2, v0")
    a("v_add_u32 v13, %d, v13" % L_F)
    a("ds_write_b32 v13, v14")
    a("v_mov_b32 v25, 2"); a("ds_write_b32 v24, v25")
    checkpoints(NT)
    a("s_waitcnt lgkmcnt(0)")
    stamp(5)
    diag_end(1)
    stamp_flush()
    a("s_endpgm")

    a("L_cons:")
    a("s_waitcnt lgkmcnt(0)")
    if cbar == 0:
        stamp(22); a("s_barrier")
    sL = "s33"; sHS = "s34"; sST = "s35"
    a("s_sub_u32 s32, s30, 2")
    a("s_mov_b32 s33, 0"); a("s_mov_b32 s34, 0"); a("s_mov_b32 s35, 0")
    a("s_lshl_b32 s38, s32, 2")
    a("v_lshl_add_u32 v4, v0, 4, s38")
    a("v_add_u32 v5, %d, v4" % L_STAGE); a("v_add_u32 v4, %d, v4" % L_FREE)
    a("v_mov_b32 v6, %d" % L_LANDED); a("v_mov_b32 v7, %d" % L_HST); a("v_mov_b32 v12, %d" % L_STAGE)
    a("v_bfe_u32 v13, v0, 2, 2"); a("v_and_b32 v14, 3, v0")
    VX = 64
    a("v_and_b32 v15, 1, v0"); a("v_lshlrev_b32 v15, 10, v15"); a("v_lshl_add_u32 v15, v1, 4, v15")
    a("v_add_u32 v15, %d, v15" % XBASE)
    epoch_load()
    if "nocons" in dbg:
        a("s_waitcnt vmcnt(0)")
        a("s_endpgm")
    def set_free(val):
        a("v_mov_b32 v8, %s" % val); a("ds_write_b32 v4, v8")
    def set_stage(val):
        a("v_mov_b32 v8, %d" % val); a("ds_write_b32 v5, v8")
    a("v_lshl_add_u32 v16, v1, 3, v13"); a("v_lshlrev_b32 v16, 7, v16")
    a("v_lshrrev_b32 v17, 1, v13"); a("v_and_b32 v18, 1, v1"); a("v_lshl_or_b32 v17, v18, 1, v17")
    a("v_lshlrev_b32 v17, 1, v17")
    a("v_lshrrev_b32 v18, 1, v14"); a("s_lshl_b32 s38, s32, 1"); a("v_add_u32 v18, s38, v18")
    a("v_xor_b32 v17, v17, v18"); a("v_lshl_add_u32 v16, v17, 4, v16")
    a("v_and_b32 v18, 1, v14"); a("v_lshl_add_u32 v16, v18, 3, v16")
    vKa = list(range(20, 28))
    a("v_lshrrev_b32 v17, 1, v1"); a("v_lshl_add_u32 v17, v17, 4, v2"); a("v_lshlrev_b32 v17, 8, v17")
    a("s_lshl_b32 s38, s32, 13"); a("v_add_u32 v17, s38, v17")
    a("v_and_b32 v18, 1, v1"); a("v_xor_b32 v18, v18, v2"); a("v_lshl_add_u32 v20, v18, 4, v17")
    for s in range(1, 8): a("v_xor_b32 v%d, %d, v20" % (vKa[s], 32 * s))
    a("v_lshl_add_u32 v17, v1, 2, v13")
    a("v_and_b32 v18, 7, v17"); a("v_lshlrev_b32 v18, 1, v18")
    a("v_lshrrev_b32 v19, 1, v14")
    a("v_xor_b32 v30, v18, v19")
    a("v_and_b32 v31, 1, v14"); a("v_lshlrev_b32 v31, 3, v31")
    a("v_lshl_add_u32 v30, v30, 4, v31")
    a("s_lshl_b32 s38, s32, 6")
    a("v_xor_b32 v28, s38, v30"); a("v_lshl_add_u32 v28, v17, 8, v28")
    a("v_xor_b32 v29, 32, v28")
    vWOa = list(range(40, 48))
    a("s_lshl_b32 s38, s32, 9")
    a("v_lshl_add_u32 v40, v17, 11, v30"); a("v_add_u32 v40, s38, v40")
    for t in range(1, 8): a("v_xor_b32 v%d, %d, v40" % (vWOa[t], 32 * t))
    a("v_and_b32 v17, 7, v0"); a("v_lshl_add_u32 v17, v1, 3, v17"); a("v_lshlrev_b32 v17, 4, v17")
    a("v_add_u32 v33, %d, v17" % PBASE)
    a("v_bfe_u32 v18, v0, 3, 1"); a("v_lshl_add_u32 v32, v18, 3, v33")
    a("s_lshl_b32 s38, s32, 9"); a("v_add_u32 v32, s38, v32")
    gl = lambda d, off: (a("s_add_u32 s%d, s28, %s" % (d, off)), a("s_addc_u32 s%d, s29, 0" % (d + 1)))
    a("s_lshr_b32 s38, s2, 7"); a("s_lshl_b32 s38, s38, 16")
    a("s_and_b32 s39, s3, 1"); a("s_lshl_b32 s39, s39, 14"); a("s_add_u32 s38, s38, s39")
    a("s_bfe_u32 s39, s3, 0x60001"); a("s_lshl_b32 s39, s39, 8"); a("s_add_u32 s38, s38, s39")
    a("s_lshl_b32 s39, s32, 6"); a("s_add_u32 s38, s38, s39")
    gl(40, "s38")
    a("v_and_b32 v34, 1, v0"); a("v_lshlrev_b32 v34, 15, v34"); a("v_lshl_add_u32 v34, v1, 4, v34")
    role()
    a("s_lshr_b32 s39, s2, 7"); a("s_lshl_b32 s38, s39, 15")
    a("s_bfe_u32 s39, s2, 0x20005"); a("s_lshl_b32 s39, s39, 12"); a("s_add_u32 s38, s38, s39")
    a("s_lshl_b32 s39, s32, 10"); a("s_add_u32 s38, s38, s39")
    gl(44, "s38")
    a("s_lshl_b32 s39, s92, 16"); a("s_add_u32 s38, s38, s39")
    gl(42, "s38")
    a("v_lshlrev_b32 v48, 4, v0"); a("v_add_u32 v36, 16384, v48")
    a("s_lshl_b32 s38, s32, 9"); a("s_add_u32 s38, s38, %d" % QBASE)
    a("v_lshl_add_u32 v37, v0, 3, s38")
    a("v_and_b32 v17, 7, v0"); a("v_lshlrev_b32 v17, 8, v17"); a("v_and_b32 v18, 1, v1"); a("v_lshl_add_u32 v17, v18, 4, v17")
    a("v_add_u32 v35, %d, v17" % QBASE)
    a("s_lshl_b32 s39, s92, 11"); a("v_add_u32 v38, s39, v35")
    if cbar == 1:
        stamp(22); a("s_barrier")
    stamp(21)
    VF = 128
    VS = 160
    VQA = 200
    VWE = 216
    for u in range(8):
        if u == tag_at:
            wait_word(sHS, "v7", "v8", "0")
            a("ds_read_b64 v[60:61], v7 offset:%d" % (L_NON - L_HST))
            a("s_waitcnt lgkmcnt(0)")
            epoch_tags()
        wait_word(sL, "v6", "v8", str(u), sleep=psleep)
        if u == 0:
            for s in range(16): a("ds_read_b128 v[%d:%d], v15 offset:%d" % (VX + 4 * s, VX + 4 * s + 3, 64 * s))
        for s in range(2):
            for h in range(2):
                a("ds_read_b64_tr_b16 v[%d:%d], v16 offset:%d" % (VF + 4 * s + 2 * h, VF + 4 * s + 2 * h + 1, u * 8192 + s * 4096 + h * 512))
        a("s_waitcnt lgkmcnt(0)")
        for s in range(2):
            c = "0" if (u == 0 and s == 0) else "v[%d:%d]" % (VQA, VQA + 3)
            x = VX + 4 * (2 * u + s)
            a("v_mfma_f32_16x16x32_bf16 v[%d:%d], v[%d:%d], v[%d:%d], %s" % (VQA, VQA + 3, VF + 4 * s, VF + 4 * s + 3, x, x + 3, c))
        def rd(base, u=u):
            for s in range(2):
                for h in range(2):
                    a("ds_read_b64_tr_b16 v[%d:%d], v16 offset:%d" % (base + 4 * s + 2 * h, base + 4 * s + 2 * h + 1, u * 8192 + s * 4096 + h * 512))
        if dchk: a("s_mov_b32 s36, %d" % u)
        recheck(rd, 8, 0)
        if u < 7 or wo_early == 2: set_free(str(u + 1))
        else:
            a("s_add_u32 s36, s32, %d" % T0["kbig"]); set_free("s36")
    stamp(1)
    a("s_mov_b32 exec_lo, 0x00030003"); a("s_mov_b32 exec_hi, 0x00030003")
    a("s_nop 3")
    tag4(VQA)
    a("global_store_dwordx4 v34, v[%d:%d], s[40:41] sc1" % (VQA, VQA + 3))
    a("s_mov_b64 exec, -1")
    stamp(2)
    VO = 204
    VW = 64
    def wo_reads(name, dst):
        T = T0[name]
        wait_word(sL, "v6", "v8", str(T + 3))
        base = (T % NSLOT) * 8192
        if base >= 65536:
            for t in range(8): a("v_add_u32 v%d, 0x10000, v%d" % (vWOa[t], vWOa[t]))
        for t in range(16):
            d = dst(t)
            a("ds_read_b64_tr_b16 v[%d:%d], v%d offset:%d" % (d, d + 1, vWOa[t & 7], base % 65536 + (t >> 3) * 256))
        if base >= 65536:
            for t in range(8): a("v_subrev_u32 v%d, 0x10000, v%d" % (vWOa[t], vWOa[t]))
    VQ = 64
    for r in range(64): a("v_mov_b32 v%d, 0" % (VQ + r))
    if wo_early == 2:
        wo_reads("woE", lambda t: VWE + 2 * t)
        a("s_add_u32 s36, s32, %d" % T0["kbig"])
        a("s_waitcnt lgkmcnt(0)")
        set_free("s36")
    for r in range(8): a("v_mov_b32 v%d, v%d" % (VF + 8 + r, VT + (r & 3)))
    def qloads():
        for kh in range(2):
            a("global_load_dwordx4 v[%d:%d], v%d, s[42:43] sc1" % (VF + 4 * kh, VF + 4 * kh + 3, (48, 36)[kh]))
        sk = lab("qs")
        a("s_cmp_eq_u32 s92, 0"); a("s_cbranch_scc1 " + sk)
        for kh in range(2):
            a("global_load_dwordx4 v[%d:%d], v%d, s[44:45] sc1" % (VF + 8 + 4 * kh, VF + 8 + 4 * kh + 3, (48, 36)[kh]))
        a(sk + ":")
    if qg_at: wait_word(sL, "v6", "v8", str(qg_at - 1), sleep=psleep)
    stamp(14)
    poll_valid(qloads, tagcheck(VF, 16, VF + 16, 8), sleep=qsleep)
    stamp(3)
    for r in range(4): a("v_add_f32 v%d, v%d, v%d" % (VF + r, VF + 16 + r, VF + 20 + r))
    for r in range(4): a("v_add_f32 v%d, v%d, v%d" % (VF + 4 + r, VF + 24 + r, VF + 28 + r))
    for r in range(4): a("v_cvt_pk_bf16_f32 v%d, v%d, v%d" % (VF + 16 + r, VF + 2 * r, VF + 2 * r + 1))
    a("ds_write_b64 v37, v[%d:%d]" % (VF + 16, VF + 17)); a("ds_write_b64 v37, v[%d:%d] offset:2048" % (VF + 18, VF + 19))
    set_stage(1)
    wait_min4(sST, "v12", 8, "0")
    a("s_mov_b32 exec_lo, 0x00ff00ff"); a("s_mov_b32 exec_hi, 0xff00ff00")
    for part in range(2):
        for s in range(8):
            d = VQ + 32 * part + 4 * s
            a("ds_read_b128 v[%d:%d], v%d offset:%d" % (d, d + 3, (35, 38)[part], 32 * s))
    a("s_mov_b64 exec, -1")
    stamp(4)
    hi = [False]
    def ktile(Tbase, q, sdst, nxt):
        a("s_add_u32 s36, s32, %d" % Tbase)
        wait_word(sL, "v6", "v8", "s36", sleep=psleep)
        sl = Tbase % NSLOT
        want_hi = sl >= 8
        if want_hi != hi[0]:
            for s in range(8): a("v_xor_b32 v%d, 0x10000, v%d" % (vKa[s], vKa[s]))
            hi[0] = want_hi
        for s in range(8):
            a("ds_read_b128 v[%d:%d], v%d offset:%d" % (VF + 4 * s, VF + 4 * s + 3, vKa[s], (sl % 8) * 8192))
        if nxt is None: a("s_add_u32 s36, s36, 4")
        else: a("s_mov_b32 s36, %d" % nxt)
        a("v_mov_b32 v8, s36")
        for s in range(8):
            a("s_waitcnt lgkmcnt(%d)" % (7 - s))
            if s == 7 and not dchk: a("ds_write_b32 v4, v8")
            c = "0" if s == 0 else "v[%d:%d]" % (sdst, sdst + 3)
            a("v_mfma_f32_16x16x32_bf16 v[%d:%d], v[%d:%d], v[%d:%d], %s" % (sdst, sdst + 3, VF + 4 * s, VF + 4 * s + 3, q + 4 * s, q + 4 * s + 3, c))
        if dchk:
            def rd(base):
                for s in range(7):
                    a("ds_read_b128 v[%d:%d], v%d offset:%d" % (base + 4 * s, base + 4 * s + 3, vKa[s], (sl % 8) * 8192))
            recheck(rd, 28, 1)
            a("ds_write_b32 v4, v8")
    assert T0["ksm"] == T0["kbig"] + 32
    for i in range(8):
        ktile(T0["kbig"] + 4 * i, VQ, VS + 4 * i, None)
    ktile(T0["ksm"], VQ + 32, VS + 32, T0["ksm"] + 4)
    stamp(5)
    a("s_mov_b32 s38, 0x%x" % f2u(CSCALE))
    a("v_max_f32 v35, v%d, v%d" % (VS, VS + 1))
    for r in range(2, 32, 2): a("v_max3_f32 v35, v35, v%d, v%d" % (VS + r, VS + r + 1))
    a("v_max3_f32 v34, v%d, v%d, v%d" % (VS + 32, VS + 33, VS + 34)); a("v_max_f32 v34, v34, v%d" % (VS + 35))
    bfly("v_max_f32", 34, 36, [3, 4, 5]); bfly("v_max_f32", 35, 36, [3, 4, 5])
    a("v_mul_f32 v34, s38, v34"); a("v_mul_f32 v35, s38, v35")
    a("v_and_b32 v17, 7, v0"); a("v_lshlrev_b32 v17, 2, v17")
    a("v_add_u32 v18, %d, v17" % L_MX)
    a("s_lshl_b32 s39, s32, 6"); a("v_add_u32 v17, s39, v18")
    a("ds_write_b32 v17, v35"); a("ds_write_b32 v17, v34 offset:32")
    set_stage(2)
    if wo_early == 2:
        for t in range(16):
            a("v_mov_b32 v%d, v%d" % (VW + 4 * t, VWE + 2 * t)); a("v_mov_b32 v%d, v%d" % (VW + 4 * t + 1, VWE + 2 * t + 1))
    wait_min4(sST, "v12", 8, "1")
    for w in range(4):
        a("ds_read_b32 v%d, v18 offset:%d" % (VF + w, 64 * w)); a("ds_read_b32 v%d, v18 offset:%d" % (VF + 4 + w, 64 * w + 32))
    a("s_waitcnt lgkmcnt(0)")
    a("v_max3_f32 v35, v%d, v%d, v%d" % (VF, VF + 1, VF + 2)); a("v_max_f32 v35, v35, v%d" % (VF + 3))
    a("v_max3_f32 v34, v%d, v%d, v%d" % (VF + 4, VF + 5, VF + 6)); a("v_max_f32 v34, v34, v%d" % (VF + 7))
    a("s_cmp_eq_u32 s92, 1"); a("s_cbranch_scc1 L_twomax")
    a("v_max_f32 v35, v35, v34"); a("v_mov_b32 v34, v35")
    a("L_twomax:")
    for r in range(36):
        a("v_fma_f32 v%d, v%d, s38, -v%d" % (VS + r, VS + r, 35 if r < 32 else 34))
    for r in range(36): a("v_exp_f32 v%d, v%d" % (VS + r, VS + r))
    a("s_nop 0")
    for tl in range(9):
        b = VS + 4 * tl
        a("v_cvt_pk_bf16_f32 v%d, v%d, v%d" % (VF + 2 * tl, b, b + 1)); a("v_cvt_pk_bf16_f32 v%d, v%d, v%d" % (VF + 2 * tl + 1, b + 2, b + 3))
        a("ds_write_b64 v32, v[%d:%d] offset:%d" % (VF + 2 * tl, VF + 2 * tl + 1, 2048 * tl))
    a("v_add_f32 v34, v%d, v%d" % (VS + 32, VS + 33)); a("v_add_f32 v36, v%d, v%d" % (VS + 34, VS + 35)); a("v_add_f32 v34, v34, v36")
    n = 32
    while n > 1:
        n //= 2
        for r in range(n): a("v_add_f32 v%d, v%d, v%d" % (VS + r, VS + r, VS + n + r))
    a("v_mov_b32 v35, v%d" % VS)
    bfly("v_add_f32", 34, 36, [3, 4, 5]); bfly("v_add_f32", 35, 36, [3, 4, 5])
    a("ds_write_b32 v17, v35 offset:%d" % (L_LW - L_MX)); a("ds_write_b32 v17, v34 offset:%d" % (L_LW - L_MX + 32))
    set_stage(3)
    a("v_and_b32 v37, 7, v0"); a("v_lshlrev_b32 v37, 15, v37")
    a("v_bfe_u32 v18, v0, 3, 1"); a("v_lshl_add_u32 v37, v18, 6, v37"); a("v_lshl_add_u32 v37, v1, 4, v37")
    a("s_bfe_u32 s38, s2, 0x20005"); a("s_lshl_b32 s38, s38, 18")
    a("s_lshl_b32 s39, s32, 13"); a("s_add_u32 s38, s38, s39")
    a("s_lshr_b32 s39, s2, 7"); a("s_lshl_b32 s39, s39, 12"); a("s_add_u32 s38, s38, s39")
    a("s_and_b32 s39, s2, 31"); a("s_lshl_b32 s39, s39, 7"); a("s_add_u32 s38, s38, s39")
    a("s_add_u32 s38, s38, 0x%x" % W_IN1); gl(42, "s38")
    a("s_add_u32 s44, s42, 0x100000"); a("s_addc_u32 s45, s43, 0")
    a("s_mov_b32 s46, 0xff00ff00"); a("s_mov_b32 s47, 0xff00ff00")
    a("s_lshl_b32 s38, s2, 13"); a("s_lshl_b32 s39, s32, 11"); a("s_add_u32 s38, s38, s39")
    a("s_add_u32 s38, s38, 0x%x" % W_IN1); gl(48, "s38")
    a("v_and_b32 v49, 1, v0"); a("v_lshlrev_b32 v49, 19, v49")
    a("v_bfe_u32 v18, v0, 2, 2"); a("v_lshl_add_u32 v49, v18, 14, v49")
    a("v_bfe_u32 v18, v0, 1, 1"); a("v_lshl_add_u32 v49, v18, 6, v49"); a("v_lshl_add_u32 v49, v1, 4, v49")
    a("s_lshr_b32 s38, s2, 7"); a("s_lshl_b32 s38, s38, 20")
    a("s_lshl_b32 s39, s32, 17"); a("s_add_u32 s38, s38, s39")
    a("s_and_b32 s39, s2, 127"); a("s_lshl_b32 s39, s39, 7"); a("s_add_u32 s38, s38, s39")
    a("s_add_u32 s38, s38, 0x%x" % W_IN2); gl(50, "s38")
    a("s_add_u32 s52, s50, 0x10000"); a("s_addc_u32 s53, s51, 0")
    a("s_and_b32 s38, s2, 127"); a("s_lshl_b32 s38, s38, 14"); a("s_lshl_b32 s39, s32, 12"); a("s_add_u32 s38, s38, s39")
    a("s_add_u32 s38, s38, 0x%x" % W_IN2); gl(54, "s38")
    a("s_bfe_u32 s38, s2, 0x10005"); a("s_lshl_b32 s38, s38, 12")
    a("s_bfe_u32 s39, s2, 0x10006"); a("s_lshl_b32 s39, s39, 11"); a("s_add_u32 s38, s38, s39")
    a("s_and_b32 s39, s2, 31"); a("s_lshl_b32 s39, s39, 6"); a("s_add_u32 s38, s38, s39")
    a("s_add_u32 s56, s24, s38"); a("s_addc_u32 s57, s25, 0")
    for t in range(8):
        m = (3 << (2 * t)) * 0x00010001
        a("s_mov_b32 s%d, 0x%x" % (64 + 2 * t, m)); a("s_mov_b32 s%d, 0x%x" % (65 + 2 * t, m))
    a("v_and_b32 v50, 7, v0"); a("v_lshlrev_b32 v50, 4, v50"); a("s_lshl_b32 s38, s32, 7"); a("v_add_u32 v50, s38, v50")
    a("v_add_u32 v50, %d, v50" % L_OX)
    a("v_and_b32 v51, 1, v0"); a("v_lshlrev_b32 v51, 8, v51"); a("v_lshl_add_u32 v51, v1, 4, v51")
    a("v_add_u32 v51, %d, v51" % L_OX)
    a("v_lshrrev_b32 v52, 3, v0"); a("s_lshl_b32 s38, s32, 4"); a("v_add_u32 v52, s38, v52"); a("v_lshlrev_b32 v52, 2, v52")
    a("v_add_u32 v52, %d, v52" % L_F)
    a("v_lshlrev_b32 v55, 3, v0")
    VH = 136; VR = 176
    a("s_bfe_u32 s38, s2, 0x20005"); a("s_lshr_b32 s39, s32, 1"); a("s_lshl_b32 s39, s39, 2"); a("s_add_u32 s38, s38, s39")
    a("s_lshl_b32 s38, s38, 3"); a("s_mov_b64 s[58:59], 0xff"); a("s_lshl_b64 s[58:59], s[58:59], s38")
    a("s_cmp_lt_u32 s2, 128"); a("s_cselect_b64 s[58:59], -1, s[58:59]")
    for r in range(8): a("v_mov_b32 v%d, v%d" % (VR + r, VT + (r & 3)))
    for r in range(8): a("v_mov_b32 v%d, 0" % (VO + r))
    a("s_cmp_eq_u32 s92, 1"); a("s_cselect_b32 s61, %d, 0" % T0["vsm"])
    wait_min4(sST, "v12", 8, "2")
    stamp(6)
    if wo_early == 1:
        wo_reads("woE", lambda t: VW + 4 * t)
        a("s_waitcnt lgkmcnt(0)")
        set_free(str(T0["vbig"]))
    def ostore(sp, d):
        for r in range(4): a("v_cndmask_b32 v%d, v%d, v%d, s[46:47]" % (d + r, VO + r, VO + 4 + r))
        tag4(d)
        a("global_store_dwordx4 v37, v[%d:%d], s[%d:%d] sc1" % (d, d + 3, sp, sp + 1))
    a("s_mov_b32 s36, %d" % T0["vbig"])
    a("L_v:")
    a("s_and_b32 s37, s36, %d" % (NSLOT - 1)); a("s_lshl_b32 s37, s37, 13")
    a("v_add_u32 v38, s37, v28"); a("v_add_u32 v39, s37, v29")
    wait_word(sL, "v6", "v8", "s36", sleep=psleep)
    a("ds_read_b128 v[%d:%d], v33" % (VF + 8, VF + 11))
    a("ds_read_b64_tr_b16 v[%d:%d], v38" % (VF, VF + 1)); a("ds_read_b64_tr_b16 v[%d:%d], v38 offset:4096" % (VF + 2, VF + 3))
    a("ds_read_b64_tr_b16 v[%d:%d], v39" % (VF + 4, VF + 5)); a("ds_read_b64_tr_b16 v[%d:%d], v39 offset:4096" % (VF + 6, VF + 7))
    a("v_add_u32 v33, 512, v33")
    a("s_add_u32 s36, s36, 1")
    a("v_mov_b32 v8, s36")
    a("s_waitcnt lgkmcnt(2)")
    a("v_mfma_f32_16x16x32_bf16 v[%d:%d], v[%d:%d], v[%d:%d], v[%d:%d]" % (VO, VO + 3, VF, VF + 3, VF + 8, VF + 11, VO, VO + 3))
    a("s_waitcnt lgkmcnt(0)")
    a("v_mfma_f32_16x16x32_bf16 v[%d:%d], v[%d:%d], v[%d:%d], v[%d:%d]" % (VO + 4, VO + 7, VF + 4, VF + 7, VF + 8, VF + 11, VO + 4, VO + 7))
    def rdv(base):
        a("ds_read_b64_tr_b16 v[%d:%d], v38" % (base, base + 1)); a("ds_read_b64_tr_b16 v[%d:%d], v38 offset:4096" % (base + 2, base + 3))
        a("ds_read_b64_tr_b16 v[%d:%d], v39" % (base + 4, base + 5)); a("ds_read_b64_tr_b16 v[%d:%d], v39 offset:4096" % (base + 6, base + 7))
    recheck(rdv, 8, 2)
    a("ds_write_b32 v4, v8")
    a("s_cmp_eq_u32 s36, s61")
    a("s_cbranch_scc1 L_vmid")
    a("s_cmp_lt_u32 s36, %d" % VEND)
    a("s_cbranch_scc1 L_v")
    a("s_nop 2")
    ostore(42, VO + 8)
    stamp(8)
    def h1loads():
        for i in range(2):
            a("global_load_dwordx4 v[%d:%d], v48, s[48:49] offset:%d sc1" % (VR + 4 * i, VR + 4 * i + 3, 1024 * i))
    if h1pre:
        a("s_mov_b64 exec, s[58:59]"); h1loads(); a("s_mov_b64 exec, -1")
    if not wo_early: wo_reads("woE", lambda t: VW + 4 * t)
    wo_reads("woL", lambda t: VW + 4 * t + 2)
    wait_word(sHS, "v7", "v8", "1")
    a("ds_read_b32 v53, v52"); a("ds_read_b32 v54, v52 offset:32")
    stamp(9)
    poll_valid(h1loads, tagcheck(VR, 8, VH, 8), sleep=h1sleep, first=not h1pre, mask0="s[58:59]")
    stamp(10)
    a("s_waitcnt lgkmcnt(0)")
    for r in range(4): a("v_mul_f32 v%d, v%d, v53" % (VH + r, VH + r))
    for r in range(4): a("v_fmac_f32 v%d, v%d, v54" % (VH + r, VH + 4 + r))
    bfly4("v_add_f32", VH, VH + 4, [3, 4, 5])
    a("s_mov_b64 exec, 0xff")
    a("ds_write_b128 v50, v[%d:%d]" % (VH, VH + 3))
    a("s_mov_b64 exec, -1")
    a("s_waitcnt lgkmcnt(0)")
    a("s_barrier")
    for k, off in enumerate((0, 64, 128, 192)):
        a("ds_read_b128 v[%d:%d], v51 offset:%d" % (VH + 4 * k, VH + 4 * k + 3, off))
    a("s_waitcnt lgkmcnt(0)")
    for r in range(8): a("v_add_f32 v%d, v%d, v%d" % (VH + r, VH + r, VH + 8 + r))
    for r in range(4): a("v_cvt_pk_bf16_f32 v%d, v%d, v%d" % (VH + 16 + r, VH + 2 * r, VH + 2 * r + 1))
    VB = 160
    def cnd(t):
        for r in range(4): a("v_cndmask_b32 v%d, 0, v%d, s[%d:%d]" % (VB + 4 * t + r, VH + 16 + r, 64 + 2 * t, 65 + 2 * t))
    def mm(t):
        for ch in range(2):
            w = VW + 4 * (8 * ch + t); d = VO + 4 * ch
            c = "0" if t == 0 else "v[%d:%d]" % (d, d + 3)
            a("v_mfma_f32_16x16x32_bf16 v[%d:%d], v[%d:%d], v[%d:%d], %s" % (d, d + 3, w, w + 3, VB + 4 * t, VB + 4 * t + 3, c))
    if ilv:
        cnd(0)
        for t in range(8):
            if t < 7: cnd(t + 1)
            mm(t)
    else:
        for t in range(8): cnd(t)
        for t in range(8): mm(t)
    a("s_nop 6")
    tag4(VO)
    a("global_store_dwordx4 v49, v[%d:%d], s[50:51] sc1" % (VO, VO + 3))
    tag4(VO + 4)
    a("global_store_dwordx4 v49, v[%d:%d], s[52:53] sc1" % (VO + 4, VO + 7))
    stamp(11)
    a("s_cmp_ge_u32 s2, 128")
    a("s_cbranch_scc1 L_fin")
    def h2loads():
        for i in range(4):
            a("global_load_dwordx4 v[%d:%d], v48, s[54:55] offset:%d sc1" % (VR + 4 * i, VR + 4 * i + 3, 1024 * i))
    if ackw: a("s_waitcnt vmcnt(0)")
    poll_valid(h2loads, tagcheck(VR, 16, VH, 8), sleep=h2sleep)
    stamp(12)
    for r in range(8): a("v_add_f32 v%d, v%d, v%d" % (VH + r, VH + r, VH + 8 + r))
    for r in range(4): a("v_add_f32 v%d, v%d, v%d" % (VH + r, VH + r, VH + 4 + r))
    bfly4("v_add_f32", VH, VH + 4, [3, 4, 5])
    a("s_mov_b64 exec, 0xff")
    a("ds_write_b128 v50, v[%d:%d] offset:%d" % (VH, VH + 3, L_RX - L_OX))
    a("s_waitcnt lgkmcnt(0)")
    a("s_barrier")
    a("s_cmp_lg_u32 s32, 0")
    a("s_cbranch_scc1 L_fin")
    for k in range(4):
        a("ds_read_b128 v[%d:%d], v50 offset:%d" % (VH + 4 * k, VH + 4 * k + 3, L_RX - L_OX + 128 * k))
    a("s_waitcnt lgkmcnt(0)")
    for r in range(8): a("v_add_f32 v%d, v%d, v%d" % (VH + r, VH + r, VH + 8 + r))
    for r in range(4): a("v_add_f32 v%d, v%d, v%d" % (VH + r, VH + r, VH + 4 + r))
    a("v_cvt_pk_bf16_f32 v%d, v%d, v%d" % (VH + 4, VH, VH + 1)); a("v_cvt_pk_bf16_f32 v%d, v%d, v%d" % (VH + 5, VH + 2, VH + 3))
    a("global_store_dwordx2 v55, v[%d:%d], s[56:57]" % (VH + 4, VH + 5))
    a("L_fin:")
    stamp(13)
    diag_end(2)
    stamp_flush()
    a("L_end:")
    a("s_endpgm")
    a("L_vmid:")
    a("s_nop 4")
    ostore(44, 196)
    for r in range(8): a("v_mov_b32 v%d, 0" % (VO + r))
    stamp(7)
    a("s_branch L_v")
    gen.sites = sites
    nv = 256 if (stamps or wo_early == 2 or dchk) else 216
    return (header(["grid=(256,1,1) block=(384,1,1) lds=%d" % LDS_BYTES]) + kernel_open(KNAME) + a.text()
            + RODATA + descriptor(KNAME, nv, 100, nv))

if __name__ == "__main__":
    open(sys.argv[1], "w").write(gen(**eval("dict(%s)" % (sys.argv[2] if len(sys.argv) > 2 else ""))))
```

```python
import sys, math, struct
from asmlib import *

NSLOT = 16
PBASE = NSLOT * 8192
QBASE = PBASE
XBASE = PBASE + 8192
SY = PBASE + 36 * 512
L_LANDED = SY
L_FREE = SY + 256
L_STAGE = SY + 1280
L_HST = SY + 2304
L_MX = SY + 2560
L_LW = SY + 2816
L_F = SY + 3072
L_OX = SY + 3328
L_RX = SY + 3840
L_LVL = SY + 4352
L_NON = SY + 4608
LDS_BYTES = SY + 4608 + 512
W_QP = 0x000000
W_ML = 0x020000
W_EP = 0x040000
W_PB = 0x050000
W_IN1 = 0x100000
GAP = 0x10000
W_IN2 = 0x300000 + GAP
STAMP_OFF = 0x10000000
CSCALE = math.log2(math.e) / math.sqrt(128.0)
def f2u(x): return struct.unpack("<I", struct.pack("<f", x))[0]

def gen(win=20, win0=None, winT=None, tailT=0, stamps=False, wo_early=1, budget=1 << 27, psleep=0, qsleep=2, dbg='',
        ml_at=16, mlsleep=8, qg_at=14, h1sleep=0, h2sleep=0, h1pre=1, blate=0, epsc=1, ackw=1, ilv=1, qx=0, vst=0, burst=3, levels=None, cps=None, lvl0=1, thr=None, nsamp=16, redisp=4, ldpol='nt', wsoff=0, epoff=None, diag=0, dchk=0, nz_at=1, tag_at=5, touch=0, bar_at=3, cbar=0, rank1=0, dur=0):
    dbg = dbg.split()
    win0 = win0 or win
    winT = winT or win
    a = Asm()
    uid = [0]
    def lab(p):
        uid[0] += 1
        return "L_%s_%d" % (p, uid[0])
    segs = [("wq", 8)]
    if wo_early == 2: segs += [("woE", 4)]
    segs += [("kbig", 32), ("ksm", 4)]
    if wo_early == 1: segs += [("woE", 4)]
    segs += [("vbig", 32), ("vsm", 4)]
    segs += [("woL", 4)] if wo_early else [("woE", 4), ("woL", 4)]
    T0 = {}; t = 0
    for n, c in segs:
        T0[n] = t; t += c
    NT = t
    VEND = T0["vsm"] + 4
    assert T0["wq"] == 0 and (T0["woE"] % NSLOT) <= NSLOT - 4 and (T0["woL"] % NSLOT) <= NSLOT - 4
    assert T0["kbig"] % 4 == 0
    def role():
        a("s_lshr_b32 s93, s2, 5"); a("s_and_b32 s92, s2, 7"); a("s_cmp_eq_u32 s92, s93"); a("s_cselect_b32 s92, 1, 0")

    def offsets():
        a("s_lshl_b32 s57, s2, 18")
        a("s_lshl_b32 s58, s93, 23"); a("s_bfe_u32 s59, s2, 0x20003"); a("s_lshl_b32 s55, s59, 18"); a("s_add_u32 s54, s58, s55")
        a("s_add_u32 s54, s54, %d" % ((32768 - 4096) * 256))
        a("s_lshl_b32 s55, s55, 3"); a("s_add_u32 s55, s55, s58"); a("s_lshl_b32 s58, s93, 18"); a("s_add_u32 s55, s55, s58")
        a("s_and_b32 s58, s2, 7"); a("s_lshl_b32 s58, s58, 15"); a("s_add_u32 s55, s55, s58")
        a("s_cmp_eq_u32 s92, 1")
        a("s_cselect_b32 s48, s16, s6"); a("s_cselect_b32 s49, s17, s7")
        a("s_cselect_b32 s50, s18, s8"); a("s_cselect_b32 s51, s19, s9")
        a("s_cselect_b32 s54, s54, s57")
        a("s_and_b32 s59, s2, 127"); a("s_lshl_b32 s59, s59, 16")

    sB = "s31"
    VST = 250
    def stamp(k):
        if stamps:
            a("s_memrealtime s[96:97]"); a("s_waitcnt lgkmcnt(0)"); a("v_writelane_b32 v%d, s96, %d" % (VST, k))
    def stamp_flush():
        if stamps:
            a("s_mov_b64 exec, -1")
            a("s_getreg_b32 s96, hwreg(HW_REG_XCC_ID)")
            a("v_writelane_b32 v%d, s96, 63" % VST)
            a("s_mul_i32 s96, s2, 6"); a("s_add_u32 s96, s96, s30"); a("s_lshl_b32 s96, s96, 8")
            a("v_lshl_add_u32 v251, v0, 2, s96")
            a("s_load_dwordx2 s[98:99], s[0:1], 96"); a("s_waitcnt lgkmcnt(0)")
            a("s_add_u32 s98, s98, 0x%x" % STAMP_OFF); a("s_addc_u32 s99, s99, 0")
            a("global_store_dword v251, v%d, s[98:99]" % VST)
            a("s_waitcnt vmcnt(0)")
    site = [0]; sites = []
    def diag_end(role):
        if diag:
            sk = lab("dg")
            a("s_cmp_eq_u32 s94, 0"); a("s_cbranch_scc1 " + sk)
            a("s_mov_b64 exec, 1")
            a("s_lshl_b32 s95, s2, 8"); a("s_or_b32 s95, s95, s94")
            a("v_mov_b32 v1, s95"); a("v_mov_b32 v2, 0"); a("v_mov_b32 v3, 1")
            a("global_store_dword v2, v1, s[26:27] offset:%d sc1" % (4 * role))
            a("global_atomic_add v2, v3, s[26:27] offset:%d sc1" % (4 * (4 + role)))
            a("s_waitcnt vmcnt(0)")
            a(sk + ":")
    def recheck(reads, n, phase):
        if not dchk: return
        reads(216)
        a("s_waitcnt lgkmcnt(0)")
        a("v_xor_b32 v248, v128, v216")
        for i in range(1, n): a("v_bitop3_b32 v248, v%d, v%d, v248 bitop3:0xbe" % (128 + i, 216 + i))
        a("v_cmp_ne_u32 vcc, 0, v248")
        sk = lab("rc")
        a("s_and_b64 vcc, vcc, vcc"); a("s_cbranch_scc0 " + sk)
        a("s_mov_b64 exec, 1")
        a("v_mov_b32 v246, 0"); a("v_mov_b32 v247, 1")
        a("global_atomic_add v246, v247, s[26:27] offset:%d sc1" % (4 * (8 + phase)))
        a("s_lshl_b32 s95, s36, 8"); a("s_or_b32 s95, s95, s2"); a("v_mov_b32 v247, s95")
        a("global_store_dword v246, v247, s[26:27] offset:%d sc1" % (4 * (12 + phase)))
        a("s_mov_b64 exec, -1")
        a(sk + ":")
    def budget_loop(label, cost=1):
        a("s_sub_u32 %s, %s, %d" % (sB, sB, cost))
        a("s_cbranch_scc0 %s" % label)
        a("s_mov_b32 %s, 0" % sB)
        if diag:
            site[0] += 1
            a("s_cmp_eq_u32 s94, 0"); a("s_cselect_b32 s94, %d, s94" % site[0])
            sites.append((site[0], label, len(a.l)))
    def wait_word(scache, vaddr, vtmp, thr, off=0, sleep=0):
        lp = lab("pw"); ok = lab("ok")
        a(lp + ":")
        a("s_cmp_gt_u32 %s, %s" % (scache, thr))
        a("s_cbranch_scc1 " + ok)
        if sleep: a("s_sleep %d" % sleep)
        a("ds_read_b32 %s, %s offset:%d" % (vtmp, vaddr, off))
        a("s_waitcnt lgkmcnt(0)")
        a("v_readfirstlane_b32 %s, %s" % (scache, vtmp))
        budget_loop(lp, 1 + sleep // 2)
        a(ok + ":")
    def wait_min4(scache, vaddr, vt, thr, off=0, sleep=0, cmp="s_cmp_gt_u32"):
        lp = lab("pm"); ok = lab("ok")
        a(lp + ":")
        a("%s %s, %s" % (cmp, scache, thr))
        a("s_cbranch_scc1 " + ok)
        if sleep: a("s_sleep %d" % sleep)
        a("ds_read_b128 v[%d:%d], %s offset:%d" % (vt, vt + 3, vaddr, off))
        a("s_waitcnt lgkmcnt(0)")
        a("v_min3_u32 v%d, v%d, v%d, v%d" % (vt, vt, vt + 1, vt + 2))
        a("v_min_u32 v%d, v%d, v%d" % (vt, vt, vt + 3))
        a("s_nop 0")
        a("v_readfirstlane_b32 %s, v%d" % (scache, vt))
        budget_loop(lp, 1 + sleep // 2)
        a(ok + ":")
    VT = 56
    def poll_valid(loads, check, sleep=1, first=True, mask0=None):
        if "nopoll" in dbg: return
        if first:
            if mask0: a("s_mov_b64 exec, %s" % mask0)
            loads()
        lp = lab("pv"); ok = lab("ok")
        a(lp + ":")
        a("s_mov_b64 exec, -1")
        a("s_waitcnt vmcnt(0)")
        check()
        a("s_and_b64 exec, vcc, vcc")
        a("s_cbranch_scc0 " + ok)
        if sleep: a("s_sleep %d" % sleep)
        loads()
        budget_loop(lp, 64)
        a(ok + ":")
        a("s_mov_b64 exec, -1")
        a("s_waitcnt vmcnt(0)")
    def tagcheck(base, n, dst, vtmp):
        def f():
            for i in range(n): a("v_xor_b32 v%d, v%d, v%d" % (dst + i, base + i, VT + (i & 3)))
            h = n // 2
            for c in range(2):
                r = list(range(dst + c * h, dst + (c + 1) * h))
                a("v_or3_b32 v%d, v%d, v%d, v%d" % (vtmp + c, r[0], r[1], r[2])); r = r[3:]
                while len(r) >= 2:
                    a("v_or3_b32 v%d, v%d, v%d, v%d" % (vtmp + c, vtmp + c, r[0], r[1])); r = r[2:]
                if r: a("v_or_b32 v%d, v%d, v%d" % (vtmp + c, vtmp + c, r[0]))
            a("v_bitop3_b32 v%d, v%d, v%d, s60 bitop3:0xa8" % (vtmp, vtmp, vtmp + 1))
            a("v_cmp_ne_u32 vcc, 0, v%d" % vtmp)
        return f
    def tag4(d, s=None):
        s = d if s is None else s
        for r in range(4): a("v_bfi_b32 v%d, s60, v%d, v%d" % (d + r, VT + r, s + r))
    def epoch_load():
        if wsoff: a("s_add_u32 s28, s28, 0x%x" % wsoff); a("s_addc_u32 s29, s29, 0")
    def epoch_tags():
        a("s_mov_b32 s60, 0x9e3779b1"); a("v_mul_lo_u32 v62, v60, s60")
        a("s_mov_b32 s60, 0x85ebca6b"); a("v_xor_b32 v63, v61, v62"); a("v_mul_lo_u32 v63, v63, s60")
        a("s_movk_i32 s60, 0x7ff")
        a("v_and_b32 v56, s60, v62")
        a("v_bfe_u32 v57, v62, 11, 10"); a("v_lshlrev_b32 v57, 1, v57")
        a("v_and_b32 v58, 1, v62"); a("v_xor_b32 v58, 1, v58"); a("v_or_b32 v57, v57, v58")
        a("v_lshrrev_b32 v58, 21, v62"); a("v_lshrrev_b32 v59, 21, v63")
    def bfly(op, v, vt, bits):
        for b in bits:
            if b <= 3:
                a("s_nop 1")
                a("%s_dpp v%d, v%d, v%d row_ror:%d row_mask:0xf bank_mask:0xf" % (op, v, v, v, 1 << b))
            else:
                a("v_mov_b32 v%d, v%d" % (vt, v))
                a("s_nop 1")
                a("v_permlane%d_swap_b32 v%d, v%d" % (1 << b, v, vt))
                a("%s v%d, v%d, v%d" % (op, v, v, vt))
    def bfly4(op, v, vt, bits):
        for b in bits:
            if b <= 3:
                for r in range(4):
                    a("%s_dpp v%d, v%d, v%d row_ror:%d row_mask:0xf bank_mask:0xf" % (op, v + r, v + r, v + r, 1 << b))
            else:
                for r in range(4): a("v_mov_b32 v%d, v%d" % (vt + r, v + r))
                for r in range(4): a("v_permlane%d_swap_b32 v%d, v%d" % (1 << b, v + r, vt + r))
                for r in range(4): a("%s v%d, v%d, v%d" % (op, v + r, v + r, vt + r))

    a("s_cmp_ge_u32 s2, 256")
    a("s_cbranch_scc1 L_end")
    a("s_load_dwordx16 s[4:19], s[0:1], 0")
    a("s_load_dwordx8 s[20:27], s[0:1], 64")
    a("s_load_dwordx2 s[28:29], s[0:1], 96")
    a("v_lshrrev_b32 v1, 6, v0")
    a("v_lshlrev_b32 v3, 3, v0")
    a("v_mov_b32 v4, 0"); a("v_mov_b32 v5, 0")
    a("v_readfirstlane_b32 s30, v1")
    a("v_add_u32 v3, %d, v3" % SY)
    a("v_and_b32 v0, 63, v0")
    a("ds_write_b64 v3, v[4:5]")
    a("s_mov_b32 %s, %d" % (sB, budget))
    if diag: a("s_mov_b32 s94, 0")
    if stamps:
        a("v_mov_b32 v%d, 0" % VST); stamp(0)
    a("s_xor_b32 s3, s2, %d" % qx)
    a("v_lshrrev_b32 v1, 4, v0")
    a("v_and_b32 v2, 15, v0")
    a("s_cmp_lg_u32 s30, 0")
    a("s_cbranch_scc1 L_notloader")

    a("s_setprio 3")
    vA = list(range(4, 12))
    vK = [12, 13, 14, 15]; vV = [16, 17]; vWO = 18
    a("v_lshrrev_b32 v20, 3, v0"); a("v_and_b32 v21, 7, v0"); a("v_and_b32 v22, 1, v1")
    a("v_lshlrev_b32 v20, 13, v20"); a("v_lshlrev_b32 v22, 1, v22")
    a("v_xor_b32 v21, v21, v22")
    a("v_lshl_add_u32 v4, v21, 4, v20")
    a("v_xor_b32 v5, 64, v4")
    a("s_and_b32 s56, s3, 1"); a("s_lshl_b32 s56, s56, 22")
    a("s_bfe_u32 s57, s3, 0x60001"); a("s_lshl_b32 s57, s57, 7"); a("s_add_u32 s56, s56, s57")
    a("s_mov_b32 s34, 0x800000"); a("s_mov_b32 s35, 0x20000")
    a("s_movk_i32 s38, 0x1000"); a("s_mov_b32 s39, 0x20000")
    a("s_and_b32 s57, s3, 1"); a("s_lshl_b32 s57, s57, 10")
    a("v_lshlrev_b32 v18, 4, v0"); a("s_mov_b32 m0, %d" % XBASE)
    a("s_mov_b32 s40, 0"); a("s_mov_b32 s41, 0")
    a("v_lshlrev_b32 v24, 2, v0"); a("v_add_u32 v24, %d, v24" % L_LANDED)
    a("v_mov_b32 v25, 0")
    a("s_cmp_lt_u32 s2, 128")
    a("s_waitcnt lgkmcnt(0)")
    a("s_cselect_b32 s32, s10, s20"); a("s_cselect_b32 s33, s11, s21")
    a("s_cselect_b32 s36, s4, s14"); a("s_cselect_b32 s37, s5, s15")
    a("s_and_b32 s33, s33, 0xffff"); a("s_and_b32 s37, s37, 0xffff")
    stamp(21)
    a("buffer_load_dwordx4 v18, s[36:39], s57 offen lds")
    a("s_add_u32 s57, s57, 1024")
    a("buffer_load_dwordx4 v18, s[36:39], s57 offen offset:1024 lds")
    def signal(w, j):
        js = (w - 1) % 8 or 8
        if j == js:
            d = (w - 1 - js) // 8
            if d: a("s_sub_i32 s42, s40, %d" % d); a("s_max_i32 s42, s42, 0"); a("v_mov_b32 v25, s42")
            else: a("v_mov_b32 v25, s40")
            a("ds_write_b32 v24, v25")
    def wq_tile(w, waits=True):
        for i in range(8):
            if i % 4 == 0: a("s_add_u32 m0, s41, %d" % (i * 1024)); a("s_nop 0")
            a("buffer_load_dwordx4 v%d, s[32:35], s56 offen offset:%d %s lds" % (vA[i & 1], (i % 4) * 1024, ldpol))
            a("s_add_u32 s56, s56, %d" % (64512 + (4096 if i % 4 == 3 else 0)))
            if waits:
                a("s_waitcnt vmcnt(%d)" % (w - 1)); signal(w, i + 1)
        a("s_add_u32 s40, s40, 1"); a("s_add_u32 s41, s41, 8192")
    assert win0 >= 8 * burst
    a("L_wq0:")
    wq_tile(win0, waits=False)
    a("s_cmp_lt_u32 s40, %d" % burst); a("s_cbranch_scc1 L_wq0")
    stamp(22)
    if bar_at <= burst:
        a("s_barrier"); stamp(1)
    for i in range(4):
        a("v_add_u32 v20, %d, v1" % (4 * i)); a("v_xor_b32 v20, v20, v2"); a("v_lshlrev_b32 v20, 4, v20")
        a("v_lshl_add_u32 v%d, v1, 8, v20" % vK[i])
    for i in range(2):
        a("v_add_u32 v20, %d, v1" % (4 * i)); a("v_lshlrev_b32 v20, 1, v20"); a("v_xor_b32 v20, v20, v2")
        a("v_lshlrev_b32 v20, 4, v20"); a("v_lshl_add_u32 v%d, v1, 8, v20" % vV[i])
    a("v_mov_b32 v26, %d" % L_FREE); a("v_mov_b32 v19, %d" % L_LVL)
    a("s_cmp_lt_u32 s2, 128")
    a("s_cselect_b32 s52, s12, s22"); a("s_cselect_b32 s53, s13, s23")
    role()
    offsets()
    a("s_mov_b32 s61, 0")
    a("L_wq1:")
    wq_tile(win0)
    if bar_at > burst:
        a("s_cmp_lg_u32 s40, %d" % bar_at); a("s_cbranch_scc1 L_nobar")
        a("s_barrier"); stamp(1)
        a("L_nobar:")
    a("s_cmp_lt_u32 s40, 8"); a("s_cbranch_scc1 L_wq1")
    def tile_loop(name, w, redispatch=False):
        a(name + ":")
        if "nofree" not in dbg:
            a("s_sub_i32 s42, s40, %d" % NSLOT)
            wait_min4("s61", "v26", 28, "s42", cmp="s_cmp_gt_i32")
        for h in range(2):
            if h == 0: a("s_mov_b32 m0, s41"); a("s_add_u32 s45, s56, 4096")
            else: a("s_add_u32 m0, s41, 4096"); a("s_nop 0")
            for i in range(4):
                a("buffer_load_dwordx4 v%d, s[32:35], %s offen offset:%d %s lds" % (vA[4 * h + i], "s45" if h else "s56", i * 1024, ldpol))
                a("s_waitcnt vmcnt(%d)" % (w - 1)); signal(w, 4 * h + i + 1)
        for i in range(8): a("v_xor_b32 v%d, s44, v%d" % (vA[i], vA[i]))
        a("s_add_u32 s56, s56, 8192")
        a("s_add_u32 s41, s41, 8192"); a("s_and_b32 s41, s41, %d" % (NSLOT * 8192 - 1))
        a("s_add_u32 s40, s40, 1")
        a("s_cmp_lt_u32 s40, s43")
        if redispatch:
            a("s_cbranch_scc0 L_ret")
            a("s_and_b32 s42, s40, %d" % (redisp - 1))
            a("s_cbranch_scc1 " + name)
            a("s_branch L_tile")
        else:
            a("s_cbranch_scc1 " + name)
            a("s_setpc_b64 s[46:47]")
    def seg_setup(name):
        lo, sreg, base, size = {"kbig": (48, 54, 0, 64 << 20), "ksm": (6, 55, 0, 64 << 20), "vbig": (50, 54, 0, 64 << 20), "vsm": (8, 55, 0, 64 << 20),
                                "woE": (52, 59, 0, 8 << 20), "woL": (52, 59, 32768, 8 << 20)}[name]
        a("s_mov_b32 s32, s%d" % lo); a("s_and_b32 s33, s%d, 0xffff" % (lo + 1)); a("s_mov_b32 s34, 0x%x" % size)
        a("s_add_u32 s56, s%d, %d" % (sreg, base))
        if name in ("kbig", "vbig", "woE", "woL"):
            for i in range(8):
                if name[0] == "k": a("v_mov_b32 v%d, v%d" % (vA[i], vK[i & 3]))
                elif name[0] == "v": a("v_mov_b32 v%d, v%d" % (vA[i], vV[i & 1]))
                else: a("v_xor_b32 v%d, %d, v18" % (vA[i], 32 * (i >> 1)))
            a("s_mov_b32 s44, %d" % (128 if name[0] == "w" else 0))
    stampat = {"kbig": 3, "ksm": 4, "vbig": 5, "vsm": 6}
    for name, cnt in segs[1:]:
        if name in stampat: stamp(stampat[name])
        seg_setup(name)
        end = T0[name] + cnt
        cut = NT - tailT
        if vst and name == "vbig":
            for q in range(1, 4):
                if T0[name] + 8 * q <= cut:
                    a("s_mov_b32 s43, %d" % (T0[name] + 8 * q)); a("s_call_b64 s[46:47], L_tile"); stamp(8 + q)
        if tailT and T0[name] < cut < end:
            a("s_mov_b32 s43, %d" % cut); a("s_call_b64 s[46:47], L_tile")
            a("s_mov_b32 s43, %d" % end); a("s_call_b64 s[46:47], L_tileT")
        else:
            a("s_mov_b32 s43, %d" % end)
            a("s_call_b64 s[46:47], %s" % ("L_tileT" if (tailT and T0[name] >= cut) else "L_tile"))
        if name == "vsm": stamp(7)
    wl = winT if tailT else (max(levels) if levels else win)
    done = (8 * NT - (wl - 1)) // 8
    while done < NT:
        done += 1
        a("s_waitcnt vmcnt(%d)" % (8 * (NT - done)))
        a("v_mov_b32 v25, %d" % done); a("ds_write_b32 v24, v25")
    a("s_waitcnt lgkmcnt(0)")
    stamp(8)
    diag_end(0)
    stamp_flush()
    a("s_endpgm")
    if levels:
        a("L_tile:")
        a("ds_read_b32 v27, v19")
        a("s_waitcnt lgkmcnt(0)")
        a("v_readfirstlane_b32 s42, v27")
        for k in range(1, len(levels)):
            a("s_cmp_eq_u32 s42, %d" % k); a("s_cbranch_scc1 L_tile_%d" % k)
        for k, w in enumerate(levels): tile_loop("L_tile_%d" % k, w, True)
        a("L_ret:")
        a("s_setpc_b64 s[46:47]")
    else:
        tile_loop("L_tile", win)
    if tailT: tile_loop("L_tileT", winT)

    a("L_notloader:")
    a("s_cmp_gt_u32 s30, 1")
    a("s_cbranch_scc1 L_cons")
    a("v_lshlrev_b32 v24, 2, v0"); a("v_add_u32 v24, %d, v24" % L_HST)
    if levels: a("v_mov_b32 v25, %d" % lvl0); a("ds_write_b32 v24, v25 offset:%d" % (L_LVL - L_HST))
    a("v_mov_b32 v10, 0")
    a("s_memrealtime s[90:91]")
    a("s_waitcnt lgkmcnt(0)")
    a("s_cmp_lg_u32 s2, 0"); a("s_cbranch_scc1 L_nononce")
    a("s_or_b32 s90, s90, 1"); a("s_or_b32 s91, s91, 0x80000000")
    a("v_mov_b32 v60, s90"); a("v_mov_b32 v61, s91")
    a("s_mov_b64 exec, 1")
    a("global_store_dwordx2 v10, v[60:61], s[26:27] offset:128 sc1")
    a("s_mov_b64 exec, -1")
    a("L_nononce:")
    epoch_load()
    a("s_mov_b32 s41, 0"); a("v_mov_b32 v26, %d" % L_STAGE)
    a("s_mov_b32 s42, 0"); a("v_mov_b32 v27, %d" % L_LANDED)
    a("s_lshl_b32 s32, s2, 8")
    a("s_add_u32 s33, s32, 0x%x" % W_ML); a("s_add_u32 s38, s28, s33"); a("s_addc_u32 s39, s29, 0")
    a("s_bfe_u32 s32, s2, 0x20005"); a("s_lshl_b32 s32, s32, 13")
    a("s_bfe_u32 s33, s2, 0x30002")
    a("s_lshr_b32 s34, s2, 7"); a("s_lshl_b32 s34, s34, 3"); a("s_add_u32 s33, s33, s34"); a("s_lshl_b32 s33, s33, 4")
    a("s_add_u32 s32, s32, s33"); a("s_add_u32 s32, s32, 0x%x" % W_ML)
    a("s_add_u32 s34, s28, s32"); a("s_addc_u32 s35, s29, 0")
    a("v_lshrrev_b32 v12, 5, v0"); a("v_lshlrev_b32 v12, 15, v12")
    a("v_and_b32 v16, 31, v0"); a("v_lshl_add_u32 v12, v16, 8, v12")
    a("v_and_b32 v13, 7, v0"); a("v_lshlrev_b32 v13, 2, v13"); a("v_add_u32 v13, %d, v13" % L_MX)
    a("v_lshlrev_b32 v11, 4, v2")
    role()
    a("s_bfe_u32 s32, s2, 0x20005")
    a("s_lshl_b32 s44, 0x01010101, s32"); a("s_lshl_b32 s45, s44, 4")
    a("s_cmp_lt_u32 s2, 128")
    a("s_cselect_b32 s44, -1, s44"); a("s_cselect_b32 s45, -1, s45")
    a("s_cmp_eq_u32 s92, 1")
    a("s_cselect_b32 s48, 0xff, 0"); a("s_mov_b32 s49, 0")
    a("s_cselect_b32 s50, 0xff00, 0"); a("s_mov_b32 s51, 0")
    a("s_or_b32 s46, s50, 0xff"); a("s_mov_b32 s47, 0")
    if touch:
        a("s_mov_b64 s[64:65], s[48:49]"); a("s_mov_b64 s[66:67], s[50:51]"); a("s_mov_b64 s[68:69], s[44:45]"); a("s_mov_b64 s[70:71], s[46:47]")
        a("s_cmp_lt_u32 s2, 128")
        a("s_cselect_b32 s52, s12, s22"); a("s_cselect_b32 s53, s13, s23")
        offsets()
        a("s_mov_b64 exec, 1")
        a("v_mov_b32 v32, s54"); a("v_mov_b32 v33, s55"); a("v_mov_b32 v34, s59")
        a("global_load_dword v36, v32, s[48:49] nt"); a("global_load_dword v37, v32, s[50:51] nt")
        a("global_load_dword v38, v33, s[6:7] nt"); a("global_load_dword v39, v33, s[8:9] nt")
        a("global_load_dword v40, v34, s[52:53] nt")
        if touch > 1:
            for k, off in enumerate((0x0f0000, 0x300000 + GAP // 2, 0x500000 + GAP)):
                a("v_mov_b32 v35, 0x%x" % off); a("global_load_dword v%d, v35, s[28:29] nt" % (41 + k))
            a("global_load_dword v44, v10, s[24:25] nt")
        a("s_mov_b64 exec, -1")
        a("s_mov_b64 s[48:49], s[64:65]"); a("s_mov_b64 s[50:51], s[66:67]"); a("s_mov_b64 s[44:45], s[68:69]"); a("s_mov_b64 s[46:47], s[70:71]")
    stamp(22)
    a("s_barrier")
    if nz_at: wait_word("s42", "v27", "v28", str(nz_at - 1), sleep=2)
    def nzcheck():
        a("v_min_u32 v18, v60, v61"); a("v_cmp_eq_u32 vcc, 0, v18")
    poll_valid(lambda: a("global_load_dwordx2 v[60:61], v10, s[26:27] offset:128 sc1"), nzcheck, sleep=4)
    a("v_lshlrev_b32 v18, 3, v0"); a("v_add_u32 v18, %d, v18" % L_NON)
    a("ds_write_b64 v18, v[60:61]")
    a("v_mov_b32 v25, 1"); a("ds_write_b32 v24, v25")
    stamp(2)
    epoch_tags()
    a("v_mov_b32 v14, 0xff800000"); a("v_mov_b32 v15, 0"); a("v_mov_b32 v16, v62"); a("v_mov_b32 v17, v63")
    cpl = list(cps or [])
    if cpl:
        offs = [(9 + 33 * k + (16 if k >= 8 else 0)) & 255 for k in range(nsamp)]
        for k, d in enumerate(offs):
            a("s_add_u32 s%d, s2, %d" % (64 + k, d)); a("s_and_b32 s%d, s%d, 255" % (64 + k, 64 + k)); a("s_lshl_b32 s%d, s%d, 7" % (64 + k, 64 + k))
        a("s_add_u32 s52, s28, 0x%x" % W_PB); a("s_addc_u32 s53, s29, 0")
        a("s_lshl_b32 s32, s2, 7"); a("v_mov_b32 v20, s32")
        a("v_readfirstlane_b32 s54, v62")
        a("v_lshl_add_u32 v21, v0, 4, v20")
        for r in range(4): a("v_mov_b32 v%d, v62" % (64 + r))
    if rank1:
        offs = [(9 + 33 * k + (16 if k >= 8 else 0)) & 255 for k in range(nsamp)]
        for k, d in enumerate(offs):
            a("s_add_u32 s%d, s2, %d" % (64 + k, d)); a("s_and_b32 s%d, s%d, 255" % (64 + k, 64 + k)); a("s_lshl_b32 s%d, s%d, 8" % (64 + k, 64 + k))
        a("s_add_u32 s52, s28, 0x%x" % (W_ML + 8)); a("s_addc_u32 s53, s29, 0")
        a("v_readfirstlane_b32 s54, v62")
    def checkpoints(upto):
        while cpl and cpl[0] <= upto:
            c = cpl.pop(0)
            wait_word("s42", "v27", "v28", str(c - 1), sleep=4)
            if "fullpb" in dbg:
                a("s_mov_b64 exec, 0xff")
                a("global_store_dwordx4 v21, v[64:67], s[52:53] sc1")
            elif "nopbst" not in dbg:
                a("s_mov_b64 exec, 1")
                a("global_store_dword v20, v62, s[52:53] sc1")
            a("s_mov_b64 exec, -1")
            if "nopbld" not in dbg:
                for k in range(0, nsamp): a("s_load_dword s%d, s[52:53], s%d" % (4 + k, 64 + k))
            a("s_mov_b32 s55, 0")
            a("s_waitcnt lgkmcnt(0)")
            for k in range(0, nsamp):
                a("s_cmp_eq_u32 s%d, s54" % (4 + k)); a("s_addc_u32 s55, s55, 0")
            a("s_mov_b32 s56, 0")
            for tv in thr:
                a("s_cmp_ge_u32 s55, %d" % tv); a("s_addc_u32 s56, s56, 0")
            a("v_mov_b32 v25, s56"); a("ds_write_b32 v24, v25 offset:%d" % (L_LVL - L_HST))
            if stamps: a("v_writelane_b32 v%d, s55, %d" % (VST, 32 + len(cpl)))
            a("s_add_u32 s52, s52, 0x8000"); a("s_addc_u32 s53, s53, 0")
    checkpoints(T0["ksm"] + 4)
    wait_min4("s41", "v26", 28, "2", sleep=8)
    for w in range(4):
        a("ds_read_b32 v%d, v13 offset:%d" % (32 + w, 64 * w))
        a("ds_read_b32 v%d, v13 offset:%d" % (36 + w, 64 * w + 32))
        a("ds_read_b32 v%d, v13 offset:%d" % (40 + w, L_LW - L_MX + 64 * w))
        a("ds_read_b32 v%d, v13 offset:%d" % (44 + w, L_LW - L_MX + 64 * w + 32))
    a("s_waitcnt lgkmcnt(0)")
    a("v_max3_f32 v32, v32, v33, v34"); a("v_max_f32 v32, v32, v35")
    a("v_max3_f32 v36, v36, v37, v38"); a("v_max_f32 v36, v36, v39")
    a("v_add_f32 v40, v40, v41"); a("v_add_f32 v42, v42, v43"); a("v_add_f32 v40, v40, v42")
    a("v_add_f32 v44, v44, v45"); a("v_add_f32 v46, v46, v47"); a("v_add_f32 v44, v44, v46")
    a("v_max_f32 v60, v32, v36"); a("v_add_f32 v61, v40, v44")
    a("v_cndmask_b32 v60, v60, v36, s[48:49]"); a("v_cndmask_b32 v61, v61, v44, s[48:49]")
    a("v_cndmask_b32 v60, v60, v32, s[50:51]"); a("v_cndmask_b32 v61, v61, v40, s[50:51]")
    a("s_mov_b64 exec, s[46:47]")
    a("global_store_dwordx4 v11, v[60:63], s[38:39] sc1")
    a("s_mov_b64 exec, -1")
    if rank1:
        for k in range(0, nsamp): a("s_load_dword s%d, s[52:53], s%d" % (4 + k, 64 + k))
        a("s_mov_b32 s55, 0")
        a("s_waitcnt lgkmcnt(0)")
        for k in range(0, nsamp):
            a("s_cmp_eq_u32 s%d, s54" % (4 + k)); a("s_addc_u32 s55, s55, 0")
        a("s_mov_b32 s56, 0")
        for tv in thr:
            a("s_cmp_ge_u32 s55, %d" % tv); a("s_addc_u32 s56, s56, 0")
        a("v_mov_b32 v25, s56"); a("ds_write_b32 v24, v25 offset:%d" % (L_LVL - L_HST))
    stamp(4)
    checkpoints(T0["vbig"] + ml_at)
    if ml_at: wait_word("s42", "v27", "v28", str(T0["vbig"] + ml_at), sleep=8)
    def mlcheck():
        a("v_xor_b32 v18, v16, v62"); a("v_bitop3_b32 v18, v17, v63, v18 bitop3:0xbe")
        a("v_cmp_ne_u32 vcc, 0, v18")
    poll_valid(lambda: a("global_load_dwordx4 v[14:17], v12, s[34:35] sc1"), mlcheck, sleep=mlsleep, mask0="s[44:45]")
    a("v_mov_b32 v17, v14")
    bfly("v_max_f32", 17, 18, [0, 1, 2, 3, 4])
    a("v_sub_f32 v14, v14, v17"); a("v_exp_f32 v14, v14"); a("s_nop 0")
    a("v_mul_f32 v15, v15, v14")
    bfly("v_add_f32", 15, 18, [0, 1, 2, 3, 4])
    a("v_rcp_f32 v15, v15"); a("s_nop 0"); a("v_mul_f32 v14, v14, v15")
    a("v_lshlrev_b32 v13, 2, v0")
    a("v_add_u32 v13, %d, v13" % L_F)
    a("ds_write_b32 v13, v14")
    a("v_mov_b32 v25, 2"); a("ds_write_b32 v24, v25")
    checkpoints(NT)
    a("s_waitcnt lgkmcnt(0)")
    stamp(5)
    diag_end(1)
    stamp_flush()
    a("s_endpgm")

    a("L_cons:")
    if dur: a("s_memrealtime s[96:97]")
    a("s_waitcnt lgkmcnt(0)")
    if dur: a("s_mov_b32 s95, s96")
    if cbar == 0:
        stamp(22); a("s_barrier")
    sL = "s33"; sHS = "s34"; sST = "s35"
    a("s_sub_u32 s32, s30, 2")
    a("s_mov_b32 s33, 0"); a("s_mov_b32 s34, 0"); a("s_mov_b32 s35, 0")
    a("s_lshl_b32 s38, s32, 2")
    a("v_lshl_add_u32 v4, v0, 4, s38")
    a("v_add_u32 v5, %d, v4" % L_STAGE); a("v_add_u32 v4, %d, v4" % L_FREE)
    a("v_mov_b32 v6, %d" % L_LANDED); a("v_mov_b32 v7, %d" % L_HST); a("v_mov_b32 v12, %d" % L_STAGE)
    a("v_bfe_u32 v13, v0, 2, 2"); a("v_and_b32 v14, 3, v0")
    VX = 64
    a("v_and_b32 v15, 1, v0"); a("v_lshlrev_b32 v15, 10, v15"); a("v_lshl_add_u32 v15, v1, 4, v15")
    a("v_add_u32 v15, %d, v15" % XBASE)
    epoch_load()
    if "nocons" in dbg:
        a("s_waitcnt vmcnt(0)")
        a("s_endpgm")
    def set_free(val):
        a("v_mov_b32 v8, %s" % val); a("ds_write_b32 v4, v8")
    def set_stage(val):
        a("v_mov_b32 v8, %d" % val); a("ds_write_b32 v5, v8")
    a("v_lshl_add_u32 v16, v1, 3, v13"); a("v_lshlrev_b32 v16, 7, v16")
    a("v_lshrrev_b32 v17, 1, v13"); a("v_and_b32 v18, 1, v1"); a("v_lshl_or_b32 v17, v18, 1, v17")
    a("v_lshlrev_b32 v17, 1, v17")
    a("v_lshrrev_b32 v18, 1, v14"); a("s_lshl_b32 s38, s32, 1"); a("v_add_u32 v18, s38, v18")
    a("v_xor_b32 v17, v17, v18"); a("v_lshl_add_u32 v16, v17, 4, v16")
    a("v_and_b32 v18, 1, v14"); a("v_lshl_add_u32 v16, v18, 3, v16")
    vKa = list(range(20, 28))
    a("v_lshrrev_b32 v17, 1, v1"); a("v_lshl_add_u32 v17, v17, 4, v2"); a("v_lshlrev_b32 v17, 8, v17")
    a("s_lshl_b32 s38, s32, 13"); a("v_add_u32 v17, s38, v17")
    a("v_and_b32 v18, 1, v1"); a("v_xor_b32 v18, v18, v2"); a("v_lshl_add_u32 v20, v18, 4, v17")
    for s in range(1, 8): a("v_xor_b32 v%d, %d, v20" % (vKa[s], 32 * s))
    a("v_lshl_add_u32 v17, v1, 2, v13")
    a("v_and_b32 v18, 7, v17"); a("v_lshlrev_b32 v18, 1, v18")
    a("v_lshrrev_b32 v19, 1, v14")
    a("v_xor_b32 v30, v18, v19")
    a("v_and_b32 v31, 1, v14"); a("v_lshlrev_b32 v31, 3, v31")
    a("v_lshl_add_u32 v30, v30, 4, v31")
    a("s_lshl_b32 s38, s32, 6")
    a("v_xor_b32 v28, s38, v30"); a("v_lshl_add_u32 v28, v17, 8, v28")
    a("v_xor_b32 v29, 32, v28")
    vWOa = list(range(40, 48))
    a("s_lshl_b32 s38, s32, 9")
    a("v_lshl_add_u32 v40, v17, 11, v30"); a("v_add_u32 v40, s38, v40")
    for t in range(1, 8): a("v_xor_b32 v%d, %d, v40" % (vWOa[t], 32 * t))
    a("v_and_b32 v17, 7, v0"); a("v_lshl_add_u32 v17, v1, 3, v17"); a("v_lshlrev_b32 v17, 4, v17")
    a("v_add_u32 v33, %d, v17" % PBASE)
    a("v_bfe_u32 v18, v0, 3, 1"); a("v_lshl_add_u32 v32, v18, 3, v33")
    a("s_lshl_b32 s38, s32, 9"); a("v_add_u32 v32, s38, v32")
    gl = lambda d, off: (a("s_add_u32 s%d, s28, %s" % (d, off)), a("s_addc_u32 s%d, s29, 0" % (d + 1)))
    a("s_lshr_b32 s38, s2, 7"); a("s_lshl_b32 s38, s38, 16")
    a("s_and_b32 s39, s3, 1"); a("s_lshl_b32 s39, s39, 14"); a("s_add_u32 s38, s38, s39")
    a("s_bfe_u32 s39, s3, 0x60001"); a("s_lshl_b32 s39, s39, 8"); a("s_add_u32 s38, s38, s39")
    a("s_lshl_b32 s39, s32, 6"); a("s_add_u32 s38, s38, s39")
    gl(40, "s38")
    a("v_and_b32 v34, 1, v0"); a("v_lshlrev_b32 v34, 15, v34"); a("v_lshl_add_u32 v34, v1, 4, v34")
    role()
    a("s_lshr_b32 s39, s2, 7"); a("s_lshl_b32 s38, s39, 15")
    a("s_bfe_u32 s39, s2, 0x20005"); a("s_lshl_b32 s39, s39, 12"); a("s_add_u32 s38, s38, s39")
    a("s_lshl_b32 s39, s32, 10"); a("s_add_u32 s38, s38, s39")
    gl(44, "s38")
    a("s_lshl_b32 s39, s92, 16"); a("s_add_u32 s38, s38, s39")
    gl(42, "s38")
    a("v_lshlrev_b32 v48, 4, v0"); a("v_add_u32 v36, 16384, v48")
    a("s_lshl_b32 s38, s32, 9"); a("s_add_u32 s38, s38, %d" % QBASE)
    a("v_lshl_add_u32 v37, v0, 3, s38")
    a("v_and_b32 v17, 7, v0"); a("v_lshlrev_b32 v17, 8, v17"); a("v_and_b32 v18, 1, v1"); a("v_lshl_add_u32 v17, v18, 4, v17")
    a("v_add_u32 v35, %d, v17" % QBASE)
    a("s_lshl_b32 s39, s92, 11"); a("v_add_u32 v38, s39, v35")
    if cbar == 1:
        stamp(22); a("s_barrier")
    stamp(21)
    VF = 128
    VS = 160
    VQA = 200
    VWE = 216
    for u in range(8):
        if u == tag_at:
            wait_word(sHS, "v7", "v8", "0")
            a("ds_read_b64 v[60:61], v7 offset:%d" % (L_NON - L_HST))
            a("s_waitcnt lgkmcnt(0)")
            epoch_tags()
        wait_word(sL, "v6", "v8", str(u), sleep=psleep)
        if u == 0:
            for s in range(16): a("ds_read_b128 v[%d:%d], v15 offset:%d" % (VX + 4 * s, VX + 4 * s + 3, 64 * s))
        for s in range(2):
            for h in range(2):
                a("ds_read_b64_tr_b16 v[%d:%d], v16 offset:%d" % (VF + 4 * s + 2 * h, VF + 4 * s + 2 * h + 1, u * 8192 + s * 4096 + h * 512))
        a("s_waitcnt lgkmcnt(0)")
        for s in range(2):
            c = "0" if (u == 0 and s == 0) else "v[%d:%d]" % (VQA, VQA + 3)
            x = VX + 4 * (2 * u + s)
            a("v_mfma_f32_16x16x32_bf16 v[%d:%d], v[%d:%d], v[%d:%d], %s" % (VQA, VQA + 3, VF + 4 * s, VF + 4 * s + 3, x, x + 3, c))
        def rd(base, u=u):
            for s in range(2):
                for h in range(2):
                    a("ds_read_b64_tr_b16 v[%d:%d], v16 offset:%d" % (base + 4 * s + 2 * h, base + 4 * s + 2 * h + 1, u * 8192 + s * 4096 + h * 512))
        if dchk: a("s_mov_b32 s36, %d" % u)
        recheck(rd, 8, 0)
        if u < 7 or wo_early == 2: set_free(str(u + 1))
        else:
            a("s_add_u32 s36, s32, %d" % T0["kbig"]); set_free("s36")
    stamp(1)
    a("s_mov_b32 exec_lo, 0x00030003"); a("s_mov_b32 exec_hi, 0x00030003")
    a("s_nop 3")
    tag4(VQA)
    a("global_store_dwordx4 v34, v[%d:%d], s[40:41] sc1" % (VQA, VQA + 3))
    a("s_mov_b64 exec, -1")
    stamp(2)
    VO = 204
    VW = 64
    def wo_reads(name, dst):
        T = T0[name]
        wait_word(sL, "v6", "v8", str(T + 3))
        base = (T % NSLOT) * 8192
        if base >= 65536:
            for t in range(8): a("v_add_u32 v%d, 0x10000, v%d" % (vWOa[t], vWOa[t]))
        for t in range(16):
            d = dst(t)
            a("ds_read_b64_tr_b16 v[%d:%d], v%d offset:%d" % (d, d + 1, vWOa[t & 7], base % 65536 + (t >> 3) * 256))
        if base >= 65536:
            for t in range(8): a("v_subrev_u32 v%d, 0x10000, v%d" % (vWOa[t], vWOa[t]))
    VQ = 64
    for r in range(64): a("v_mov_b32 v%d, 0" % (VQ + r))
    if wo_early == 2:
        wo_reads("woE", lambda t: VWE + 2 * t)
        a("s_add_u32 s36, s32, %d" % T0["kbig"])
        a("s_waitcnt lgkmcnt(0)")
        set_free("s36")
    for r in range(8): a("v_mov_b32 v%d, v%d" % (VF + 8 + r, VT + (r & 3)))
    def qloads():
        for kh in range(2):
            a("global_load_dwordx4 v[%d:%d], v%d, s[42:43] sc1" % (VF + 4 * kh, VF + 4 * kh + 3, (48, 36)[kh]))
        sk = lab("qs")
        a("s_cmp_eq_u32 s92, 0"); a("s_cbranch_scc1 " + sk)
        for kh in range(2):
            a("global_load_dwordx4 v[%d:%d], v%d, s[44:45] sc1" % (VF + 8 + 4 * kh, VF + 8 + 4 * kh + 3, (48, 36)[kh]))
        a(sk + ":")
    if qg_at: wait_word(sL, "v6", "v8", str(qg_at - 1), sleep=psleep)
    stamp(14)
    poll_valid(qloads, tagcheck(VF, 16, VF + 16, 8), sleep=qsleep)
    stamp(3)
    for r in range(4): a("v_add_f32 v%d, v%d, v%d" % (VF + r, VF + 16 + r, VF + 20 + r))
    for r in range(4): a("v_add_f32 v%d, v%d, v%d" % (VF + 4 + r, VF + 24 + r, VF + 28 + r))
    for r in range(4): a("v_cvt_pk_bf16_f32 v%d, v%d, v%d" % (VF + 16 + r, VF + 2 * r, VF + 2 * r + 1))
    a("ds_write_b64 v37, v[%d:%d]" % (VF + 16, VF + 17)); a("ds_write_b64 v37, v[%d:%d] offset:2048" % (VF + 18, VF + 19))
    set_stage(1)
    wait_min4(sST, "v12", 8, "0")
    a("s_mov_b32 exec_lo, 0x00ff00ff"); a("s_mov_b32 exec_hi, 0xff00ff00")
    for part in range(2):
        for s in range(8):
            d = VQ + 32 * part + 4 * s
            a("ds_read_b128 v[%d:%d], v%d offset:%d" % (d, d + 3, (35, 38)[part], 32 * s))
    a("s_mov_b64 exec, -1")
    stamp(4)
    hi = [False]
    def ktile(Tbase, q, sdst, nxt):
        a("s_add_u32 s36, s32, %d" % Tbase)
        wait_word(sL, "v6", "v8", "s36", sleep=psleep)
        sl = Tbase % NSLOT
        want_hi = sl >= 8
        if want_hi != hi[0]:
            for s in range(8): a("v_xor_b32 v%d, 0x10000, v%d" % (vKa[s], vKa[s]))
            hi[0] = want_hi
        for s in range(8):
            a("ds_read_b128 v[%d:%d], v%d offset:%d" % (VF + 4 * s, VF + 4 * s + 3, vKa[s], (sl % 8) * 8192))
        if nxt is None: a("s_add_u32 s36, s36, 4")
        else: a("s_mov_b32 s36, %d" % nxt)
        a("v_mov_b32 v8, s36")
        for s in range(8):
            a("s_waitcnt lgkmcnt(%d)" % (7 - s))
            if s == 7 and not dchk: a("ds_write_b32 v4, v8")
            c = "0" if s == 0 else "v[%d:%d]" % (sdst, sdst + 3)
            a("v_mfma_f32_16x16x32_bf16 v[%d:%d], v[%d:%d], v[%d:%d], %s" % (sdst, sdst + 3, VF + 4 * s, VF + 4 * s + 3, q + 4 * s, q + 4 * s + 3, c))
        if dchk:
            def rd(base):
                for s in range(7):
                    a("ds_read_b128 v[%d:%d], v%d offset:%d" % (base + 4 * s, base + 4 * s + 3, vKa[s], (sl % 8) * 8192))
            recheck(rd, 28, 1)
            a("ds_write_b32 v4, v8")
    assert T0["ksm"] == T0["kbig"] + 32
    for i in range(8):
        ktile(T0["kbig"] + 4 * i, VQ, VS + 4 * i, None)
    ktile(T0["ksm"], VQ + 32, VS + 32, T0["ksm"] + 4)
    stamp(5)
    a("s_mov_b32 s38, 0x%x" % f2u(CSCALE))
    a("v_max_f32 v35, v%d, v%d" % (VS, VS + 1))
    for r in range(2, 32, 2): a("v_max3_f32 v35, v35, v%d, v%d" % (VS + r, VS + r + 1))
    a("v_max3_f32 v34, v%d, v%d, v%d" % (VS + 32, VS + 33, VS + 34)); a("v_max_f32 v34, v34, v%d" % (VS + 35))
    bfly("v_max_f32", 34, 36, [3, 4, 5]); bfly("v_max_f32", 35, 36, [3, 4, 5])
    a("v_mul_f32 v34, s38, v34"); a("v_mul_f32 v35, s38, v35")
    a("v_and_b32 v17, 7, v0"); a("v_lshlrev_b32 v17, 2, v17")
    a("v_add_u32 v18, %d, v17" % L_MX)
    a("s_lshl_b32 s39, s32, 6"); a("v_add_u32 v17, s39, v18")
    a("ds_write_b32 v17, v35"); a("ds_write_b32 v17, v34 offset:32")
    set_stage(2)
    if wo_early == 2:
        for t in range(16):
            a("v_mov_b32 v%d, v%d" % (VW + 4 * t, VWE + 2 * t)); a("v_mov_b32 v%d, v%d" % (VW + 4 * t + 1, VWE + 2 * t + 1))
    wait_min4(sST, "v12", 8, "1")
    for w in range(4):
        a("ds_read_b32 v%d, v18 offset:%d" % (VF + w, 64 * w)); a("ds_read_b32 v%d, v18 offset:%d" % (VF + 4 + w, 64 * w + 32))
    a("s_waitcnt lgkmcnt(0)")
    a("v_max3_f32 v35, v%d, v%d, v%d" % (VF, VF + 1, VF + 2)); a("v_max_f32 v35, v35, v%d" % (VF + 3))
    a("v_max3_f32 v34, v%d, v%d, v%d" % (VF + 4, VF + 5, VF + 6)); a("v_max_f32 v34, v34, v%d" % (VF + 7))
    a("s_cmp_eq_u32 s92, 1"); a("s_cbranch_scc1 L_twomax")
    a("v_max_f32 v35, v35, v34"); a("v_mov_b32 v34, v35")
    a("L_twomax:")
    for r in range(36):
        a("v_fma_f32 v%d, v%d, s38, -v%d" % (VS + r, VS + r, 35 if r < 32 else 34))
    for r in range(36): a("v_exp_f32 v%d, v%d" % (VS + r, VS + r))
    a("s_nop 0")
    for tl in range(9):
        b = VS + 4 * tl
        a("v_cvt_pk_bf16_f32 v%d, v%d, v%d" % (VF + 2 * tl, b, b + 1)); a("v_cvt_pk_bf16_f32 v%d, v%d, v%d" % (VF + 2 * tl + 1, b + 2, b + 3))
        a("ds_write_b64 v32, v[%d:%d] offset:%d" % (VF + 2 * tl, VF + 2 * tl + 1, 2048 * tl))
    a("v_add_f32 v34, v%d, v%d" % (VS + 32, VS + 33)); a("v_add_f32 v36, v%d, v%d" % (VS + 34, VS + 35)); a("v_add_f32 v34, v34, v36")
    n = 32
    while n > 1:
        n //= 2
        for r in range(n): a("v_add_f32 v%d, v%d, v%d" % (VS + r, VS + r, VS + n + r))
    a("v_mov_b32 v35, v%d" % VS)
    bfly("v_add_f32", 34, 36, [3, 4, 5]); bfly("v_add_f32", 35, 36, [3, 4, 5])
    a("ds_write_b32 v17, v35 offset:%d" % (L_LW - L_MX)); a("ds_write_b32 v17, v34 offset:%d" % (L_LW - L_MX + 32))
    set_stage(3)
    a("v_and_b32 v37, 7, v0"); a("v_lshlrev_b32 v37, 15, v37")
    a("v_bfe_u32 v18, v0, 3, 1"); a("v_lshl_add_u32 v37, v18, 6, v37"); a("v_lshl_add_u32 v37, v1, 4, v37")
    a("s_bfe_u32 s38, s2, 0x20005"); a("s_lshl_b32 s38, s38, 18")
    a("s_lshl_b32 s39, s32, 13"); a("s_add_u32 s38, s38, s39")
    a("s_lshr_b32 s39, s2, 7"); a("s_lshl_b32 s39, s39, 12"); a("s_add_u32 s38, s38, s39")
    a("s_and_b32 s39, s2, 31"); a("s_lshl_b32 s39, s39, 7"); a("s_add_u32 s38, s38, s39")
    a("s_add_u32 s38, s38, 0x%x" % W_IN1); gl(42, "s38")
    a("s_add_u32 s44, s42, 0x100000"); a("s_addc_u32 s45, s43, 0")
    a("s_mov_b32 s46, 0xff00ff00"); a("s_mov_b32 s47, 0xff00ff00")
    a("s_lshl_b32 s38, s2, 13"); a("s_lshl_b32 s39, s32, 11"); a("s_add_u32 s38, s38, s39")
    a("s_add_u32 s38, s38, 0x%x" % W_IN1); gl(48, "s38")
    a("v_and_b32 v49, 1, v0"); a("v_lshlrev_b32 v49, 19, v49")
    a("v_bfe_u32 v18, v0, 2, 2"); a("v_lshl_add_u32 v49, v18, 14, v49")
    a("v_bfe_u32 v18, v0, 1, 1"); a("v_lshl_add_u32 v49, v18, 6, v49"); a("v_lshl_add_u32 v49, v1, 4, v49")
    a("s_lshr_b32 s38, s2, 7"); a("s_lshl_b32 s38, s38, 20")
    a("s_lshl_b32 s39, s32, 17"); a("s_add_u32 s38, s38, s39")
    a("s_and_b32 s39, s2, 127"); a("s_lshl_b32 s39, s39, 7"); a("s_add_u32 s38, s38, s39")
    a("s_add_u32 s38, s38, 0x%x" % W_IN2); gl(50, "s38")
    a("s_add_u32 s52, s50, 0x10000"); a("s_addc_u32 s53, s51, 0")
    a("s_and_b32 s38, s2, 127"); a("s_lshl_b32 s38, s38, 14"); a("s_lshl_b32 s39, s32, 12"); a("s_add_u32 s38, s38, s39")
    a("s_add_u32 s38, s38, 0x%x" % W_IN2); gl(54, "s38")
    a("s_bfe_u32 s38, s2, 0x10005"); a("s_lshl_b32 s38, s38, 12")
    a("s_bfe_u32 s39, s2, 0x10006"); a("s_lshl_b32 s39, s39, 11"); a("s_add_u32 s38, s38, s39")
    a("s_and_b32 s39, s2, 31"); a("s_lshl_b32 s39, s39, 6"); a("s_add_u32 s38, s38, s39")
    a("s_add_u32 s56, s24, s38"); a("s_addc_u32 s57, s25, 0")
    for t in range(8):
        m = (3 << (2 * t)) * 0x00010001
        a("s_mov_b32 s%d, 0x%x" % (64 + 2 * t, m)); a("s_mov_b32 s%d, 0x%x" % (65 + 2 * t, m))
    a("v_and_b32 v50, 7, v0"); a("v_lshlrev_b32 v50, 4, v50"); a("s_lshl_b32 s38, s32, 7"); a("v_add_u32 v50, s38, v50")
    a("v_add_u32 v50, %d, v50" % L_OX)
    a("v_and_b32 v51, 1, v0"); a("v_lshlrev_b32 v51, 8, v51"); a("v_lshl_add_u32 v51, v1, 4, v51")
    a("v_add_u32 v51, %d, v51" % L_OX)
    a("v_lshrrev_b32 v52, 3, v0"); a("s_lshl_b32 s38, s32, 4"); a("v_add_u32 v52, s38, v52"); a("v_lshlrev_b32 v52, 2, v52")
    a("v_add_u32 v52, %d, v52" % L_F)
    a("v_lshlrev_b32 v55, 3, v0")
    VH = 136; VR = 176
    a("s_bfe_u32 s38, s2, 0x20005"); a("s_lshr_b32 s39, s32, 1"); a("s_lshl_b32 s39, s39, 2"); a("s_add_u32 s38, s38, s39")
    a("s_lshl_b32 s38, s38, 3"); a("s_mov_b64 s[58:59], 0xff"); a("s_lshl_b64 s[58:59], s[58:59], s38")
    a("s_cmp_lt_u32 s2, 128"); a("s_cselect_b64 s[58:59], -1, s[58:59]")
    for r in range(8): a("v_mov_b32 v%d, v%d" % (VR + r, VT + (r & 3)))
    for r in range(8): a("v_mov_b32 v%d, 0" % (VO + r))
    a("s_cmp_eq_u32 s92, 1"); a("s_cselect_b32 s61, %d, 0" % T0["vsm"])
    wait_min4(sST, "v12", 8, "2")
    stamp(6)
    if wo_early == 1:
        wo_reads("woE", lambda t: VW + 4 * t)
        a("s_waitcnt lgkmcnt(0)")
        set_free(str(T0["vbig"]))
    def ostore(sp, d):
        for r in range(4): a("v_cndmask_b32 v%d, v%d, v%d, s[46:47]" % (d + r, VO + r, VO + 4 + r))
        tag4(d)
        a("global_store_dwordx4 v37, v[%d:%d], s[%d:%d] sc1" % (d, d + 3, sp, sp + 1))
    a("s_mov_b32 s36, %d" % T0["vbig"])
    a("L_v:")
    a("s_and_b32 s37, s36, %d" % (NSLOT - 1)); a("s_lshl_b32 s37, s37, 13")
    a("v_add_u32 v38, s37, v28"); a("v_add_u32 v39, s37, v29")
    wait_word(sL, "v6", "v8", "s36", sleep=psleep)
    a("ds_read_b128 v[%d:%d], v33" % (VF + 8, VF + 11))
    a("ds_read_b64_tr_b16 v[%d:%d], v38" % (VF, VF + 1)); a("ds_read_b64_tr_b16 v[%d:%d], v38 offset:4096" % (VF + 2, VF + 3))
    a("ds_read_b64_tr_b16 v[%d:%d], v39" % (VF + 4, VF + 5)); a("ds_read_b64_tr_b16 v[%d:%d], v39 offset:4096" % (VF + 6, VF + 7))
    a("v_add_u32 v33, 512, v33")
    a("s_add_u32 s36, s36, 1")
    a("v_mov_b32 v8, s36")
    a("s_waitcnt lgkmcnt(2)")
    a("v_mfma_f32_16x16x32_bf16 v[%d:%d], v[%d:%d], v[%d:%d], v[%d:%d]" % (VO, VO + 3, VF, VF + 3, VF + 8, VF + 11, VO, VO + 3))
    a("s_waitcnt lgkmcnt(0)")
    a("v_mfma_f32_16x16x32_bf16 v[%d:%d], v[%d:%d], v[%d:%d], v[%d:%d]" % (VO + 4, VO + 7, VF + 4, VF + 7, VF + 8, VF + 11, VO + 4, VO + 7))
    def rdv(base):
        a("ds_read_b64_tr_b16 v[%d:%d], v38" % (base, base + 1)); a("ds_read_b64_tr_b16 v[%d:%d], v38 offset:4096" % (base + 2, base + 3))
        a("ds_read_b64_tr_b16 v[%d:%d], v39" % (base + 4, base + 5)); a("ds_read_b64_tr_b16 v[%d:%d], v39 offset:4096" % (base + 6, base + 7))
    recheck(rdv, 8, 2)
    a("ds_write_b32 v4, v8")
    a("s_cmp_eq_u32 s36, s61")
    a("s_cbranch_scc1 L_vmid")
    a("s_cmp_lt_u32 s36, %d" % VEND)
    a("s_cbranch_scc1 L_v")
    a("s_nop 2")
    ostore(42, VO + 8)
    stamp(8)
    def h1loads():
        for i in range(2):
            a("global_load_dwordx4 v[%d:%d], v48, s[48:49] offset:%d sc1" % (VR + 4 * i, VR + 4 * i + 3, 1024 * i))
    if h1pre:
        a("s_mov_b64 exec, s[58:59]"); h1loads(); a("s_mov_b64 exec, -1")
    if not wo_early: wo_reads("woE", lambda t: VW + 4 * t)
    wo_reads("woL", lambda t: VW + 4 * t + 2)
    wait_word(sHS, "v7", "v8", "1")
    a("ds_read_b32 v53, v52"); a("ds_read_b32 v54, v52 offset:32")
    stamp(9)
    poll_valid(h1loads, tagcheck(VR, 8, VH, 8), sleep=h1sleep, first=not h1pre, mask0="s[58:59]")
    stamp(10)
    a("s_waitcnt lgkmcnt(0)")
    for r in range(4): a("v_mul_f32 v%d, v%d, v53" % (VH + r, VH + r))
    for r in range(4): a("v_fmac_f32 v%d, v%d, v54" % (VH + r, VH + 4 + r))
    bfly4("v_add_f32", VH, VH + 4, [3, 4, 5])
    a("s_mov_b64 exec, 0xff")
    a("ds_write_b128 v50, v[%d:%d]" % (VH, VH + 3))
    a("s_mov_b64 exec, -1")
    a("s_waitcnt lgkmcnt(0)")
    a("s_barrier")
    for k, off in enumerate((0, 64, 128, 192)):
        a("ds_read_b128 v[%d:%d], v51 offset:%d" % (VH + 4 * k, VH + 4 * k + 3, off))
    a("s_waitcnt lgkmcnt(0)")
    for r in range(8): a("v_add_f32 v%d, v%d, v%d" % (VH + r, VH + r, VH + 8 + r))
    for r in range(4): a("v_cvt_pk_bf16_f32 v%d, v%d, v%d" % (VH + 16 + r, VH + 2 * r, VH + 2 * r + 1))
    VB = 160
    def cnd(t):
        for r in range(4): a("v_cndmask_b32 v%d, 0, v%d, s[%d:%d]" % (VB + 4 * t + r, VH + 16 + r, 64 + 2 * t, 65 + 2 * t))
    def mm(t):
        for ch in range(2):
            w = VW + 4 * (8 * ch + t); d = VO + 4 * ch
            c = "0" if t == 0 else "v[%d:%d]" % (d, d + 3)
            a("v_mfma_f32_16x16x32_bf16 v[%d:%d], v[%d:%d], v[%d:%d], %s" % (d, d + 3, w, w + 3, VB + 4 * t, VB + 4 * t + 3, c))
    if ilv:
        cnd(0)
        for t in range(8):
            if t < 7: cnd(t + 1)
            mm(t)
    else:
        for t in range(8): cnd(t)
        for t in range(8): mm(t)
    a("s_nop 6")
    tag4(VO)
    a("global_store_dwordx4 v49, v[%d:%d], s[50:51] sc1" % (VO, VO + 3))
    tag4(VO + 4)
    a("global_store_dwordx4 v49, v[%d:%d], s[52:53] sc1" % (VO + 4, VO + 7))
    stamp(11)
    a("s_cmp_ge_u32 s2, 128")
    a("s_cbranch_scc1 L_fin")
    def h2loads():
        for i in range(4):
            a("global_load_dwordx4 v[%d:%d], v48, s[54:55] offset:%d sc1" % (VR + 4 * i, VR + 4 * i + 3, 1024 * i))
    if ackw: a("s_waitcnt vmcnt(0)")
    poll_valid(h2loads, tagcheck(VR, 16, VH, 8), sleep=h2sleep)
    stamp(12)
    for r in range(8): a("v_add_f32 v%d, v%d, v%d" % (VH + r, VH + r, VH + 8 + r))
    for r in range(4): a("v_add_f32 v%d, v%d, v%d" % (VH + r, VH + r, VH + 4 + r))
    bfly4("v_add_f32", VH, VH + 4, [3, 4, 5])
    a("s_mov_b64 exec, 0xff")
    a("ds_write_b128 v50, v[%d:%d] offset:%d" % (VH, VH + 3, L_RX - L_OX))
    a("s_waitcnt lgkmcnt(0)")
    a("s_barrier")
    a("s_cmp_lg_u32 s32, 0")
    a("s_cbranch_scc1 L_fin")
    for k in range(4):
        a("ds_read_b128 v[%d:%d], v50 offset:%d" % (VH + 4 * k, VH + 4 * k + 3, L_RX - L_OX + 128 * k))
    a("s_waitcnt lgkmcnt(0)")
    for r in range(8): a("v_add_f32 v%d, v%d, v%d" % (VH + r, VH + r, VH + 8 + r))
    for r in range(4): a("v_add_f32 v%d, v%d, v%d" % (VH + r, VH + r, VH + 4 + r))
    a("v_cvt_pk_bf16_f32 v%d, v%d, v%d" % (VH + 4, VH, VH + 1)); a("v_cvt_pk_bf16_f32 v%d, v%d, v%d" % (VH + 5, VH + 2, VH + 3))
    a("global_store_dwordx2 v55, v[%d:%d], s[56:57]" % (VH + 4, VH + 5))
    a("L_fin:")
    if dur:
        a("s_memrealtime s[96:97]"); a("s_waitcnt lgkmcnt(0)")
        a("s_mov_b64 exec, 1")
        a("v_sub_u32 v1, s96, v60"); a("v_mov_b32 v2, 0")
        a("global_atomic_umax v2, v1, s[26:27] offset:8 sc1")
        a("s_cmp_lg_u32 s32, 0"); a("s_cbranch_scc1 L_dur1")
        a("v_sub_u32 v1, s95, v60")
        a("global_atomic_umax v2, v1, s[26:27] offset:12 sc1")
        a("global_atomic_smin v2, v1, s[26:27] offset:16 sc1")
        a("L_dur1:")
        a("s_waitcnt vmcnt(0)")
    stamp(13)
    diag_end(2)
    stamp_flush()
    a("L_end:")
    a("s_endpgm")
    a("L_vmid:")
    a("s_nop 4")
    ostore(44, 196)
    for r in range(8): a("v_mov_b32 v%d, 0" % (VO + r))
    stamp(7)
    a("s_branch L_v")
    gen.sites = sites
    nv = 256 if (stamps or wo_early == 2 or dchk) else 216
    return (header(["grid=(256,1,1) block=(384,1,1) lds=%d" % LDS_BYTES]) + kernel_open(KNAME) + a.text()
            + RODATA + descriptor(KNAME, nv, 100, nv))

if __name__ == "__main__":
    open(sys.argv[1], "w").write(gen(**eval("dict(%s)" % (sys.argv[2] if len(sys.argv) > 2 else ""))))
```

```python
import sys, math, struct
from asmlib import *

NSLOT = 16
PBASE = NSLOT * 8192
QBASE = PBASE
XBASE = PBASE + 8192
SY = PBASE + 36 * 512
L_LANDED = SY
L_FREE = SY + 256
L_STAGE = SY + 1280
L_HST = SY + 2304
L_MX = SY + 2560
L_LW = SY + 2816
L_F = SY + 3072
L_OX = SY + 3328
L_RX = SY + 3840
L_LVL = SY + 4352
L_NON = SY + 4608
LDS_BYTES = SY + 4608 + 512
W_QP = 0x000000
W_ML = 0x020000
W_EP = 0x040000
W_PB = 0x050000
W_IN1 = 0x100000
GAP = 0x10000
W_IN2 = 0x300000 + GAP
STAMP_OFF = 0x10000000
CSCALE = math.log2(math.e) / math.sqrt(128.0)
def f2u(x): return struct.unpack("<I", struct.pack("<f", x))[0]

def gen(win=20, win0=None, winT=None, tailT=0, stamps=False, wo_early=1, budget=1 << 27, psleep=0, qsleep=2, dbg='',
        ml_at=16, mlsleep=8, qg_at=14, h1sleep=0, h2sleep=0, h1pre=1, blate=0, epsc=1, ackw=1, ilv=1, qx=0, vst=0, burst=3, levels=None, cps=None, lvl0=1, thr=None, nsamp=16, redisp=4, ldpol='nt', wsoff=0, epoff=None, diag=0, dchk=0, nz_at=1, tag_at=5, touch=0, bar_at=3, cbar=0, rank1=0, dur=0):
    dbg = dbg.split()
    win0 = win0 or win
    winT = winT or win
    a = Asm()
    uid = [0]
    def lab(p):
        uid[0] += 1
        return "L_%s_%d" % (p, uid[0])
    segs = [("wq", 8)]
    if wo_early == 2: segs += [("woE", 4)]
    segs += [("kbig", 32), ("ksm", 4)]
    if wo_early == 1: segs += [("woE", 4)]
    segs += [("vbig", 32), ("vsm", 4)]
    segs += [("woL", 4)] if wo_early else [("woE", 4), ("woL", 4)]
    T0 = {}; t = 0
    for n, c in segs:
        T0[n] = t; t += c
    NT = t
    VEND = T0["vsm"] + 4
    assert T0["wq"] == 0 and (T0["woE"] % NSLOT) <= NSLOT - 4 and (T0["woL"] % NSLOT) <= NSLOT - 4
    assert T0["kbig"] % 4 == 0
    def role():
        a("s_lshr_b32 s93, s2, 5"); a("s_and_b32 s92, s2, 7"); a("s_cmp_eq_u32 s92, s93"); a("s_cselect_b32 s92, 1, 0")

    def offsets():
        a("s_lshl_b32 s57, s2, 18")
        a("s_lshl_b32 s58, s93, 23"); a("s_bfe_u32 s59, s2, 0x20003"); a("s_lshl_b32 s55, s59, 18"); a("s_add_u32 s54, s58, s55")
        a("s_add_u32 s54, s54, %d" % ((32768 - 4096) * 256))
        a("s_lshl_b32 s55, s55, 3"); a("s_add_u32 s55, s55, s58"); a("s_lshl_b32 s58, s93, 18"); a("s_add_u32 s55, s55, s58")
        a("s_and_b32 s58, s2, 7"); a("s_lshl_b32 s58, s58, 15"); a("s_add_u32 s55, s55, s58")
        a("s_cmp_eq_u32 s92, 1")
        a("s_cselect_b32 s48, s16, s6"); a("s_cselect_b32 s49, s17, s7")
        a("s_cselect_b32 s50, s18, s8"); a("s_cselect_b32 s51, s19, s9")
        a("s_cselect_b32 s54, s54, s57")
        a("s_and_b32 s59, s2, 127"); a("s_lshl_b32 s59, s59, 16")

    sB = "s31"
    VST = 250
    def stamp(k):
        if stamps:
            a("s_memrealtime s[96:97]"); a("s_waitcnt lgkmcnt(0)"); a("v_writelane_b32 v%d, s96, %d" % (VST, k))
    def stamp_flush():
        if stamps:
            a("s_mov_b64 exec, -1")
            a("s_getreg_b32 s96, hwreg(HW_REG_XCC_ID)")
            a("v_writelane_b32 v%d, s96, 63" % VST)
            a("s_mul_i32 s96, s2, 6"); a("s_add_u32 s96, s96, s30"); a("s_lshl_b32 s96, s96, 8")
            a("v_lshl_add_u32 v251, v0, 2, s96")
            a("s_load_dwordx2 s[98:99], s[0:1], 96"); a("s_waitcnt lgkmcnt(0)")
            a("s_add_u32 s98, s98, 0x%x" % STAMP_OFF); a("s_addc_u32 s99, s99, 0")
            a("global_store_dword v251, v%d, s[98:99]" % VST)
            a("s_waitcnt vmcnt(0)")
    site = [0]; sites = []
    def diag_end(role):
        if diag:
            sk = lab("dg")
            a("s_cmp_eq_u32 s94, 0"); a("s_cbranch_scc1 " + sk)
            a("s_mov_b64 exec, 1")
            a("s_lshl_b32 s95, s2, 8"); a("s_or_b32 s95, s95, s94")
            a("v_mov_b32 v1, s95"); a("v_mov_b32 v2, 0"); a("v_mov_b32 v3, 1")
            a("global_store_dword v2, v1, s[26:27] offset:%d sc1" % (4 * role))
            a("global_atomic_add v2, v3, s[26:27] offset:%d sc1" % (4 * (4 + role)))
            a("s_waitcnt vmcnt(0)")
            a(sk + ":")
    def recheck(reads, n, phase):
        if not dchk: return
        reads(216)
        a("s_waitcnt lgkmcnt(0)")
        a("v_xor_b32 v248, v128, v216")
        for i in range(1, n): a("v_bitop3_b32 v248, v%d, v%d, v248 bitop3:0xbe" % (128 + i, 216 + i))
        a("v_cmp_ne_u32 vcc, 0, v248")
        sk = lab("rc")
        a("s_and_b64 vcc, vcc, vcc"); a("s_cbranch_scc0 " + sk)
        a("s_mov_b64 exec, 1")
        a("v_mov_b32 v246, 0"); a("v_mov_b32 v247, 1")
        a("global_atomic_add v246, v247, s[26:27] offset:%d sc1" % (4 * (8 + phase)))
        a("s_lshl_b32 s95, s36, 8"); a("s_or_b32 s95, s95, s2"); a("v_mov_b32 v247, s95")
        a("global_store_dword v246, v247, s[26:27] offset:%d sc1" % (4 * (12 + phase)))
        a("s_mov_b64 exec, -1")
        a(sk + ":")
    def budget_loop(label, cost=1):
        a("s_sub_u32 %s, %s, %d" % (sB, sB, cost))
        a("s_cbranch_scc0 %s" % label)
        a("s_mov_b32 %s, 0" % sB)
        if diag:
            site[0] += 1
            a("s_cmp_eq_u32 s94, 0"); a("s_cselect_b32 s94, %d, s94" % site[0])
            sites.append((site[0], label, len(a.l)))
    def wait_word(scache, vaddr, vtmp, thr, off=0, sleep=0):
        lp = lab("pw"); ok = lab("ok")
        a(lp + ":")
        a("s_cmp_gt_u32 %s, %s" % (scache, thr))
        a("s_cbranch_scc1 " + ok)
        if sleep: a("s_sleep %d" % sleep)
        a("ds_read_b32 %s, %s offset:%d" % (vtmp, vaddr, off))
        a("s_waitcnt lgkmcnt(0)")
        a("v_readfirstlane_b32 %s, %s" % (scache, vtmp))
        budget_loop(lp, 1 + sleep // 2)
        a(ok + ":")
    def wait_min4(scache, vaddr, vt, thr, off=0, sleep=0, cmp="s_cmp_gt_u32"):
        lp = lab("pm"); ok = lab("ok")
        a(lp + ":")
        a("%s %s, %s" % (cmp, scache, thr))
        a("s_cbranch_scc1 " + ok)
        if sleep: a("s_sleep %d" % sleep)
        a("ds_read_b128 v[%d:%d], %s offset:%d" % (vt, vt + 3, vaddr, off))
        a("s_waitcnt lgkmcnt(0)")
        a("v_min3_u32 v%d, v%d, v%d, v%d" % (vt, vt, vt + 1, vt + 2))
        a("v_min_u32 v%d, v%d, v%d" % (vt, vt, vt + 3))
        a("s_nop 0")
        a("v_readfirstlane_b32 %s, v%d" % (scache, vt))
        budget_loop(lp, 1 + sleep // 2)
        a(ok + ":")
    VT = 56
    def poll_valid(loads, check, sleep=1, first=True, mask0=None):
        if "nopoll" in dbg: return
        if first:
            if mask0: a("s_mov_b64 exec, %s" % mask0)
            loads()
        lp = lab("pv"); ok = lab("ok")
        a(lp + ":")
        a("s_mov_b64 exec, -1")
        a("s_waitcnt vmcnt(0)")
        check()
        a("s_and_b64 exec, vcc, vcc")
        a("s_cbranch_scc0 " + ok)
        if sleep: a("s_sleep %d" % sleep)
        loads()
        budget_loop(lp, 64)
        a(ok + ":")
        a("s_mov_b64 exec, -1")
        a("s_waitcnt vmcnt(0)")
    def tagcheck(base, n, dst, vtmp):
        def f():
            for i in range(n): a("v_xor_b32 v%d, v%d, v%d" % (dst + i, base + i, VT + (i & 3)))
            h = n // 2
            for c in range(2):
                r = list(range(dst + c * h, dst + (c + 1) * h))
                a("v_or3_b32 v%d, v%d, v%d, v%d" % (vtmp + c, r[0], r[1], r[2])); r = r[3:]
                while len(r) >= 2:
                    a("v_or3_b32 v%d, v%d, v%d, v%d" % (vtmp + c, vtmp + c, r[0], r[1])); r = r[2:]
                if r: a("v_or_b32 v%d, v%d, v%d" % (vtmp + c, vtmp + c, r[0]))
            a("v_bitop3_b32 v%d, v%d, v%d, s60 bitop3:0xa8" % (vtmp, vtmp, vtmp + 1))
            a("v_cmp_ne_u32 vcc, 0, v%d" % vtmp)
        return f
    def tag4(d, s=None):
        s = d if s is None else s
        for r in range(4): a("v_bfi_b32 v%d, s60, v%d, v%d" % (d + r, VT + r, s + r))
    def epoch_load():
        if wsoff: a("s_add_u32 s28, s28, 0x%x" % wsoff); a("s_addc_u32 s29, s29, 0")
    def epoch_tags():
        a("s_mov_b32 s60, 0x9e3779b1"); a("v_mul_lo_u32 v62, v60, s60")
        a("s_mov_b32 s60, 0x85ebca6b"); a("v_xor_b32 v63, v61, v62"); a("v_mul_lo_u32 v63, v63, s60")
        a("s_movk_i32 s60, 0x7ff")
        a("v_and_b32 v56, s60, v62")
        a("v_bfe_u32 v57, v62, 11, 10"); a("v_lshlrev_b32 v57, 1, v57")
        a("v_and_b32 v58, 1, v62"); a("v_xor_b32 v58, 1, v58"); a("v_or_b32 v57, v57, v58")
        a("v_lshrrev_b32 v58, 21, v62"); a("v_lshrrev_b32 v59, 21, v63")
    def bfly(op, v, vt, bits):
        for b in bits:
            if b <= 3:
                a("s_nop 1")
                a("%s_dpp v%d, v%d, v%d row_ror:%d row_mask:0xf bank_mask:0xf" % (op, v, v, v, 1 << b))
            else:
                a("v_mov_b32 v%d, v%d" % (vt, v))
                a("s_nop 1")
                a("v_permlane%d_swap_b32 v%d, v%d" % (1 << b, v, vt))
                a("%s v%d, v%d, v%d" % (op, v, v, vt))
    def bfly4(op, v, vt, bits):
        for b in bits:
            if b <= 3:
                for r in range(4):
                    a("%s_dpp v%d, v%d, v%d row_ror:%d row_mask:0xf bank_mask:0xf" % (op, v + r, v + r, v + r, 1 << b))
            else:
                for r in range(4): a("v_mov_b32 v%d, v%d" % (vt + r, v + r))
                for r in range(4): a("v_permlane%d_swap_b32 v%d, v%d" % (1 << b, v + r, vt + r))
                for r in range(4): a("%s v%d, v%d, v%d" % (op, v + r, v + r, vt + r))

    a("s_cmp_ge_u32 s2, 256")
    a("s_cbranch_scc1 L_end")
    a("s_load_dwordx16 s[4:19], s[0:1], 0")
    a("s_load_dwordx8 s[20:27], s[0:1], 64")
    a("s_load_dwordx2 s[28:29], s[0:1], 96")
    a("v_lshrrev_b32 v1, 6, v0")
    a("v_lshlrev_b32 v3, 3, v0")
    a("v_mov_b32 v4, 0"); a("v_mov_b32 v5, 0")
    a("v_readfirstlane_b32 s30, v1")
    a("v_add_u32 v3, %d, v3" % SY)
    a("v_and_b32 v0, 63, v0")
    a("ds_write_b64 v3, v[4:5]")
    a("s_mov_b32 %s, %d" % (sB, budget))
    if diag: a("s_mov_b32 s94, 0")
    if stamps:
        a("v_mov_b32 v%d, 0" % VST); stamp(0)
    a("s_xor_b32 s3, s2, %d" % qx)
    a("v_lshrrev_b32 v1, 4, v0")
    a("v_and_b32 v2, 15, v0")
    a("s_cmp_lg_u32 s30, 0")
    a("s_cbranch_scc1 L_notloader")

    a("s_setprio 3")
    vA = list(range(4, 12))
    vK = [12, 13, 14, 15]; vV = [16, 17]; vWO = 18
    a("v_lshrrev_b32 v20, 3, v0"); a("v_and_b32 v21, 7, v0"); a("v_and_b32 v22, 1, v1")
    a("v_lshlrev_b32 v20, 13, v20"); a("v_lshlrev_b32 v22, 1, v22")
    a("v_xor_b32 v21, v21, v22")
    a("v_lshl_add_u32 v4, v21, 4, v20")
    a("v_xor_b32 v5, 64, v4")
    a("s_and_b32 s56, s3, 1"); a("s_lshl_b32 s56, s56, 22")
    a("s_bfe_u32 s57, s3, 0x60001"); a("s_lshl_b32 s57, s57, 7"); a("s_add_u32 s56, s56, s57")
    a("s_mov_b32 s34, 0x800000"); a("s_mov_b32 s35, 0x20000")
    a("s_movk_i32 s38, 0x1000"); a("s_mov_b32 s39, 0x20000")
    a("s_and_b32 s57, s3, 1"); a("s_lshl_b32 s57, s57, 10")
    a("v_lshlrev_b32 v18, 4, v0"); a("s_mov_b32 m0, %d" % XBASE)
    a("s_mov_b32 s40, 0"); a("s_mov_b32 s41, 0")
    a("v_lshlrev_b32 v24, 2, v0"); a("v_add_u32 v24, %d, v24" % L_LANDED)
    a("v_mov_b32 v25, 0")
    a("s_cmp_lt_u32 s2, 128")
    a("s_waitcnt lgkmcnt(0)")
    a("s_cselect_b32 s32, s10, s20"); a("s_cselect_b32 s33, s11, s21")
    a("s_cselect_b32 s36, s4, s14"); a("s_cselect_b32 s37, s5, s15")
    a("s_and_b32 s33, s33, 0xffff"); a("s_and_b32 s37, s37, 0xffff")
    stamp(21)
    a("buffer_load_dwordx4 v18, s[36:39], s57 offen lds")
    a("s_add_u32 s57, s57, 1024")
    a("buffer_load_dwordx4 v18, s[36:39], s57 offen offset:1024 lds")
    def signal(w, j):
        js = (w - 1) % 8 or 8
        if j == js:
            d = (w - 1 - js) // 8
            if d: a("s_sub_i32 s42, s40, %d" % d); a("s_max_i32 s42, s42, 0"); a("v_mov_b32 v25, s42")
            else: a("v_mov_b32 v25, s40")
            a("ds_write_b32 v24, v25")
    def wq_tile(w, waits=True):
        for i in range(8):
            if i % 4 == 0: a("s_add_u32 m0, s41, %d" % (i * 1024)); a("s_nop 0")
            a("buffer_load_dwordx4 v%d, s[32:35], s56 offen offset:%d %s lds" % (vA[i & 1], (i % 4) * 1024, ldpol))
            a("s_add_u32 s56, s56, %d" % (64512 + (4096 if i % 4 == 3 else 0)))
            if waits:
                a("s_waitcnt vmcnt(%d)" % (w - 1)); signal(w, i + 1)
        a("s_add_u32 s40, s40, 1"); a("s_add_u32 s41, s41, 8192")
    assert win0 >= 8 * burst
    a("L_wq0:")
    wq_tile(win0, waits=False)
    a("s_cmp_lt_u32 s40, %d" % burst); a("s_cbranch_scc1 L_wq0")
    stamp(22)
    if bar_at <= burst:
        a("s_barrier"); stamp(1)
    for i in range(4):
        a("v_add_u32 v20, %d, v1" % (4 * i)); a("v_xor_b32 v20, v20, v2"); a("v_lshlrev_b32 v20, 4, v20")
        a("v_lshl_add_u32 v%d, v1, 8, v20" % vK[i])
    for i in range(2):
        a("v_add_u32 v20, %d, v1" % (4 * i)); a("v_lshlrev_b32 v20, 1, v20"); a("v_xor_b32 v20, v20, v2")
        a("v_lshlrev_b32 v20, 4, v20"); a("v_lshl_add_u32 v%d, v1, 8, v20" % vV[i])
    a("v_mov_b32 v26, %d" % L_FREE); a("v_mov_b32 v19, %d" % L_LVL)
    a("s_cmp_lt_u32 s2, 128")
    a("s_cselect_b32 s52, s12, s22"); a("s_cselect_b32 s53, s13, s23")
    role()
    offsets()
    a("s_mov_b32 s61, 0")
    a("L_wq1:")
    wq_tile(win0)
    if bar_at > burst:
        a("s_cmp_lg_u32 s40, %d" % bar_at); a("s_cbranch_scc1 L_nobar")
        a("s_barrier"); stamp(1)
        a("L_nobar:")
    a("s_cmp_lt_u32 s40, 8"); a("s_cbranch_scc1 L_wq1")
    def tile_loop(name, w, redispatch=False):
        a(name + ":")
        if "nofree" not in dbg:
            a("s_sub_i32 s42, s40, %d" % NSLOT)
            wait_min4("s61", "v26", 28, "s42", cmp="s_cmp_gt_i32")
        for h in range(2):
            if h == 0: a("s_mov_b32 m0, s41"); a("s_add_u32 s45, s56, 4096")
            else: a("s_add_u32 m0, s41, 4096"); a("s_nop 0")
            for i in range(4):
                a("buffer_load_dwordx4 v%d, s[32:35], %s offen offset:%d %s lds" % (vA[4 * h + i], "s45" if h else "s56", i * 1024, ldpol))
                a("s_waitcnt vmcnt(%d)" % (w - 1)); signal(w, 4 * h + i + 1)
        for i in range(8): a("v_xor_b32 v%d, s44, v%d" % (vA[i], vA[i]))
        a("s_add_u32 s56, s56, 8192")
        a("s_add_u32 s41, s41, 8192"); a("s_and_b32 s41, s41, %d" % (NSLOT * 8192 - 1))
        a("s_add_u32 s40, s40, 1")
        a("s_cmp_lt_u32 s40, s43")
        if redispatch:
            a("s_cbranch_scc0 L_ret")
            a("s_and_b32 s42, s40, %d" % (redisp - 1))
            a("s_cbranch_scc1 " + name)
            a("s_branch L_tile")
        else:
            a("s_cbranch_scc1 " + name)
            a("s_setpc_b64 s[46:47]")
    def seg_setup(name):
        lo, sreg, base, size = {"kbig": (48, 54, 0, 64 << 20), "ksm": (6, 55, 0, 64 << 20), "vbig": (50, 54, 0, 64 << 20), "vsm": (8, 55, 0, 64 << 20),
                                "woE": (52, 59, 0, 8 << 20), "woL": (52, 59, 32768, 8 << 20)}[name]
        a("s_mov_b32 s32, s%d" % lo); a("s_and_b32 s33, s%d, 0xffff" % (lo + 1)); a("s_mov_b32 s34, 0x%x" % size)
        a("s_add_u32 s56, s%d, %d" % (sreg, base))
        if name in ("kbig", "vbig", "woE", "woL"):
            for i in range(8):
                if name[0] == "k": a("v_mov_b32 v%d, v%d" % (vA[i], vK[i & 3]))
                elif name[0] == "v": a("v_mov_b32 v%d, v%d" % (vA[i], vV[i & 1]))
                else: a("v_xor_b32 v%d, %d, v18" % (vA[i], 32 * (i >> 1)))
            a("s_mov_b32 s44, %d" % (128 if name[0] == "w" else 0))
    stampat = {"kbig": 3, "ksm": 4, "vbig": 5, "vsm": 6}
    for name, cnt in segs[1:]:
        if name in stampat: stamp(stampat[name])
        seg_setup(name)
        end = T0[name] + cnt
        cut = NT - tailT
        if vst and name == "vbig":
            for q in range(1, 4):
                if T0[name] + 8 * q <= cut:
                    a("s_mov_b32 s43, %d" % (T0[name] + 8 * q)); a("s_call_b64 s[46:47], L_tile"); stamp(8 + q)
        if tailT and T0[name] < cut < end:
            a("s_mov_b32 s43, %d" % cut); a("s_call_b64 s[46:47], L_tile")
            a("s_mov_b32 s43, %d" % end); a("s_call_b64 s[46:47], L_tileT")
        else:
            a("s_mov_b32 s43, %d" % end)
            a("s_call_b64 s[46:47], %s" % ("L_tileT" if (tailT and T0[name] >= cut) else "L_tile"))
        if name == "vsm": stamp(7)
    wl = winT if tailT else (max(levels) if levels else win)
    done = (8 * NT - (wl - 1)) // 8
    while done < NT:
        done += 1
        a("s_waitcnt vmcnt(%d)" % (8 * (NT - done)))
        a("v_mov_b32 v25, %d" % done); a("ds_write_b32 v24, v25")
    a("s_waitcnt lgkmcnt(0)")
    stamp(8)
    diag_end(0)
    stamp_flush()
    a("s_endpgm")
    if levels:
        a("L_tile:")
        a("ds_read_b32 v27, v19")
        a("s_waitcnt lgkmcnt(0)")
        a("v_readfirstlane_b32 s42, v27")
        for k in range(1, len(levels)):
            a("s_cmp_eq_u32 s42, %d" % k); a("s_cbranch_scc1 L_tile_%d" % k)
        for k, w in enumerate(levels): tile_loop("L_tile_%d" % k, w, True)
        a("L_ret:")
        a("s_setpc_b64 s[46:47]")
    else:
        tile_loop("L_tile", win)
    if tailT: tile_loop("L_tileT", winT)

    a("L_notloader:")
    a("s_cmp_gt_u32 s30, 1")
    a("s_cbranch_scc1 L_cons")
    a("v_lshlrev_b32 v24, 2, v0"); a("v_add_u32 v24, %d, v24" % L_HST)
    if levels: a("v_mov_b32 v25, %d" % lvl0); a("ds_write_b32 v24, v25 offset:%d" % (L_LVL - L_HST))
    a("v_mov_b32 v10, 0")
    a("s_memrealtime s[90:91]")
    a("s_waitcnt lgkmcnt(0)")
    a("s_cmp_lg_u32 s2, 0"); a("s_cbranch_scc1 L_nononce")
    a("s_or_b32 s90, s90, 1"); a("s_or_b32 s91, s91, 0x80000000")
    a("v_mov_b32 v60, s90"); a("v_mov_b32 v61, s91")
    a("s_mov_b64 exec, 1")
    a("global_store_dwordx2 v10, v[60:61], s[26:27] offset:128 sc1")
    a("s_mov_b64 exec, -1")
    a("L_nononce:")
    epoch_load()
    a("s_mov_b32 s41, 0"); a("v_mov_b32 v26, %d" % L_STAGE)
    a("s_mov_b32 s42, 0"); a("v_mov_b32 v27, %d" % L_LANDED)
    a("s_lshl_b32 s32, s2, 8")
    a("s_add_u32 s33, s32, 0x%x" % W_ML); a("s_add_u32 s38, s28, s33"); a("s_addc_u32 s39, s29, 0")
    a("s_bfe_u32 s32, s2, 0x20005"); a("s_lshl_b32 s32, s32, 13")
    a("s_bfe_u32 s33, s2, 0x30002")
    a("s_lshr_b32 s34, s2, 7"); a("s_lshl_b32 s34, s34, 3"); a("s_add_u32 s33, s33, s34"); a("s_lshl_b32 s33, s33, 4")
    a("s_add_u32 s32, s32, s33"); a("s_add_u32 s32, s32, 0x%x" % W_ML)
    a("s_add_u32 s34, s28, s32"); a("s_addc_u32 s35, s29, 0")
    a("v_lshrrev_b32 v12, 5, v0"); a("v_lshlrev_b32 v12, 15, v12")
    a("v_and_b32 v16, 31, v0"); a("v_lshl_add_u32 v12, v16, 8, v12")
    a("v_and_b32 v13, 7, v0"); a("v_lshlrev_b32 v13, 2, v13"); a("v_add_u32 v13, %d, v13" % L_MX)
    a("v_lshlrev_b32 v11, 4, v2")
    role()
    a("s_bfe_u32 s32, s2, 0x20005")
    a("s_lshl_b32 s44, 0x01010101, s32"); a("s_lshl_b32 s45, s44, 4")
    a("s_cmp_lt_u32 s2, 128")
    a("s_cselect_b32 s44, -1, s44"); a("s_cselect_b32 s45, -1, s45")
    a("s_cmp_eq_u32 s92, 1")
    a("s_cselect_b32 s48, 0xff, 0"); a("s_mov_b32 s49, 0")
    a("s_cselect_b32 s50, 0xff00, 0"); a("s_mov_b32 s51, 0")
    a("s_or_b32 s46, s50, 0xff"); a("s_mov_b32 s47, 0")
    if touch:
        a("s_mov_b64 s[64:65], s[48:49]"); a("s_mov_b64 s[66:67], s[50:51]"); a("s_mov_b64 s[68:69], s[44:45]"); a("s_mov_b64 s[70:71], s[46:47]")
        a("s_cmp_lt_u32 s2, 128")
        a("s_cselect_b32 s52, s12, s22"); a("s_cselect_b32 s53, s13, s23")
        offsets()
        a("s_mov_b64 exec, 1")
        a("v_mov_b32 v32, s54"); a("v_mov_b32 v33, s55"); a("v_mov_b32 v34, s59")
        a("global_load_dword v36, v32, s[48:49] nt"); a("global_load_dword v37, v32, s[50:51] nt")
        a("global_load_dword v38, v33, s[6:7] nt"); a("global_load_dword v39, v33, s[8:9] nt")
        a("global_load_dword v40, v34, s[52:53] nt")
        if touch > 1:
            for k, off in enumerate((0x0f0000, 0x300000 + GAP // 2, 0x500000 + GAP)):
                a("v_mov_b32 v35, 0x%x" % off); a("global_load_dword v%d, v35, s[28:29] nt" % (41 + k))
            a("global_load_dword v44, v10, s[24:25] nt")
        a("s_mov_b64 exec, -1")
        a("s_mov_b64 s[48:49], s[64:65]"); a("s_mov_b64 s[50:51], s[66:67]"); a("s_mov_b64 s[44:45], s[68:69]"); a("s_mov_b64 s[46:47], s[70:71]")
    stamp(22)
    a("s_barrier")
    if nz_at: wait_word("s42", "v27", "v28", str(nz_at - 1), sleep=2)
    def nzcheck():
        a("v_min_u32 v18, v60, v61"); a("v_cmp_eq_u32 vcc, 0, v18")
    poll_valid(lambda: a("global_load_dwordx2 v[60:61], v10, s[26:27] offset:128 sc1"), nzcheck, sleep=4)
    a("v_lshlrev_b32 v18, 3, v0"); a("v_add_u32 v18, %d, v18" % L_NON)
    a("ds_write_b64 v18, v[60:61]")
    a("v_mov_b32 v25, 1"); a("ds_write_b32 v24, v25")
    stamp(2)
    epoch_tags()
    a("v_mov_b32 v14, 0xff800000"); a("v_mov_b32 v15, 0"); a("v_mov_b32 v16, v62"); a("v_mov_b32 v17, v63")
    cpl = list(cps or [])
    if cpl:
        offs = [(9 + 33 * k + (16 if k >= 8 else 0)) & 255 for k in range(nsamp)]
        for k, d in enumerate(offs):
            a("s_add_u32 s%d, s2, %d" % (64 + k, d)); a("s_and_b32 s%d, s%d, 255" % (64 + k, 64 + k)); a("s_lshl_b32 s%d, s%d, 7" % (64 + k, 64 + k))
        a("s_add_u32 s52, s28, 0x%x" % W_PB); a("s_addc_u32 s53, s29, 0")
        a("s_lshl_b32 s32, s2, 7"); a("v_mov_b32 v20, s32")
        a("v_readfirstlane_b32 s54, v62")
        a("v_lshl_add_u32 v21, v0, 4, v20")
        for r in range(4): a("v_mov_b32 v%d, v62" % (64 + r))
    if rank1:
        offs = [(9 + 33 * k + (16 if k >= 8 else 0)) & 255 for k in range(nsamp)]
        for k, d in enumerate(offs):
            a("s_add_u32 s%d, s2, %d" % (64 + k, d)); a("s_and_b32 s%d, s%d, 255" % (64 + k, 64 + k)); a("s_lshl_b32 s%d, s%d, 8" % (64 + k, 64 + k))
        a("s_add_u32 s52, s28, 0x%x" % (W_ML + 8)); a("s_addc_u32 s53, s29, 0")
        a("v_readfirstlane_b32 s54, v62")
    def checkpoints(upto):
        while cpl and cpl[0] <= upto:
            c = cpl.pop(0)
            wait_word("s42", "v27", "v28", str(c - 1), sleep=4)
            if "fullpb" in dbg:
                a("s_mov_b64 exec, 0xff")
                a("global_store_dwordx4 v21, v[64:67], s[52:53] sc1")
            elif "nopbst" not in dbg:
                a("s_mov_b64 exec, 1")
                a("global_store_dword v20, v62, s[52:53] sc1")
            a("s_mov_b64 exec, -1")
            if "nopbld" not in dbg:
                for k in range(0, nsamp): a("s_load_dword s%d, s[52:53], s%d" % (4 + k, 64 + k))
            a("s_mov_b32 s55, 0")
            a("s_waitcnt lgkmcnt(0)")
            for k in range(0, nsamp):
                a("s_cmp_eq_u32 s%d, s54" % (4 + k)); a("s_addc_u32 s55, s55, 0")
            a("s_mov_b32 s56, 0")
            for tv in thr:
                a("s_cmp_ge_u32 s55, %d" % tv); a("s_addc_u32 s56, s56, 0")
            a("v_mov_b32 v25, s56"); a("ds_write_b32 v24, v25 offset:%d" % (L_LVL - L_HST))
            if stamps: a("v_writelane_b32 v%d, s55, %d" % (VST, 32 + len(cpl)))
            a("s_add_u32 s52, s52, 0x8000"); a("s_addc_u32 s53, s53, 0")
    checkpoints(T0["ksm"] + 4)
    wait_min4("s41", "v26", 28, "2", sleep=8)
    for w in range(4):
        a("ds_read_b32 v%d, v13 offset:%d" % (32 + w, 64 * w))
        a("ds_read_b32 v%d, v13 offset:%d" % (36 + w, 64 * w + 32))
        a("ds_read_b32 v%d, v13 offset:%d" % (40 + w, L_LW - L_MX + 64 * w))
        a("ds_read_b32 v%d, v13 offset:%d" % (44 + w, L_LW - L_MX + 64 * w + 32))
    a("s_waitcnt lgkmcnt(0)")
    a("v_max3_f32 v32, v32, v33, v34"); a("v_max_f32 v32, v32, v35")
    a("v_max3_f32 v36, v36, v37, v38"); a("v_max_f32 v36, v36, v39")
    a("v_add_f32 v40, v40, v41"); a("v_add_f32 v42, v42, v43"); a("v_add_f32 v40, v40, v42")
    a("v_add_f32 v44, v44, v45"); a("v_add_f32 v46, v46, v47"); a("v_add_f32 v44, v44, v46")
    a("v_max_f32 v60, v32, v36"); a("v_add_f32 v61, v40, v44")
    a("v_cndmask_b32 v60, v60, v36, s[48:49]"); a("v_cndmask_b32 v61, v61, v44, s[48:49]")
    a("v_cndmask_b32 v60, v60, v32, s[50:51]"); a("v_cndmask_b32 v61, v61, v40, s[50:51]")
    a("s_mov_b64 exec, s[46:47]")
    a("global_store_dwordx4 v11, v[60:63], s[38:39] sc1")
    a("s_mov_b64 exec, -1")
    if rank1:
        for k in range(0, nsamp): a("s_load_dword s%d, s[52:53], s%d" % (4 + k, 64 + k))
        a("s_mov_b32 s55, 0")
        a("s_waitcnt lgkmcnt(0)")
        for k in range(0, nsamp):
            a("s_cmp_eq_u32 s%d, s54" % (4 + k)); a("s_addc_u32 s55, s55, 0")
        a("s_mov_b32 s56, 0")
        for tv in thr:
            a("s_cmp_ge_u32 s55, %d" % tv); a("s_addc_u32 s56, s56, 0")
        a("v_mov_b32 v25, s56"); a("ds_write_b32 v24, v25 offset:%d" % (L_LVL - L_HST))
    stamp(4)
    checkpoints(T0["vbig"] + ml_at)
    if ml_at: wait_word("s42", "v27", "v28", str(T0["vbig"] + ml_at), sleep=8)
    def mlcheck():
        a("v_xor_b32 v18, v16, v62"); a("v_bitop3_b32 v18, v17, v63, v18 bitop3:0xbe")
        a("v_cmp_ne_u32 vcc, 0, v18")
    poll_valid(lambda: a("global_load_dwordx4 v[14:17], v12, s[34:35] sc1"), mlcheck, sleep=mlsleep, mask0="s[44:45]")
    a("v_mov_b32 v17, v14")
    bfly("v_max_f32", 17, 18, [0, 1, 2, 3, 4])
    a("v_sub_f32 v14, v14, v17"); a("v_exp_f32 v14, v14"); a("s_nop 0")
    a("v_mul_f32 v15, v15, v14")
    bfly("v_add_f32", 15, 18, [0, 1, 2, 3, 4])
    a("v_rcp_f32 v15, v15"); a("s_nop 0"); a("v_mul_f32 v14, v14, v15")
    a("v_lshlrev_b32 v13, 2, v0")
    a("v_add_u32 v13, %d, v13" % L_F)
    a("ds_write_b32 v13, v14")
    a("v_mov_b32 v25, 2"); a("ds_write_b32 v24, v25")
    checkpoints(NT)
    a("s_waitcnt lgkmcnt(0)")
    stamp(5)
    diag_end(1)
    stamp_flush()
    a("s_endpgm")

    a("L_cons:")
    if dur: a("s_memrealtime s[96:97]")
    a("s_waitcnt lgkmcnt(0)")
    if dur: a("s_mov_b32 s95, s96")
    if cbar == 0:
        stamp(22); a("s_barrier")
    sL = "s33"; sHS = "s34"; sST = "s35"
    a("s_sub_u32 s32, s30, 2")
    a("s_mov_b32 s33, 0"); a("s_mov_b32 s34, 0"); a("s_mov_b32 s35, 0")
    a("s_lshl_b32 s38, s32, 2")
    a("v_lshl_add_u32 v4, v0, 4, s38")
    a("v_add_u32 v5, %d, v4" % L_STAGE); a("v_add_u32 v4, %d, v4" % L_FREE)
    a("v_mov_b32 v6, %d" % L_LANDED); a("v_mov_b32 v7, %d" % L_HST); a("v_mov_b32 v12, %d" % L_STAGE)
    a("v_bfe_u32 v13, v0, 2, 2"); a("v_and_b32 v14, 3, v0")
    VX = 64
    a("v_and_b32 v15, 1, v0"); a("v_lshlrev_b32 v15, 10, v15"); a("v_lshl_add_u32 v15, v1, 4, v15")
    a("v_add_u32 v15, %d, v15" % XBASE)
    epoch_load()
    if "nocons" in dbg:
        a("s_waitcnt vmcnt(0)")
        a("s_endpgm")
    def set_free(val):
        a("v_mov_b32 v8, %s" % val); a("ds_write_b32 v4, v8")
    def set_stage(val):
        a("v_mov_b32 v8, %d" % val); a("ds_write_b32 v5, v8")
    a("v_lshl_add_u32 v16, v1, 3, v13"); a("v_lshlrev_b32 v16, 7, v16")
    a("v_lshrrev_b32 v17, 1, v13"); a("v_and_b32 v18, 1, v1"); a("v_lshl_or_b32 v17, v18, 1, v17")
    a("v_lshlrev_b32 v17, 1, v17")
    a("v_lshrrev_b32 v18, 1, v14"); a("s_lshl_b32 s38, s32, 1"); a("v_add_u32 v18, s38, v18")
    a("v_xor_b32 v17, v17, v18"); a("v_lshl_add_u32 v16, v17, 4, v16")
    a("v_and_b32 v18, 1, v14"); a("v_lshl_add_u32 v16, v18, 3, v16")
    vKa = list(range(20, 28))
    a("v_lshrrev_b32 v17, 1, v1"); a("v_lshl_add_u32 v17, v17, 4, v2"); a("v_lshlrev_b32 v17, 8, v17")
    a("s_lshl_b32 s38, s32, 13"); a("v_add_u32 v17, s38, v17")
    a("v_and_b32 v18, 1, v1"); a("v_xor_b32 v18, v18, v2"); a("v_lshl_add_u32 v20, v18, 4, v17")
    for s in range(1, 8): a("v_xor_b32 v%d, %d, v20" % (vKa[s], 32 * s))
    a("v_lshl_add_u32 v17, v1, 2, v13")
    a("v_and_b32 v18, 7, v17"); a("v_lshlrev_b32 v18, 1, v18")
    a("v_lshrrev_b32 v19, 1, v14")
    a("v_xor_b32 v30, v18, v19")
    a("v_and_b32 v31, 1, v14"); a("v_lshlrev_b32 v31, 3, v31")
    a("v_lshl_add_u32 v30, v30, 4, v31")
    a("s_lshl_b32 s38, s32, 6")
    a("v_xor_b32 v28, s38, v30"); a("v_lshl_add_u32 v28, v17, 8, v28")
    a("v_xor_b32 v29, 32, v28")
    vWOa = list(range(40, 48))
    a("s_lshl_b32 s38, s32, 9")
    a("v_lshl_add_u32 v40, v17, 11, v30"); a("v_add_u32 v40, s38, v40")
    for t in range(1, 8): a("v_xor_b32 v%d, %d, v40" % (vWOa[t], 32 * t))
    a("v_and_b32 v17, 7, v0"); a("v_lshl_add_u32 v17, v1, 3, v17"); a("v_lshlrev_b32 v17, 4, v17")
    a("v_add_u32 v33, %d, v17" % PBASE)
    a("v_bfe_u32 v18, v0, 3, 1"); a("v_lshl_add_u32 v32, v18, 3, v33")
    a("s_lshl_b32 s38, s32, 9"); a("v_add_u32 v32, s38, v32")
    gl = lambda d, off: (a("s_add_u32 s%d, s28, %s" % (d, off)), a("s_addc_u32 s%d, s29, 0" % (d + 1)))
    a("s_lshr_b32 s38, s2, 7"); a("s_lshl_b32 s38, s38, 16")
    a("s_and_b32 s39, s3, 1"); a("s_lshl_b32 s39, s39, 14"); a("s_add_u32 s38, s38, s39")
    a("s_bfe_u32 s39, s3, 0x60001"); a("s_lshl_b32 s39, s39, 8"); a("s_add_u32 s38, s38, s39")
    a("s_lshl_b32 s39, s32, 6"); a("s_add_u32 s38, s38, s39")
    gl(40, "s38")
    a("v_and_b32 v34, 1, v0"); a("v_lshlrev_b32 v34, 15, v34"); a("v_lshl_add_u32 v34, v1, 4, v34")
    role()
    a("s_lshr_b32 s39, s2, 7"); a("s_lshl_b32 s38, s39, 15")
    a("s_bfe_u32 s39, s2, 0x20005"); a("s_lshl_b32 s39, s39, 12"); a("s_add_u32 s38, s38, s39")
    a("s_lshl_b32 s39, s32, 10"); a("s_add_u32 s38, s38, s39")
    gl(44, "s38")
    a("s_lshl_b32 s39, s92, 16"); a("s_add_u32 s38, s38, s39")
    gl(42, "s38")
    a("v_lshlrev_b32 v48, 4, v0"); a("v_add_u32 v36, 16384, v48")
    a("s_lshl_b32 s38, s32, 9"); a("s_add_u32 s38, s38, %d" % QBASE)
    a("v_lshl_add_u32 v37, v0, 3, s38")
    a("v_and_b32 v17, 7, v0"); a("v_lshlrev_b32 v17, 8, v17"); a("v_and_b32 v18, 1, v1"); a("v_lshl_add_u32 v17, v18, 4, v17")
    a("v_add_u32 v35, %d, v17" % QBASE)
    a("s_lshl_b32 s39, s92, 11"); a("v_add_u32 v38, s39, v35")
    if cbar == 1:
        stamp(22); a("s_barrier")
    stamp(21)
    VF = 128
    VS = 160
    VQA = 200
    VWE = 216
    for u in range(8):
        if u == tag_at:
            wait_word(sHS, "v7", "v8", "0")
            a("ds_read_b64 v[60:61], v7 offset:%d" % (L_NON - L_HST))
            a("s_waitcnt lgkmcnt(0)")
            epoch_tags()
        wait_word(sL, "v6", "v8", str(u), sleep=psleep)
        if u == 0:
            for s in range(16): a("ds_read_b128 v[%d:%d], v15 offset:%d" % (VX + 4 * s, VX + 4 * s + 3, 64 * s))
        for s in range(2):
            for h in range(2):
                a("ds_read_b64_tr_b16 v[%d:%d], v16 offset:%d" % (VF + 4 * s + 2 * h, VF + 4 * s + 2 * h + 1, u * 8192 + s * 4096 + h * 512))
        a("s_waitcnt lgkmcnt(0)")
        for s in range(2):
            c = "0" if (u == 0 and s == 0) else "v[%d:%d]" % (VQA, VQA + 3)
            x = VX + 4 * (2 * u + s)
            a("v_mfma_f32_16x16x32_bf16 v[%d:%d], v[%d:%d], v[%d:%d], %s" % (VQA, VQA + 3, VF + 4 * s, VF + 4 * s + 3, x, x + 3, c))
        def rd(base, u=u):
            for s in range(2):
                for h in range(2):
                    a("ds_read_b64_tr_b16 v[%d:%d], v16 offset:%d" % (base + 4 * s + 2 * h, base + 4 * s + 2 * h + 1, u * 8192 + s * 4096 + h * 512))
        if dchk: a("s_mov_b32 s36, %d" % u)
        recheck(rd, 8, 0)
        if u < 7 or wo_early == 2: set_free(str(u + 1))
        else:
            a("s_add_u32 s36, s32, %d" % T0["kbig"]); set_free("s36")
    stamp(1)
    a("s_mov_b32 exec_lo, 0x00030003"); a("s_mov_b32 exec_hi, 0x00030003")
    a("s_nop 3")
    tag4(VQA)
    a("global_store_dwordx4 v34, v[%d:%d], s[40:41] sc1" % (VQA, VQA + 3))
    a("s_mov_b64 exec, -1")
    stamp(2)
    VO = 204
    VW = 64
    def wo_reads(name, dst):
        T = T0[name]
        wait_word(sL, "v6", "v8", str(T + 3))
        base = (T % NSLOT) * 8192
        if base >= 65536:
            for t in range(8): a("v_add_u32 v%d, 0x10000, v%d" % (vWOa[t], vWOa[t]))
        for t in range(16):
            d = dst(t)
            a("ds_read_b64_tr_b16 v[%d:%d], v%d offset:%d" % (d, d + 1, vWOa[t & 7], base % 65536 + (t >> 3) * 256))
        if base >= 65536:
            for t in range(8): a("v_subrev_u32 v%d, 0x10000, v%d" % (vWOa[t], vWOa[t]))
    VQ = 64
    for r in range(64): a("v_mov_b32 v%d, 0" % (VQ + r))
    if wo_early == 2:
        wo_reads("woE", lambda t: VWE + 2 * t)
        a("s_add_u32 s36, s32, %d" % T0["kbig"])
        a("s_waitcnt lgkmcnt(0)")
        set_free("s36")
    for r in range(8): a("v_mov_b32 v%d, v%d" % (VF + 8 + r, VT + (r & 3)))
    def qloads():
        for kh in range(2):
            a("global_load_dwordx4 v[%d:%d], v%d, s[42:43] sc1" % (VF + 4 * kh, VF + 4 * kh + 3, (48, 36)[kh]))
        sk = lab("qs")
        a("s_cmp_eq_u32 s92, 0"); a("s_cbranch_scc1 " + sk)
        for kh in range(2):
            a("global_load_dwordx4 v[%d:%d], v%d, s[44:45] sc1" % (VF + 8 + 4 * kh, VF + 8 + 4 * kh + 3, (48, 36)[kh]))
        a(sk + ":")
    if qg_at: wait_word(sL, "v6", "v8", str(qg_at - 1), sleep=psleep)
    stamp(14)
    poll_valid(qloads, tagcheck(VF, 16, VF + 16, 8), sleep=qsleep)
    stamp(3)
    for r in range(4): a("v_add_f32 v%d, v%d, v%d" % (VF + r, VF + 16 + r, VF + 20 + r))
    for r in range(4): a("v_add_f32 v%d, v%d, v%d" % (VF + 4 + r, VF + 24 + r, VF + 28 + r))
    for r in range(4): a("v_cvt_pk_bf16_f32 v%d, v%d, v%d" % (VF + 16 + r, VF + 2 * r, VF + 2 * r + 1))
    a("ds_write_b64 v37, v[%d:%d]" % (VF + 16, VF + 17)); a("ds_write_b64 v37, v[%d:%d] offset:2048" % (VF + 18, VF + 19))
    set_stage(1)
    wait_min4(sST, "v12", 8, "0")
    a("s_mov_b32 exec_lo, 0x00ff00ff"); a("s_mov_b32 exec_hi, 0xff00ff00")
    for part in range(2):
        for s in range(8):
            d = VQ + 32 * part + 4 * s
            a("ds_read_b128 v[%d:%d], v%d offset:%d" % (d, d + 3, (35, 38)[part], 32 * s))
    a("s_mov_b64 exec, -1")
    stamp(4)
    hi = [False]
    def ktile(Tbase, q, sdst, nxt):
        a("s_add_u32 s36, s32, %d" % Tbase)
        wait_word(sL, "v6", "v8", "s36", sleep=psleep)
        sl = Tbase % NSLOT
        want_hi = sl >= 8
        if want_hi != hi[0]:
            for s in range(8): a("v_xor_b32 v%d, 0x10000, v%d" % (vKa[s], vKa[s]))
            hi[0] = want_hi
        for s in range(8):
            a("ds_read_b128 v[%d:%d], v%d offset:%d" % (VF + 4 * s, VF + 4 * s + 3, vKa[s], (sl % 8) * 8192))
        if nxt is None: a("s_add_u32 s36, s36, 4")
        else: a("s_mov_b32 s36, %d" % nxt)
        a("v_mov_b32 v8, s36")
        for s in range(8):
            a("s_waitcnt lgkmcnt(%d)" % (7 - s))
            if s == 7 and not dchk: a("ds_write_b32 v4, v8")
            c = "0" if s == 0 else "v[%d:%d]" % (sdst, sdst + 3)
            a("v_mfma_f32_16x16x32_bf16 v[%d:%d], v[%d:%d], v[%d:%d], %s" % (sdst, sdst + 3, VF + 4 * s, VF + 4 * s + 3, q + 4 * s, q + 4 * s + 3, c))
        if dchk:
            def rd(base):
                for s in range(7):
                    a("ds_read_b128 v[%d:%d], v%d offset:%d" % (base + 4 * s, base + 4 * s + 3, vKa[s], (sl % 8) * 8192))
            recheck(rd, 28, 1)
            a("ds_write_b32 v4, v8")
    assert T0["ksm"] == T0["kbig"] + 32
    for i in range(8):
        ktile(T0["kbig"] + 4 * i, VQ, VS + 4 * i, None)
    ktile(T0["ksm"], VQ + 32, VS + 32, T0["ksm"] + 4)
    stamp(5)
    a("s_mov_b32 s38, 0x%x" % f2u(CSCALE))
    a("v_max_f32 v35, v%d, v%d" % (VS, VS + 1))
    for r in range(2, 32, 2): a("v_max3_f32 v35, v35, v%d, v%d" % (VS + r, VS + r + 1))
    a("v_max3_f32 v34, v%d, v%d, v%d" % (VS + 32, VS + 33, VS + 34)); a("v_max_f32 v34, v34, v%d" % (VS + 35))
    bfly("v_max_f32", 34, 36, [3, 4, 5]); bfly("v_max_f32", 35, 36, [3, 4, 5])
    a("v_mul_f32 v34, s38, v34"); a("v_mul_f32 v35, s38, v35")
    a("v_and_b32 v17, 7, v0"); a("v_lshlrev_b32 v17, 2, v17")
    a("v_add_u32 v18, %d, v17" % L_MX)
    a("s_lshl_b32 s39, s32, 6"); a("v_add_u32 v17, s39, v18")
    a("ds_write_b32 v17, v35"); a("ds_write_b32 v17, v34 offset:32")
    set_stage(2)
    if wo_early == 2:
        for t in range(16):
            a("v_mov_b32 v%d, v%d" % (VW + 4 * t, VWE + 2 * t)); a("v_mov_b32 v%d, v%d" % (VW + 4 * t + 1, VWE + 2 * t + 1))
    wait_min4(sST, "v12", 8, "1")
    for w in range(4):
        a("ds_read_b32 v%d, v18 offset:%d" % (VF + w, 64 * w)); a("ds_read_b32 v%d, v18 offset:%d" % (VF + 4 + w, 64 * w + 32))
    a("s_waitcnt lgkmcnt(0)")
    a("v_max3_f32 v35, v%d, v%d, v%d" % (VF, VF + 1, VF + 2)); a("v_max_f32 v35, v35, v%d" % (VF + 3))
    a("v_max3_f32 v34, v%d, v%d, v%d" % (VF + 4, VF + 5, VF + 6)); a("v_max_f32 v34, v34, v%d" % (VF + 7))
    a("s_cmp_eq_u32 s92, 1"); a("s_cbranch_scc1 L_twomax")
    a("v_max_f32 v35, v35, v34"); a("v_mov_b32 v34, v35")
    a("L_twomax:")
    for r in range(36):
        a("v_fma_f32 v%d, v%d, s38, -v%d" % (VS + r, VS + r, 35 if r < 32 else 34))
    for r in range(36): a("v_exp_f32 v%d, v%d" % (VS + r, VS + r))
    a("s_nop 0")
    for tl in range(9):
        b = VS + 4 * tl
        a("v_cvt_pk_bf16_f32 v%d, v%d, v%d" % (VF + 2 * tl, b, b + 1)); a("v_cvt_pk_bf16_f32 v%d, v%d, v%d" % (VF + 2 * tl + 1, b + 2, b + 3))
        a("ds_write_b64 v32, v[%d:%d] offset:%d" % (VF + 2 * tl, VF + 2 * tl + 1, 2048 * tl))
    a("v_add_f32 v34, v%d, v%d" % (VS + 32, VS + 33)); a("v_add_f32 v36, v%d, v%d" % (VS + 34, VS + 35)); a("v_add_f32 v34, v34, v36")
    n = 32
    while n > 1:
        n //= 2
        for r in range(n): a("v_add_f32 v%d, v%d, v%d" % (VS + r, VS + r, VS + n + r))
    a("v_mov_b32 v35, v%d" % VS)
    bfly("v_add_f32", 34, 36, [3, 4, 5]); bfly("v_add_f32", 35, 36, [3, 4, 5])
    a("ds_write_b32 v17, v35 offset:%d" % (L_LW - L_MX)); a("ds_write_b32 v17, v34 offset:%d" % (L_LW - L_MX + 32))
    set_stage(3)
    a("v_and_b32 v37, 7, v0"); a("v_lshlrev_b32 v37, 15, v37")
    a("v_bfe_u32 v18, v0, 3, 1"); a("v_lshl_add_u32 v37, v18, 6, v37"); a("v_lshl_add_u32 v37, v1, 4, v37")
    a("s_bfe_u32 s38, s2, 0x20005"); a("s_lshl_b32 s38, s38, 18")
    a("s_lshl_b32 s39, s32, 13"); a("s_add_u32 s38, s38, s39")
    a("s_lshr_b32 s39, s2, 7"); a("s_lshl_b32 s39, s39, 12"); a("s_add_u32 s38, s38, s39")
    a("s_and_b32 s39, s2, 31"); a("s_lshl_b32 s39, s39, 7"); a("s_add_u32 s38, s38, s39")
    a("s_add_u32 s38, s38, 0x%x" % W_IN1); gl(42, "s38")
    a("s_add_u32 s44, s42, 0x100000"); a("s_addc_u32 s45, s43, 0")
    a("s_mov_b32 s46, 0xff00ff00"); a("s_mov_b32 s47, 0xff00ff00")
    a("s_lshl_b32 s38, s2, 13"); a("s_lshl_b32 s39, s32, 11"); a("s_add_u32 s38, s38, s39")
    a("s_add_u32 s38, s38, 0x%x" % W_IN1); gl(48, "s38")
    a("v_and_b32 v49, 1, v0"); a("v_lshlrev_b32 v49, 19, v49")
    a("v_bfe_u32 v18, v0, 2, 2"); a("v_lshl_add_u32 v49, v18, 14, v49")
    a("v_bfe_u32 v18, v0, 1, 1"); a("v_lshl_add_u32 v49, v18, 6, v49"); a("v_lshl_add_u32 v49, v1, 4, v49")
    a("s_lshr_b32 s38, s2, 7"); a("s_lshl_b32 s38, s38, 20")
    a("s_lshl_b32 s39, s32, 17"); a("s_add_u32 s38, s38, s39")
    a("s_and_b32 s39, s2, 127"); a("s_lshl_b32 s39, s39, 7"); a("s_add_u32 s38, s38, s39")
    a("s_add_u32 s38, s38, 0x%x" % W_IN2); gl(50, "s38")
    a("s_add_u32 s52, s50, 0x10000"); a("s_addc_u32 s53, s51, 0")
    a("s_and_b32 s38, s2, 127"); a("s_lshl_b32 s38, s38, 14"); a("s_lshl_b32 s39, s32, 12"); a("s_add_u32 s38, s38, s39")
    a("s_add_u32 s38, s38, 0x%x" % W_IN2); gl(54, "s38")
    a("s_bfe_u32 s38, s2, 0x10005"); a("s_lshl_b32 s38, s38, 12")
    a("s_bfe_u32 s39, s2, 0x10006"); a("s_lshl_b32 s39, s39, 11"); a("s_add_u32 s38, s38, s39")
    a("s_and_b32 s39, s2, 31"); a("s_lshl_b32 s39, s39, 6"); a("s_add_u32 s38, s38, s39")
    a("s_add_u32 s56, s24, s38"); a("s_addc_u32 s57, s25, 0")
    for t in range(8):
        m = (3 << (2 * t)) * 0x00010001
        a("s_mov_b32 s%d, 0x%x" % (64 + 2 * t, m)); a("s_mov_b32 s%d, 0x%x" % (65 + 2 * t, m))
    a("v_and_b32 v50, 7, v0"); a("v_lshlrev_b32 v50, 4, v50"); a("s_lshl_b32 s38, s32, 7"); a("v_add_u32 v50, s38, v50")
    a("v_add_u32 v50, %d, v50" % L_OX)
    a("v_and_b32 v51, 1, v0"); a("v_lshlrev_b32 v51, 8, v51"); a("v_lshl_add_u32 v51, v1, 4, v51")
    a("v_add_u32 v51, %d, v51" % L_OX)
    a("v_lshrrev_b32 v52, 3, v0"); a("s_lshl_b32 s38, s32, 4"); a("v_add_u32 v52, s38, v52"); a("v_lshlrev_b32 v52, 2, v52")
    a("v_add_u32 v52, %d, v52" % L_F)
    a("v_lshlrev_b32 v55, 3, v0")
    VH = 136; VR = 176
    a("s_bfe_u32 s38, s2, 0x20005"); a("s_lshr_b32 s39, s32, 1"); a("s_lshl_b32 s39, s39, 2"); a("s_add_u32 s38, s38, s39")
    a("s_lshl_b32 s38, s38, 3"); a("s_mov_b64 s[58:59], 0xff"); a("s_lshl_b64 s[58:59], s[58:59], s38")
    a("s_cmp_lt_u32 s2, 128"); a("s_cselect_b64 s[58:59], -1, s[58:59]")
    for r in range(8): a("v_mov_b32 v%d, v%d" % (VR + r, VT + (r & 3)))
    for r in range(8): a("v_mov_b32 v%d, 0" % (VO + r))
    a("s_cmp_eq_u32 s92, 1"); a("s_cselect_b32 s61, %d, 0" % T0["vsm"])
    wait_min4(sST, "v12", 8, "2")
    stamp(6)
    if wo_early == 1:
        wo_reads("woE", lambda t: VW + 4 * t)
        a("s_waitcnt lgkmcnt(0)")
        set_free(str(T0["vbig"]))
    def ostore(sp, d):
        for r in range(4): a("v_cndmask_b32 v%d, v%d, v%d, s[46:47]" % (d + r, VO + r, VO + 4 + r))
        tag4(d)
        a("global_store_dwordx4 v37, v[%d:%d], s[%d:%d] sc1" % (d, d + 3, sp, sp + 1))
    a("s_mov_b32 s36, %d" % T0["vbig"])
    a("L_v:")
    a("s_and_b32 s37, s36, %d" % (NSLOT - 1)); a("s_lshl_b32 s37, s37, 13")
    a("v_add_u32 v38, s37, v28"); a("v_add_u32 v39, s37, v29")
    wait_word(sL, "v6", "v8", "s36", sleep=psleep)
    a("ds_read_b128 v[%d:%d], v33" % (VF + 8, VF + 11))
    a("ds_read_b64_tr_b16 v[%d:%d], v38" % (VF, VF + 1)); a("ds_read_b64_tr_b16 v[%d:%d], v38 offset:4096" % (VF + 2, VF + 3))
    a("ds_read_b64_tr_b16 v[%d:%d], v39" % (VF + 4, VF + 5)); a("ds_read_b64_tr_b16 v[%d:%d], v39 offset:4096" % (VF + 6, VF + 7))
    a("v_add_u32 v33, 512, v33")
    a("s_add_u32 s36, s36, 1")
    a("v_mov_b32 v8, s36")
    a("s_waitcnt lgkmcnt(2)")
    a("v_mfma_f32_16x16x32_bf16 v[%d:%d], v[%d:%d], v[%d:%d], v[%d:%d]" % (VO, VO + 3, VF, VF + 3, VF + 8, VF + 11, VO, VO + 3))
    a("s_waitcnt lgkmcnt(0)")
    a("v_mfma_f32_16x16x32_bf16 v[%d:%d], v[%d:%d], v[%d:%d], v[%d:%d]" % (VO + 4, VO + 7, VF + 4, VF + 7, VF + 8, VF + 11, VO + 4, VO + 7))
    def rdv(base):
        a("ds_read_b64_tr_b16 v[%d:%d], v38" % (base, base + 1)); a("ds_read_b64_tr_b16 v[%d:%d], v38 offset:4096" % (base + 2, base + 3))
        a("ds_read_b64_tr_b16 v[%d:%d], v39" % (base + 4, base + 5)); a("ds_read_b64_tr_b16 v[%d:%d], v39 offset:4096" % (base + 6, base + 7))
    recheck(rdv, 8, 2)
    a("ds_write_b32 v4, v8")
    a("s_cmp_eq_u32 s36, s61")
    a("s_cbranch_scc1 L_vmid")
    a("s_cmp_lt_u32 s36, %d" % VEND)
    a("s_cbranch_scc1 L_v")
    a("s_nop 2")
    ostore(42, VO + 8)
    stamp(8)
    def h1loads():
        for i in range(2):
            a("global_load_dwordx4 v[%d:%d], v48, s[48:49] offset:%d sc1" % (VR + 4 * i, VR + 4 * i + 3, 1024 * i))
    if h1pre:
        a("s_mov_b64 exec, s[58:59]"); h1loads(); a("s_mov_b64 exec, -1")
    if not wo_early: wo_reads("woE", lambda t: VW + 4 * t)
    wo_reads("woL", lambda t: VW + 4 * t + 2)
    wait_word(sHS, "v7", "v8", "1")
    a("ds_read_b32 v53, v52"); a("ds_read_b32 v54, v52 offset:32")
    stamp(9)
    poll_valid(h1loads, tagcheck(VR, 8, VH, 8), sleep=h1sleep, first=not h1pre, mask0="s[58:59]")
    stamp(10)
    a("s_waitcnt lgkmcnt(0)")
    for r in range(4): a("v_mul_f32 v%d, v%d, v53" % (VH + r, VH + r))
    for r in range(4): a("v_fmac_f32 v%d, v%d, v54" % (VH + r, VH + 4 + r))
    bfly4("v_add_f32", VH, VH + 4, [3, 4, 5])
    a("s_mov_b64 exec, 0xff")
    a("ds_write_b128 v50, v[%d:%d]" % (VH, VH + 3))
    a("s_mov_b64 exec, -1")
    a("s_waitcnt lgkmcnt(0)")
    a("s_barrier")
    for k, off in enumerate((0, 64, 128, 192)):
        a("ds_read_b128 v[%d:%d], v51 offset:%d" % (VH + 4 * k, VH + 4 * k + 3, off))
    a("s_waitcnt lgkmcnt(0)")
    for r in range(8): a("v_add_f32 v%d, v%d, v%d" % (VH + r, VH + r, VH + 8 + r))
    for r in range(4): a("v_cvt_pk_bf16_f32 v%d, v%d, v%d" % (VH + 16 + r, VH + 2 * r, VH + 2 * r + 1))
    VB = 160
    def cnd(t):
        for r in range(4): a("v_cndmask_b32 v%d, 0, v%d, s[%d:%d]" % (VB + 4 * t + r, VH + 16 + r, 64 + 2 * t, 65 + 2 * t))
    def mm(t):
        for ch in range(2):
            w = VW + 4 * (8 * ch + t); d = VO + 4 * ch
            c = "0" if t == 0 else "v[%d:%d]" % (d, d + 3)
            a("v_mfma_f32_16x16x32_bf16 v[%d:%d], v[%d:%d], v[%d:%d], %s" % (d, d + 3, w, w + 3, VB + 4 * t, VB + 4 * t + 3, c))
    if ilv:
        cnd(0)
        for t in range(8):
            if t < 7: cnd(t + 1)
            mm(t)
    else:
        for t in range(8): cnd(t)
        for t in range(8): mm(t)
    a("s_nop 6")
    tag4(VO)
    a("global_store_dwordx4 v49, v[%d:%d], s[50:51] sc1" % (VO, VO + 3))
    tag4(VO + 4)
    a("global_store_dwordx4 v49, v[%d:%d], s[52:53] sc1" % (VO + 4, VO + 7))
    stamp(11)
    a("s_cmp_ge_u32 s2, 128")
    a("s_cbranch_scc1 L_fin")
    def h2loads():
        for i in range(4):
            a("global_load_dwordx4 v[%d:%d], v48, s[54:55] offset:%d sc1" % (VR + 4 * i, VR + 4 * i + 3, 1024 * i))
    if ackw: a("s_waitcnt vmcnt(0)")
    poll_valid(h2loads, tagcheck(VR, 16, VH, 8), sleep=h2sleep)
    stamp(12)
    for r in range(8): a("v_add_f32 v%d, v%d, v%d" % (VH + r, VH + r, VH + 8 + r))
    for r in range(4): a("v_add_f32 v%d, v%d, v%d" % (VH + r, VH + r, VH + 4 + r))
    bfly4("v_add_f32", VH, VH + 4, [3, 4, 5])
    a("s_mov_b64 exec, 0xff")
    a("ds_write_b128 v50, v[%d:%d] offset:%d" % (VH, VH + 3, L_RX - L_OX))
    a("s_waitcnt lgkmcnt(0)")
    a("s_barrier")
    a("s_cmp_lg_u32 s32, 0")
    a("s_cbranch_scc1 L_fin")
    for k in range(4):
        a("ds_read_b128 v[%d:%d], v50 offset:%d" % (VH + 4 * k, VH + 4 * k + 3, L_RX - L_OX + 128 * k))
    a("s_waitcnt lgkmcnt(0)")
    for r in range(8): a("v_add_f32 v%d, v%d, v%d" % (VH + r, VH + r, VH + 8 + r))
    for r in range(4): a("v_add_f32 v%d, v%d, v%d" % (VH + r, VH + r, VH + 4 + r))
    a("v_cvt_pk_bf16_f32 v%d, v%d, v%d" % (VH + 4, VH, VH + 1)); a("v_cvt_pk_bf16_f32 v%d, v%d, v%d" % (VH + 5, VH + 2, VH + 3))
    a("global_store_dwordx2 v55, v[%d:%d], s[56:57]" % (VH + 4, VH + 5))
    a("L_fin:")
    if dur:
        a("s_cmp_lg_u32 s32, 0"); a("s_cbranch_scc1 L_dur1")
        a("s_cmp_ge_u32 s2, 8"); a("s_cbranch_scc1 L_dur1")
        a("s_memrealtime s[96:97]"); a("s_waitcnt lgkmcnt(0)")
        a("s_mov_b64 exec, 1")
        a("v_sub_u32 v4, s96, v60"); a("s_lshl_b32 s96, s2, 3"); a("v_mov_b32 v2, s96")
        a("v_sub_u32 v5, s95, v60")
        a("global_store_dwordx2 v2, v[4:5], s[26:27]")
        a("s_waitcnt vmcnt(0)")
        a("L_dur1:")
    stamp(13)
    diag_end(2)
    stamp_flush()
    a("L_end:")
    a("s_endpgm")
    a("L_vmid:")
    a("s_nop 4")
    ostore(44, 196)
    for r in range(8): a("v_mov_b32 v%d, 0" % (VO + r))
    stamp(7)
    a("s_branch L_v")
    gen.sites = sites
    nv = 256 if (stamps or wo_early == 2 or dchk) else 216
    return (header(["grid=(256,1,1) block=(384,1,1) lds=%d" % LDS_BYTES]) + kernel_open(KNAME) + a.text()
            + RODATA + descriptor(KNAME, nv, 100, nv))

if __name__ == "__main__":
    open(sys.argv[1], "w").write(gen(**eval("dict(%s)" % (sys.argv[2] if len(sys.argv) > 2 else ""))))
```

```python
import sys, math, struct
from asmlib import *

NSLOT = 16
PBASE = NSLOT * 8192
QBASE = PBASE
XBASE = PBASE + 8192
SY = PBASE + 36 * 512
L_LANDED = SY
L_FREE = SY + 256
L_STAGE = SY + 1280
L_HST = SY + 2304
L_ZERO = SY + 2560
L_MX = SY + 3072
L_LW = SY + 3328
L_F = SY + 3584
L_OB = SY + 4096
L_RX = SY + 4608
L_NON = SY + 5120
L_LVL = SY + 5632
LDS_BYTES = SY + 5888
W_QP = 0x000000
W_ML = 0x020000
W_IN1 = 0x100000
W_IN2 = 0x300000
STAMP_OFF = 0x10000000
CSCALE = math.log2(math.e) / math.sqrt(128.0)
def f2u(x): return struct.unpack("<I", struct.pack("<f", x))[0]

def gen(win=21, win0=24, winT=32, tailT=8, stamps=False, budget=1 << 27, qsleep=2, dbg='', ml_at=16, qg_at=13, burst=3,
        levels=(20, 21, 24, 27), thr=(5, 11, 14), once=8, nsamp=16, diag=0, nz_at=1, tag_at=5, vst=0, ackw=1, warm=1, warm_at=40, h1sleep=0, uni=0, touch=0, touch_at=2, winS=0, allearly=0, back=None, h1pre=0, h1ack=0, h1at=0, hmap=1, operm=0, qperm=0, align=0):
    dbg = dbg.split()
    levels = list(levels) if levels else None
    a = Asm()
    uid = [0]
    def lab(p):
        uid[0] += 1
        return "L_%s_%d" % (p, uid[0])
    segs = [("wq", 8), ("kbig", 32), ("ksm", 4), ("woE", 4)] + ([("woL", 4)] if allearly else []) + ([("vsm", 4), ("vbig", 32)] if uni else [("vbig", 32), ("vsm", 4)]) + ([] if allearly else [("woL", 4)])
    T0 = {}; t = 0
    for n, c in segs:
        T0[n] = t; t += c
    NT = t
    VBEG = min(T0["vsm"], T0["vbig"]); VEND = VBEG + 36; VMID = max(T0["vsm"], T0["vbig"])
    assert (T0["woE"] % NSLOT) <= NSLOT - 4 and (T0["woL"] % NSLOT) <= NSLOT - 4
    sB = "s31"
    VST = 250
    VT = 56

    def c(text): a("; " + text)
    def role():
        a("s_lshr_b32 s93, s2, 5")
        if uni: a("s_mov_b32 s92, 1")
        else: a("s_and_b32 s92, s2, 7"); a("s_cmp_eq_u32 s92, s93"); a("s_cselect_b32 s92, 1, 0")
    def offsets():
        c("big part: block s of the branch-A keys, or block s>>3 of the window; small part: 128 keys of the blocks the window carriers left")
        if hmap:
            a("s_and_b32 s59, s2, 31")
            a("s_add_u32 s57, s59, 7"); a("s_sub_u32 s57, s57, s93"); a("s_lshr_b32 s57, s57, 3"); a("s_sub_u32 s57, s59, s57")
            a("s_and_b32 s55, s93, 3"); a("s_lshl_b32 s55, s55, 3"); a("s_and_b32 s58, s93, 4"); a("s_add_u32 s55, s55, s58")
            a("s_cmp_ge_i32 s57, s55"); a("s_cselect_b32 s58, 4, 0"); a("s_add_u32 s57, s57, s58")
            a("s_lshl_b32 s57, s57, 18"); a("s_lshl_b32 s58, s93, 23"); a("s_add_u32 s57, s57, s58")
            a("s_lshl_b32 s55, s55, 18"); a("s_add_u32 s55, s55, s58"); a("s_lshl_b32 s54, s59, 15"); a("s_add_u32 s55, s55, s54")
            a("s_lshr_b32 s54, s59, 3"); a("s_lshl_b32 s54, s54, 18"); a("s_add_u32 s54, s54, s58")
            a("s_add_u32 s54, s54, %d" % ((32768 - 4096) * 256))
        else:
            a("s_lshl_b32 s57, s2, 18")
            a("s_lshl_b32 s58, s93, 23"); a("s_bfe_u32 s59, s2, 0x20003"); a("s_lshl_b32 s55, s59, 18"); a("s_add_u32 s54, s58, s55")
            a("s_add_u32 s54, s54, %d" % ((32768 - 4096) * 256))
            a("s_lshl_b32 s55, s55, 3"); a("s_add_u32 s55, s55, s58"); a("s_lshl_b32 s58, s93, 18"); a("s_add_u32 s55, s55, s58")
            a("s_and_b32 s58, s2, 7"); a("s_lshl_b32 s58, s58, 15"); a("s_add_u32 s55, s55, s58")
        a("s_cmp_eq_u32 s92, 1")
        a("s_cselect_b32 s48, s16, s6"); a("s_cselect_b32 s49, s17, s7")
        a("s_cselect_b32 s50, s18, s8"); a("s_cselect_b32 s51, s19, s9")
        a("s_cselect_b32 s54, s54, s57")
        if uni:
            a("s_lshl_b32 s54, s2, 18")
            a("s_lshl_b32 s55, s93, 23"); a("s_and_b32 s58, s2, 31"); a("s_lshl_b32 s58, s58, 15"); a("s_add_u32 s55, s55, s58")
            a("s_add_u32 s55, s55, %d" % ((32768 - 4096) * 256))
            a("s_mov_b64 s[48:49], s[6:7]"); a("s_mov_b64 s[50:51], s[8:9]")
    def qrole():
        if qperm:
            a("s_and_b32 s3, s2, 0x81"); a("s_bfe_u32 s88, s2, 0x20001"); a("s_lshl_b32 s88, s88, 5"); a("s_or_b32 s3, s3, s88")
            a("s_bfe_u32 s88, s2, 0x40003"); a("s_lshl_b32 s88, s88, 1"); a("s_or_b32 s3, s3, s88")
        else: a("s_mov_b32 s3, s2")
    def orole():
        if operm:
            a("s_lshr_b32 s88, s2, 3"); a("s_add_u32 s89, s88, s2"); a("s_and_b32 s89, s89, 7"); a("s_lshl_b32 s89, s89, 1")
            a("s_and_b32 s88, s88, 1"); a("s_or_b32 s89, s89, s88"); a("s_and_b32 s88, s2, 0xf0"); a("s_or_b32 s89, s89, s88")
        else: a("s_mov_b32 s89, s2")
    def stamp(k):
        if stamps:
            a("s_memrealtime s[96:97]"); a("s_waitcnt lgkmcnt(0)"); a("v_writelane_b32 v%d, s96, %d" % (VST, k))
    def stamp_flush():
        if stamps:
            a("s_mov_b64 exec, -1")
            a("s_getreg_b32 s96, hwreg(HW_REG_XCC_ID)")
            a("v_writelane_b32 v%d, s96, 63" % VST)
            a("s_mul_i32 s96, s2, 6"); a("s_add_u32 s96, s96, s30"); a("s_lshl_b32 s96, s96, 8")
            a("v_lshl_add_u32 v251, v0, 2, s96")
            a("s_add_u32 s98, s28, 0x%x" % STAMP_OFF); a("s_addc_u32 s99, s29, 0")
            a("global_store_dword v251, v%d, s[98:99]" % VST)
            a("s_waitcnt vmcnt(0)")
    site = [0]
    def diag_end(r):
        if diag:
            sk = lab("dg")
            a("s_cmp_eq_u32 s94, 0"); a("s_cbranch_scc1 " + sk)
            a("s_mov_b64 exec, 1")
            a("s_lshl_b32 s95, s2, 8"); a("s_or_b32 s95, s95, s94")
            a("v_mov_b32 v1, s95"); a("v_mov_b32 v2, 0"); a("v_mov_b32 v3, 1")
            a("global_store_dword v2, v1, s[26:27] offset:%d sc1" % (4 * r))
            a("global_atomic_add v2, v3, s[26:27] offset:%d sc1" % (4 * (4 + r)))
            a("s_waitcnt vmcnt(0)")
            a(sk + ":")
    def budget_loop(label, cost=1):
        a("s_sub_u32 %s, %s, %d" % (sB, sB, cost))
        a("s_cbranch_scc0 %s" % label)
        a("s_mov_b32 %s, 0" % sB)
        if diag:
            site[0] += 1
            a("s_cmp_eq_u32 s94, 0"); a("s_cselect_b32 s94, %d, s94" % site[0])
    def wait_word(scache, vaddr, vtmp, thr_, sleep=0):
        lp = lab("pw"); ok = lab("ok")
        a(lp + ":")
        a("s_cmp_gt_u32 %s, %s" % (scache, thr_))
        a("s_cbranch_scc1 " + ok)
        if sleep: a("s_sleep %d" % sleep)
        a("ds_read_b32 %s, %s" % (vtmp, vaddr))
        a("s_waitcnt lgkmcnt(0)")
        a("v_readfirstlane_b32 %s, %s" % (scache, vtmp))
        budget_loop(lp, 1 + sleep // 2)
        a(ok + ":")
    def wait_min4(scache, vaddr, vt, thr_, sleep=0, cmp="s_cmp_gt_u32"):
        lp = lab("pm"); ok = lab("ok")
        a(lp + ":")
        a("%s %s, %s" % (cmp, scache, thr_))
        a("s_cbranch_scc1 " + ok)
        if sleep: a("s_sleep %d" % sleep)
        a("ds_read_b128 v[%d:%d], %s" % (vt, vt + 3, vaddr))
        a("s_waitcnt lgkmcnt(0)")
        a("v_min3_u32 v%d, v%d, v%d, v%d" % (vt, vt, vt + 1, vt + 2))
        a("v_min_u32 v%d, v%d, v%d" % (vt, vt, vt + 3))
        a("s_nop 0")
        a("v_readfirstlane_b32 %s, v%d" % (scache, vt))
        budget_loop(lp, 1 + sleep // 2)
        a(ok + ":")
    def poll_valid(loads, check, sleep=0, first=True, mask0=None, back=None):
        if first:
            if mask0: a("s_mov_b64 exec, %s" % mask0)
            loads()
        lp = lab("pv"); ok = lab("ok"); out = lab("out")
        a(lp + ":")
        a("s_mov_b64 exec, -1")
        a("s_waitcnt vmcnt(0)")
        check()
        a("s_cmp_eq_u64 vcc, 0")
        a("s_cbranch_scc1 " + ok)
        a("s_mov_b64 exec, vcc")
        if back:
            sk = lab("bk")
            a("s_bcnt1_i32_b64 s70, vcc"); a("s_cmp_lt_u32 s70, %d" % back[0]); a("s_cbranch_scc1 " + sk)
            a("s_sleep %d" % back[1])
            a(sk + ":")
        if sleep: a("s_sleep %d" % sleep)
        loads()
        budget_loop(lp, 64)
        a("s_mov_b64 exec, -1")
        a("s_waitcnt vmcnt(0)")
        a(ok + ":")
    def tagcheck(base, n, dst, vtmp):
        def f():
            for i in range(n): a("v_xor_b32 v%d, v%d, v%d" % (dst + i, base + i, VT + (i & 3)))
            h = n // 2
            ch = [list(range(dst + k * h, dst + (k + 1) * h)) for k in range(2)]
            for k in range(2):
                a("v_or3_b32 v%d, v%d, v%d, v%d" % (vtmp + k, ch[k][0], ch[k][1], ch[k][2])); ch[k] = ch[k][3:]
            while len(ch[0]) >= 2:
                for k in range(2):
                    a("v_or3_b32 v%d, v%d, v%d, v%d" % (vtmp + k, vtmp + k, ch[k][0], ch[k][1])); ch[k] = ch[k][2:]
            a("v_or3_b32 v%d, v%d, v%d, v%d" % (vtmp, vtmp, ch[0][0], ch[1][0]))
            a("v_bitop3_b32 v%d, v%d, v%d, s60 bitop3:0xa8" % (vtmp, vtmp, vtmp + 1))
            a("v_cmp_ne_u32 vcc, 0, v%d" % vtmp)
        return f
    def tag4(d):
        for r in range(4): a("v_bfi_b32 v%d, s60, v%d, v%d" % (d + r, VT + r, d + r))
    def make_tags():
        a("s_mov_b32 s60, 0x9e3779b1"); a("v_mul_lo_u32 v62, v60, s60")
        a("s_mov_b32 s60, 0x85ebca6b"); a("v_xor_b32 v63, v61, v62"); a("v_mul_lo_u32 v63, v63, s60")
        a("s_movk_i32 s60, 0x7ff")
        a("v_and_b32 v56, s60, v62")
        a("v_bfe_u32 v57, v62, 11, 10"); a("v_lshlrev_b32 v57, 1, v57")
        a("v_and_b32 v58, 1, v62"); a("v_xor_b32 v58, 1, v58"); a("v_or_b32 v57, v57, v58")
        a("v_lshrrev_b32 v58, 21, v62"); a("v_lshrrev_b32 v59, 21, v63")
    def bfly(op, v, vt, bits):
        for b in bits:
            if b <= 3:
                a("s_nop 1")
                a("%s_dpp v%d, v%d, v%d row_ror:%d row_mask:0xf bank_mask:0xf" % (op, v, v, v, 1 << b))
            else:
                a("v_mov_b32 v%d, v%d" % (vt, v))
                a("s_nop 1")
                a("v_permlane%d_swap_b32 v%d, v%d" % (1 << b, v, vt))
                a("%s v%d, v%d, v%d" % (op, v, v, vt))
    def fold4(v):
        a("v_permlane32_swap_b32 v%d, v%d" % (v, v + 1)); a("v_permlane32_swap_b32 v%d, v%d" % (v + 2, v + 3))
        a("v_add_f32 v%d, v%d, v%d" % (v, v, v + 1)); a("v_add_f32 v%d, v%d, v%d" % (v + 2, v + 2, v + 3))
        a("s_nop 1")
        a("v_permlane16_swap_b32 v%d, v%d" % (v, v + 2))
        a("v_add_f32 v%d, v%d, v%d" % (v, v, v + 2))
        a("s_nop 1")
        a("v_add_f32_dpp v%d, v%d, v%d row_ror:8 row_mask:0xf bank_mask:0xf" % (v, v, v))
    gl = lambda d, off: (a("s_add_u32 s%d, s28, %s" % (d, off)), a("s_addc_u32 s%d, s29, 0" % (d + 1)))

    a("s_cmp_ge_u32 s2, 256")
    a("s_cbranch_scc1 L_end")
    a("s_load_dwordx16 s[4:19], s[0:1], 0")
    a("s_load_dwordx8 s[20:27], s[0:1], 64")
    a("s_load_dwordx2 s[28:29], s[0:1], 96")
    a("v_lshrrev_b32 v1, 6, v0")
    a("v_lshlrev_b32 v3, 3, v0")
    a("v_mov_b32 v4, 0"); a("v_mov_b32 v5, 0")
    a("v_readfirstlane_b32 s30, v1")
    a("v_add_u32 v3, %d, v3" % SY)
    a("v_and_b32 v0, 63, v0")
    a("ds_write_b64 v3, v[4:5]")
    a("s_mov_b32 %s, %d" % (sB, budget))
    if diag: a("s_mov_b32 s94, 0")
    if stamps:
        a("v_mov_b32 v%d, 0" % VST); stamp(0)
    a("v_lshrrev_b32 v1, 4, v0")
    a("v_and_b32 v2, 15, v0")
    a("s_cmp_lg_u32 s30, 0")
    a("s_cbranch_scc1 L_notloader")

    c("---- wave 0: streams every weight / cache byte of this workgroup into the LDS ring")
    a("s_setprio 3")
    vA = list(range(4, 12))
    vK = [12, 13, 14, 15]; vV = [16, 17]; vW = [20, 21, 22, 23]
    a("v_lshrrev_b32 v20, 3, v0"); a("v_and_b32 v21, 7, v0"); a("v_and_b32 v22, 1, v1")
    a("v_lshlrev_b32 v20, 13, v20"); a("v_lshlrev_b32 v22, 1, v22")
    a("v_xor_b32 v21, v21, v22")
    a("v_lshl_add_u32 v4, v21, 4, v20")
    a("v_xor_b32 v5, 64, v4")
    qrole()
    a("s_and_b32 s57, s3, 1"); a("s_lshl_b32 s56, s57, 22"); a("s_lshl_b32 s57, s57, 10")
    a("s_bfe_u32 s58, s3, 0x60001"); a("s_lshl_b32 s58, s58, 7"); a("s_add_u32 s56, s56, s58")
    a("s_mov_b32 s34, 0x800000"); a("s_mov_b32 s35, 0x20000")
    a("s_movk_i32 s38, 0x1000"); a("s_mov_b32 s39, 0x20000")
    a("v_lshlrev_b32 v18, 4, v0"); a("s_mov_b32 m0, %d" % XBASE)
    a("s_mov_b32 s40, 0"); a("s_mov_b32 s41, 0")
    a("s_cmp_lt_u32 s2, 128")
    a("s_waitcnt lgkmcnt(0)")
    a("s_cselect_b32 s32, s10, s20"); a("s_cselect_b32 s33, s11, s21")
    a("s_cselect_b32 s36, s4, s14"); a("s_cselect_b32 s37, s5, s15")
    a("s_and_b32 s33, s33, 0xffff"); a("s_and_b32 s37, s37, 0xffff")
    stamp(21)
    a("buffer_load_dwordx4 v18, s[36:39], s57 offen lds")
    a("s_add_u32 s57, s57, 1024")
    a("buffer_load_dwordx4 v18, s[36:39], s57 offen offset:1024 lds")
    def signal(w, j):
        js = (w - 1) % 8 or 8
        if j == js:
            d = (w - 1 - js) // 8
            if d: a("s_sub_i32 s42, s40, %d" % d); a("s_max_i32 s42, s42, 0"); a("v_mov_b32 v25, s42")
            else: a("v_mov_b32 v25, s40")
            a("ds_write_b32 v24, v25")
    def wq_tile(w, waits=True):
        for i in range(8):
            if i % 4 == 0: a("s_add_u32 m0, s41, %d" % (i * 1024)); a("s_nop 0")
            a("buffer_load_dwordx4 v%d, s[32:35], s56 offen offset:%d nt lds" % (vA[i & 1], (i % 4) * 1024))
            a("s_add_u32 s56, s56, %d" % (64512 + (4096 if i % 4 == 3 else 0)))
            if waits:
                a("s_waitcnt vmcnt(%d)" % (w - 1)); signal(w, i + 1)
        a("s_add_u32 s40, s40, 1"); a("s_add_u32 s41, s41, 8192")
    assert win0 >= 8 * burst
    a("L_wq0:")
    wq_tile(win0, waits=False)
    a("s_cmp_lt_u32 s40, %d" % burst); a("s_cbranch_scc1 L_wq0")
    stamp(22)
    a("s_barrier")
    stamp(1)
    a("v_lshlrev_b32 v24, 2, v0"); a("v_add_u32 v24, %d, v24" % L_LANDED)
    for i in range(4):
        a("v_add_u32 v20, %d, v1" % (4 * i)); a("v_xor_b32 v20, v20, v2"); a("v_lshlrev_b32 v20, 4, v20")
        a("v_lshl_add_u32 v%d, v1, 8, v20" % vK[i])
    for i in range(2):
        a("v_add_u32 v20, %d, v1" % (4 * i)); a("v_lshlrev_b32 v20, 1, v20"); a("v_xor_b32 v20, v20, v2")
        a("v_lshlrev_b32 v20, 4, v20"); a("v_lshl_add_u32 v%d, v1, 8, v20" % vV[i])
    a("v_mov_b32 v26, %d" % L_FREE); a("v_mov_b32 v19, %d" % L_LVL)
    role()
    offsets()
    orole()
    a("s_bfe_u32 s59, s89, 0x60001"); a("s_lshl_b32 s59, s59, 17"); a("s_and_b32 s58, s89, 1"); a("s_lshl_b32 s58, s58, 10"); a("s_add_u32 s59, s59, s58")
    a("s_cmp_lt_u32 s2, 128")
    a("s_cselect_b32 s52, s12, s22"); a("s_cselect_b32 s53, s13, s23")
    a("s_mov_b32 s61, 0")
    a("L_wq1:")
    wq_tile(win0)
    a("s_cmp_lt_u32 s40, 8"); a("s_cbranch_scc1 L_wq1")
    def tile_loop(name, w):
        if align: a(".p2align %d" % align)
        a(name + ":")
        a("s_sub_i32 s42, s40, %d" % NSLOT)
        wait_min4("s61", "v26", 28, "s42", cmp="s_cmp_gt_i32")
        for h in range(2):
            if h == 0: a("s_mov_b32 m0, s41"); a("s_add_u32 s45, s56, s44")
            else: a("s_add_u32 m0, s41, 4096"); a("s_add_u32 s41, s41, 8192")
            for i in range(4):
                a("buffer_load_dwordx4 v%d, s[32:35], %s offen offset:%d nt lds" % (vA[4 * h + i], "s45" if h else "s56", i * 1024))
                if h == 1 and i == 0: a("s_and_b32 s41, s41, %d" % (NSLOT * 8192 - 1))
                if h == 1 and i == 1: a("s_add_u32 s56, s45, s44")
                a("s_waitcnt vmcnt(%d)" % (w - 1)); signal(w, 4 * h + i + 1)
        a("s_add_u32 s40, s40, 1")
        a("s_cmp_lt_u32 s40, s43")
        a("s_cbranch_scc1 " + name)
        a("s_setpc_b64 s[46:47]")
    def seg_setup(name):
        lo, sreg, base, size = {"kbig": (48, 54, 0, 64 << 20), "ksm": (16 if uni else 6, 55, 0, 64 << 20), "vbig": (50, 54, 0, 64 << 20), "vsm": (18 if uni else 8, 55, 0, 64 << 20),
                                "woE": (52, 59, 0, 8 << 20), "woL": (52, 59, 65536, 8 << 20)}[name]
        a("s_mov_b32 s32, s%d" % lo); a("s_and_b32 s33, s%d, 0xffff" % (lo + 1)); a("s_mov_b32 s34, 0x%x" % size)
        a("s_add_u32 s56, s%d, %d" % (sreg, base))
        if name in ("kbig", "vsm" if uni else "vbig", "woE", "woL"):
            for i in range(8):
                if name[0] == "w":
                    a("v_xor_b32 v%d, %d, v18" % (vA[i], 32 * i))
                    if i & 3: a("v_add_u32 v%d, %d, v%d" % (vA[i], 1024 * (i & 3), vA[i]))
                else: a("v_mov_b32 v%d, v%d" % (vA[i], vK[i & 3] if name[0] == "k" else vV[i & 1]))
            a("s_mov_b32 s44, %d" % (8192 if name[0] == "w" else 4096))
    stampat = {"kbig": 3, "ksm": 4, "vsm" if uni else "vbig": 5, "vbig" if uni else "vsm": 6}
    disp_at = T0["vbig"] + once
    cut = NT - tailT
    for name, cnt in segs[1:]:
        if name in stampat: stamp(stampat[name])
        seg_setup(name)
        end = T0[name] + cnt
        marks = sorted(set([end] + [m for m in [cut] + ([disp_at] if levels else []) +
                                    ([T0["vbig"] + 8 * q for q in range(1, 4)] if vst else []) if T0[name] < m < end]))
        lo = T0[name]
        for m in marks:
            if levels and lo == disp_at:
                a("ds_read_b32 v27, v19"); a("s_waitcnt lgkmcnt(0)"); a("v_readfirstlane_b32 s62, v27")
            tgt = "L_tileT" if lo >= cut else ("L_disp" if (levels and lo >= disp_at) else "L_tile")
            if winS and name in ("kbig", "vbig") and lo < cut: tgt = "L_spec_" + tgt
            a("s_mov_b32 s43, %d" % m); a("s_call_b64 s[46:47], %s" % tgt)
            if vst and name == "vbig" and (m - T0["vbig"]) in (8, 16, 24): stamp(8 + (m - T0["vbig"]) // 8)
            lo = m
        if name == ("vbig" if uni else "vsm"): stamp(7)
    done = (8 * NT - ((winT if tailT else max(levels or [win])) - 1)) // 8
    while done < NT:
        done += 1
        a("s_waitcnt vmcnt(%d)" % (8 * (NT - done)))
        a("v_mov_b32 v25, %d" % done); a("ds_write_b32 v24, v25")
    a("s_waitcnt lgkmcnt(0)")
    stamp(8)
    diag_end(0)
    stamp_flush()
    a("s_endpgm")
    if winS:
        for tgt in ["L_tile"] + (["L_disp"] if levels else []):
            a("L_spec_%s:" % tgt); a("s_cmp_eq_u32 s92, 0"); a("s_cbranch_scc1 " + tgt); a("s_branch L_tileS")
        tile_loop("L_tileS", winS)
    tile_loop("L_tile", win)
    if levels:
        a("L_disp:")
        for k, w in enumerate(levels):
            if w == win: a("s_cmp_eq_u32 s62, %d" % k); a("s_cbranch_scc1 L_tile")
        rest = [(k, w) for k, w in enumerate(levels) if w != win]
        for k, w in rest[1:]:
            a("s_cmp_eq_u32 s62, %d" % k); a("s_cbranch_scc1 L_disp_%d" % k)
        for k, w in rest: tile_loop("L_disp_%d" % k, w)
    if tailT: tile_loop("L_tileT", winT)

    a("L_notloader:")
    a("s_cmp_gt_u32 s30, 1")
    a("s_cbranch_scc1 L_cons")
    c("---- wave 1: launch nonce, softmax statistics exchange")
    a("v_lshlrev_b32 v24, 2, v0"); a("v_add_u32 v24, %d, v24" % L_HST)
    a("v_mov_b32 v10, 0")
    a("s_memrealtime s[90:91]")
    a("s_waitcnt lgkmcnt(0)")
    c("workgroup 0 publishes a value no other launch has used; it only tags this launch's hand-offs")
    a("s_cmp_lg_u32 s2, 0"); a("s_cbranch_scc1 L_nononce")
    a("s_or_b32 s90, s90, 1"); a("s_or_b32 s91, s91, 0x80000000")
    a("v_mov_b32 v60, s90"); a("v_mov_b32 v61, s91")
    a("s_mov_b64 exec, 1")
    a("global_store_dwordx2 v10, v[60:61], s[26:27] offset:128 sc1")
    a("s_mov_b64 exec, -1")
    a("L_nononce:")
    stamp(22)
    a("s_barrier")
    a("s_mov_b32 s41, 0"); a("v_mov_b32 v26, %d" % L_STAGE)
    a("s_mov_b32 s42, 0"); a("v_mov_b32 v27, %d" % L_LANDED)
    a("s_lshl_b32 s32, s2, 8"); a("s_add_u32 s32, s32, 0x%x" % W_ML); gl(38, "s32")
    orole()
    a("s_bfe_u32 s32, s89, 0x20005"); a("s_lshl_b32 s32, s32, 13")
    a("s_bfe_u32 s33, s89, 0x30002"); a("s_lshl_b32 s33, s33, 4"); a("s_add_u32 s32, s32, s33")
    a("s_lshr_b32 s33, s2, 7"); a("s_lshl_b32 s33, s33, 7"); a("s_add_u32 s32, s32, s33")
    a("s_add_u32 s32, s32, 0x%x" % W_ML); gl(34, "s32")
    a("v_lshrrev_b32 v12, 5, v0"); a("v_lshlrev_b32 v12, 15, v12")
    a("v_and_b32 v16, 31, v0"); a("v_lshl_add_u32 v12, v16, 8, v12")
    a("v_and_b32 v13, 7, v0"); a("v_lshlrev_b32 v13, 2, v13"); a("v_add_u32 v13, %d, v13" % L_MX)
    a("v_lshlrev_b32 v11, 4, v2")
    role()
    a("s_bfe_u32 s32, s89, 0x20005")
    a("s_lshl_b32 s44, 0x01010101, s32"); a("s_lshl_b32 s45, s44, 4")
    a("s_cmp_lt_u32 s2, %d" % (256 if uni else 128)); a("s_cselect_b64 s[44:45], -1, s[44:45]")
    a("s_cmp_eq_u32 s92, 1")
    a("s_cselect_b32 s48, 0x%x, 0" % (0xff00 if uni else 0xff)); a("s_mov_b32 s49, 0")
    a("s_cselect_b32 s50, 0x%x, 0" % (0xff if uni else 0xff00)); a("s_mov_b32 s51, 0")
    a("s_or_b32 s46, s50, s48"); a("s_or_b32 s46, s46, 0xff"); a("s_mov_b32 s47, 0")
    if nz_at: wait_word("s42", "v27", "v28", str(nz_at - 1), sleep=2)
    def nzcheck():
        a("v_min_u32 v18, v60, v61"); a("v_cmp_eq_u32 vcc, 0, v18")
    poll_valid(lambda: a("global_load_dwordx2 v[60:61], v10, s[26:27] offset:128 sc1"), nzcheck, sleep=4)
    a("v_lshlrev_b32 v18, 3, v0"); a("v_add_u32 v18, %d, v18" % L_NON)
    a("ds_write_b64 v18, v[60:61]")
    a("v_mov_b32 v25, 1"); a("ds_write_b32 v24, v25")
    stamp(2)
    make_tags()
    a("v_mov_b32 v14, 0xff800000"); a("v_mov_b32 v15, 0"); a("v_mov_b32 v16, v62"); a("v_mov_b32 v17, v63")
    if levels:
        offs = [(9 + 33 * k + (16 if k >= 8 else 0)) & 255 for k in range(nsamp)]
        for k, d in enumerate(offs):
            a("s_add_u32 s%d, s2, %d" % (64 + k, d)); a("s_and_b32 s%d, s%d, 255" % (64 + k, 64 + k)); a("s_lshl_b32 s%d, s%d, 8" % (64 + k, 64 + k))
        gl(52, "0x%x" % (W_ML + 8))
        a("v_readfirstlane_b32 s54, v62")
        a("v_mov_b32 v25, %d" % levels.index(win)); a("ds_write_b32 v24, v25 offset:%d" % (L_LVL - L_HST))
    if touch:
        c("touch the address translations of the two big segments ahead of the stream")
        a("s_mov_b64 s[84:85], s[48:49]"); a("s_mov_b64 s[86:87], s[50:51]"); a("s_mov_b32 s88, s54")
        offsets()
        a("v_lshlrev_b32 v30, %d, v0" % touch); a("v_add_u32 v30, s54, v30")
        a("s_mov_b64 exec, 0x%x" % ((1 << min(32, 1 << (18 - touch))) - 1) if touch > 12 else "s_mov_b64 exec, -1")
        if touch == 13: a("s_mov_b32 exec_hi, 0")
        a("global_load_dword v31, v30, s[48:49] nt")
        wait_word("s42", "v27", "v28", str(T0["kbig"] + 16), sleep=8)
        a("global_load_dword v32, v30, s[50:51] nt")
        a("s_mov_b64 exec, -1")
        a("s_mov_b64 s[48:49], s[84:85]"); a("s_mov_b64 s[50:51], s[86:87]"); a("s_mov_b32 s54, s88")
    if warm:
        c("prefetch the lines of the last hand-offs into the memory-side cache (values unused)")
        if warm_at: wait_word("s42", "v27", "v28", str(warm_at), sleep=8)
        a("v_lshlrev_b32 v30, 7, v0")
        if warm & 1:
            sh = 12 if warm & 4 else 11
            a("s_lshl_b32 s32, s2, %d" % sh); a("s_add_u32 s32, s32, 0x%x" % W_IN2); gl(56, "s32")
            a("s_mov_b32 exec_lo, 0x%x" % (0xffffffff if warm & 4 else 0xffff)); a("s_mov_b32 exec_hi, 0")
            a("global_load_dword v31, v30, s[56:57]")
        if warm & 2:
            a("s_lshl_b32 s32, s2, 12"); a("s_add_u32 s32, s32, 0x%x" % W_IN1); gl(56, "s32")
            a("s_mov_b32 exec_lo, -1"); a("s_mov_b32 exec_hi, 0")
            a("global_load_dword v32, v30, s[56:57]")
        a("s_mov_b64 exec, -1")
    wait_min4("s41", "v26", 28, "2", sleep=8)
    for w in range(4):
        a("ds_read_b32 v%d, v13 offset:%d" % (32 + w, 64 * w))
        a("ds_read_b32 v%d, v13 offset:%d" % (36 + w, 64 * w + 32))
        a("ds_read_b32 v%d, v13 offset:%d" % (40 + w, L_LW - L_MX + 64 * w))
        a("ds_read_b32 v%d, v13 offset:%d" % (44 + w, L_LW - L_MX + 64 * w + 32))
    a("s_waitcnt lgkmcnt(0)")
    a("v_max3_f32 v32, v32, v33, v34"); a("v_max_f32 v32, v32, v35")
    a("v_max3_f32 v36, v36, v37, v38"); a("v_max_f32 v36, v36, v39")
    a("v_add_f32 v40, v40, v41"); a("v_add_f32 v42, v42, v43"); a("v_add_f32 v40, v40, v42")
    a("v_add_f32 v44, v44, v45"); a("v_add_f32 v46, v46, v47"); a("v_add_f32 v44, v44, v46")
    a("v_max_f32 v60, v32, v36"); a("v_add_f32 v61, v40, v44")
    a("v_cndmask_b32 v60, v60, v36, s[48:49]"); a("v_cndmask_b32 v61, v61, v44, s[48:49]")
    a("v_cndmask_b32 v60, v60, v32, s[50:51]"); a("v_cndmask_b32 v61, v61, v40, s[50:51]")
    a("s_mov_b64 exec, s[46:47]")
    a("global_store_dwordx4 v11, v[60:63], s[38:39] sc1")
    a("s_mov_b64 exec, -1")
    if levels:
        c("how many sampled workgroups have already published? late ones deepen their prefetch window (speed only)")
        for k in range(nsamp): a("s_load_dword s%d, s[52:53], s%d" % (4 + k, 64 + k))
        a("s_mov_b32 s55, 0")
        a("s_waitcnt lgkmcnt(0)")
        for k in range(nsamp):
            a("s_cmp_eq_u32 s%d, s54" % (4 + k)); a("s_addc_u32 s55, s55, 0")
        a("s_mov_b32 s56, 0")
        for tv in thr:
            a("s_cmp_ge_u32 s55, %d" % tv); a("s_addc_u32 s56, s56, 0")
        a("v_mov_b32 v25, s56"); a("ds_write_b32 v24, v25 offset:%d" % (L_LVL - L_HST))
    stamp(4)
    wait_word("s42", "v27", "v28", str(T0["vbig"] + ml_at), sleep=8)
    def mlcheck():
        a("v_xor_b32 v18, v16, v62"); a("v_bitop3_b32 v18, v17, v63, v18 bitop3:0xbe")
        a("v_cmp_ne_u32 vcc, 0, v18")
    poll_valid(lambda: a("global_load_dwordx4 v[14:17], v12, s[34:35] sc1"), mlcheck, sleep=8, mask0="s[44:45]")
    a("v_lshlrev_b32 v13, 2, v0"); a("v_add_u32 v13, %d, v13" % L_F)
    a("v_mov_b32 v17, v14")
    bfly("v_max_f32", 17, 18, [0, 1, 2, 3, 4])
    a("v_sub_f32 v14, v14, v17"); a("v_exp_f32 v14, v14"); a("s_nop 0")
    a("v_mul_f32 v15, v15, v14")
    bfly("v_add_f32", 15, 18, [0, 1, 2, 3, 4])
    a("v_rcp_f32 v15, v15"); a("s_nop 0"); a("v_mul_f32 v14, v14, v15")
    a("ds_write_b32 v13, v14")
    a("v_mov_b32 v25, 2"); a("ds_write_b32 v24, v25")
    a("s_waitcnt lgkmcnt(0)")
    stamp(5)
    diag_end(1)
    stamp_flush()
    a("s_endpgm")

    a("L_cons:")
    c("---- waves 2..5: q projection, QK^T, softmax, PV, output projection")
    a("s_waitcnt lgkmcnt(0)")
    stamp(22)
    a("s_barrier")
    sL = "s33"; sHS = "s34"; sST = "s35"
    a("s_sub_u32 s32, s30, 2")
    a("s_mov_b32 s33, 0"); a("s_mov_b32 s34, 0"); a("s_mov_b32 s35, 0")
    a("s_lshl_b32 s38, s32, 2")
    a("v_lshl_add_u32 v4, v0, 4, s38")
    a("v_add_u32 v5, %d, v4" % L_STAGE); a("v_add_u32 v4, %d, v4" % L_FREE)
    a("v_mov_b32 v6, %d" % L_LANDED); a("v_mov_b32 v7, %d" % L_HST); a("v_mov_b32 v12, %d" % L_STAGE)
    a("v_bfe_u32 v13, v0, 2, 2"); a("v_and_b32 v14, 3, v0")
    VX = 64
    a("v_and_b32 v15, 1, v0"); a("v_lshlrev_b32 v15, 10, v15"); a("v_lshl_add_u32 v15, v1, 4, v15")
    a("v_add_u32 v15, %d, v15" % XBASE)
    def set_free(val):
        a("v_mov_b32 v8, %s" % val); a("ds_write_b32 v4, v8")
    def set_stage(val):
        a("v_mov_b32 v8, %d" % val); a("ds_write_b32 v5, v8")
    a("v_lshl_add_u32 v16, v1, 3, v13"); a("v_lshlrev_b32 v16, 7, v16")
    a("v_lshrrev_b32 v17, 1, v13"); a("v_and_b32 v18, 1, v1"); a("v_lshl_or_b32 v17, v18, 1, v17")
    a("v_lshlrev_b32 v17, 1, v17")
    a("v_lshrrev_b32 v18, 1, v14"); a("s_lshl_b32 s38, s32, 1"); a("v_add_u32 v18, s38, v18")
    a("v_xor_b32 v17, v17, v18"); a("v_lshl_add_u32 v16, v17, 4, v16")
    a("v_and_b32 v18, 1, v14"); a("v_lshl_add_u32 v16, v18, 3, v16")
    a("s_lshr_b32 s38, s2, 7"); a("s_lshl_b32 s38, s38, 16")
    qrole()
    a("s_and_b32 s39, s3, 1"); a("s_lshl_b32 s39, s39, 14"); a("s_add_u32 s38, s38, s39")
    a("s_bfe_u32 s39, s3, 0x60001"); a("s_lshl_b32 s39, s39, 8"); a("s_add_u32 s38, s38, s39")
    a("s_lshl_b32 s39, s32, 6"); a("s_add_u32 s38, s38, s39")
    gl(40, "s38")
    a("v_and_b32 v34, 1, v0"); a("v_lshlrev_b32 v34, 15, v34"); a("v_lshl_add_u32 v34, v1, 4, v34")
    stamp(21)
    VF = 128
    VS = 160
    VQA = 200
    VO = 204
    VW = 64
    VQ = 64
    vKa = list(range(20, 28)); vWOa = list(range(40, 48))
    def later_setup(u):
        if u == 1:
            a("v_lshrrev_b32 v17, 1, v1"); a("v_lshl_add_u32 v17, v17, 4, v2"); a("v_lshlrev_b32 v17, 8, v17")
            a("s_lshl_b32 s38, s32, 13"); a("v_add_u32 v17, s38, v17")
            a("v_and_b32 v18, 1, v1"); a("v_xor_b32 v18, v18, v2"); a("v_lshl_add_u32 v20, v18, 4, v17")
            for s in range(1, 8): a("v_xor_b32 v%d, %d, v20" % (vKa[s], 32 * s))
        if u == 2:
            a("v_lshl_add_u32 v17, v1, 2, v13")
            a("v_and_b32 v18, 7, v17"); a("v_lshlrev_b32 v18, 1, v18")
            a("v_lshrrev_b32 v19, 1, v14")
            a("v_xor_b32 v30, v18, v19")
            a("v_and_b32 v31, 1, v14"); a("v_lshlrev_b32 v31, 3, v31")
            a("v_lshl_add_u32 v30, v30, 4, v31")
            a("s_lshl_b32 s38, s32, 6")
            a("v_xor_b32 v28, s38, v30"); a("v_lshl_add_u32 v28, v17, 8, v28")
            a("v_xor_b32 v29, 32, v28")
            a("s_lshl_b32 s38, s32, 8")
            a("v_add_u32 v40, s38, v30"); a("v_lshl_add_u32 v40, v17, 10, v40")
            for t in range(1, 8): a("v_xor_b32 v%d, %d, v40" % (vWOa[t], 32 * t))
            a("v_and_b32 v17, 7, v0"); a("v_lshl_add_u32 v17, v1, 3, v17"); a("v_lshlrev_b32 v17, 4, v17")
            a("v_add_u32 v33, %d, v17" % PBASE)
            a("v_bfe_u32 v18, v0, 3, 1"); a("v_lshl_add_u32 v32, v18, 3, v33")
            a("s_lshl_b32 s38, s32, 9"); a("v_add_u32 v32, s38, v32")
        if u == 3:
            role()
            a("s_lshr_b32 s39, s2, 7"); a("s_lshl_b32 s38, s39, 15")
            a("s_bfe_u32 s39, s2, 0x20005"); a("s_lshl_b32 s39, s39, 12"); a("s_add_u32 s38, s38, s39")
            a("s_lshl_b32 s39, s32, 10"); a("s_add_u32 s38, s38, s39")
            gl(42 if uni else 44, "s38")
            a("s_lshl_b32 s39, s92, 16"); a("s_add_u32 s38, s38, s39")
            gl(44 if uni else 42, "s38")
            a("v_lshlrev_b32 v48, 4, v0"); a("v_add_u32 v36, 16384, v48")
            a("s_lshl_b32 s38, s32, 9"); a("s_add_u32 s38, s38, %d" % QBASE)
            a("v_lshl_add_u32 v37, v0, 3, s38")
            a("v_and_b32 v17, 7, v0"); a("v_lshlrev_b32 v17, 8, v17"); a("v_and_b32 v18, 1, v1"); a("v_lshl_add_u32 v17, v18, 4, v17")
            a("v_add_u32 v35, %d, v17" % QBASE)
            a("s_lshl_b32 s39, s92, 11"); a("v_add_u32 v38, s39, v35")
        if u == tag_at:
            wait_word(sHS, "v7", "v8", "0")
            a("ds_read_b64 v[60:61], v7 offset:%d" % (L_NON - L_HST))
            a("s_waitcnt lgkmcnt(0)")
            make_tags()
    c("q projection: 512 rows x 16 columns of wq per wave")
    for u in range(8):
        later_setup(u)
        wait_word(sL, "v6", "v8", str(u))
        if u == 0:
            for s in range(16): a("ds_read_b128 v[%d:%d], v15 offset:%d" % (VX + 4 * s, VX + 4 * s + 3, 64 * s))
        for s in range(2):
            for h in range(2):
                a("ds_read_b64_tr_b16 v[%d:%d], v16 offset:%d" % (VF + 4 * s + 2 * h, VF + 4 * s + 2 * h + 1, u * 8192 + s * 4096 + h * 512))
        a("s_waitcnt lgkmcnt(0)")
        for s in range(2):
            cc = "0" if (u == 0 and s == 0) else "v[%d:%d]" % (VQA, VQA + 3)
            x = VX + 4 * (2 * u + s)
            a("v_mfma_f32_16x16x32_bf16 v[%d:%d], v[%d:%d], v[%d:%d], %s" % (VQA, VQA + 3, VF + 4 * s, VF + 4 * s + 3, x, x + 3, cc))
        if u < 7: set_free(str(u + 1))
        else:
            a("s_add_u32 s36, s32, %d" % T0["kbig"]); set_free("s36")
    stamp(1)
    a("s_mov_b32 exec_lo, 0x00030003"); a("s_mov_b32 exec_hi, 0x00030003")
    a("s_nop 3")
    tag4(VQA)
    a("global_store_dwordx4 v34, v[%d:%d], s[40:41] sc1" % (VQA, VQA + 3))
    a("s_mov_b64 exec, -1")
    stamp(2)
    for r in range(64): a("v_mov_b32 v%d, 0" % (VQ + r))
    for r in range(8): a("v_mov_b32 v%d, v%d" % (VF + 8 + r, VT + (r & 3)))
    def qloads():
        for kh in range(2):
            a("global_load_dwordx4 v[%d:%d], v%d, s[42:43] sc1" % (VF + 4 * kh, VF + 4 * kh + 3, (48, 36)[kh]))
        sk = lab("qs")
        a("s_cmp_eq_u32 s92, 0"); a("s_cbranch_scc1 " + sk)
        for kh in range(2):
            a("global_load_dwordx4 v[%d:%d], v%d, s[44:45] sc1" % (VF + 8 + 4 * kh, VF + 8 + 4 * kh + 3, (48, 36)[kh]))
        a(sk + ":")
    wait_word(sL, "v6", "v8", str(qg_at - 1))
    stamp(14)
    poll_valid(qloads, tagcheck(VF, 16, VF + 16, 8), sleep=qsleep)
    stamp(3)
    for r in range(4): a("v_add_f32 v%d, v%d, v%d" % (VF + r, VF + 16 + r, VF + 20 + r))
    for r in range(4): a("v_add_f32 v%d, v%d, v%d" % (VF + 4 + r, VF + 24 + r, VF + 28 + r))
    for r in range(4): a("v_cvt_pk_bf16_f32 v%d, v%d, v%d" % (VF + 16 + r, VF + 2 * r, VF + 2 * r + 1))
    a("ds_write_b64 v37, v[%d:%d]" % (VF + 16, VF + 17)); a("ds_write_b64 v37, v[%d:%d] offset:2048" % (VF + 18, VF + 19))
    set_stage(1)
    wait_min4(sST, "v12", 8, "0")
    a("s_mov_b32 exec_lo, 0x00ff00ff"); a("s_mov_b32 exec_hi, 0xff00ff00")
    for part in range(2):
        for s in range(8):
            d = VQ + 32 * part + 4 * s
            a("ds_read_b128 v[%d:%d], v%d offset:%d" % (d, d + 3, (35, 38)[part], 32 * s))
    a("s_mov_b64 exec, -1")
    stamp(4)
    c("QK^T: 32 keys x 8 heads per tile (two key sets in the two halves of the MFMA columns)")
    hi = [False]
    def ktile(Tbase, q, sdst, nxt):
        a("s_add_u32 s36, s32, %d" % Tbase)
        wait_word(sL, "v6", "v8", "s36")
        sl = Tbase % NSLOT
        want_hi = sl >= 8
        if want_hi != hi[0]:
            for s in range(8): a("v_xor_b32 v%d, 0x10000, v%d" % (vKa[s], vKa[s]))
            hi[0] = want_hi
        for s in range(8):
            a("ds_read_b128 v[%d:%d], v%d offset:%d" % (VF + 4 * s, VF + 4 * s + 3, vKa[s], (sl % 8) * 8192))
        if nxt is None: a("s_add_u32 s36, s36, 4")
        else: a("s_mov_b32 s36, %d" % nxt)
        a("v_mov_b32 v8, s36")
        for s in range(8):
            a("s_waitcnt lgkmcnt(%d)" % (7 - s))
            if s == 7: a("ds_write_b32 v4, v8")
            cc = "0" if s == 0 else "v[%d:%d]" % (sdst, sdst + 3)
            a("v_mfma_f32_16x16x32_bf16 v[%d:%d], v[%d:%d], v[%d:%d], %s" % (sdst, sdst + 3, VF + 4 * s, VF + 4 * s + 3, q + 4 * s, q + 4 * s + 3, cc))
    for i in range(8):
        ktile(T0["kbig"] + 4 * i, VQ, VS + 4 * i, None)
    ktile(T0["ksm"], VQ + 32, VS + 32, T0["ksm"] + 4)
    stamp(5)
    c("softmax: true maximum over the workgroup's keys, exp, row sums")
    a("s_mov_b32 s38, 0x%x" % f2u(CSCALE))
    a("v_max_f32 v35, v%d, v%d" % (VS, VS + 1))
    for r in range(2, 32, 2): a("v_max3_f32 v35, v35, v%d, v%d" % (VS + r, VS + r + 1))
    a("v_max3_f32 v34, v%d, v%d, v%d" % (VS + 32, VS + 33, VS + 34)); a("v_max_f32 v34, v34, v%d" % (VS + 35))
    bfly("v_max_f32", 34, 36, [3, 4, 5]); bfly("v_max_f32", 35, 36, [3, 4, 5])
    a("v_mul_f32 v34, s38, v34"); a("v_mul_f32 v35, s38, v35")
    a("v_and_b32 v17, 7, v0"); a("v_lshlrev_b32 v17, 2, v17")
    a("v_add_u32 v18, %d, v17" % L_MX)
    a("s_lshl_b32 s39, s32, 6"); a("v_add_u32 v17, s39, v18")
    a("ds_write_b32 v17, v35"); a("ds_write_b32 v17, v34 offset:32")
    set_stage(2)
    wait_min4(sST, "v12", 8, "1")
    for w in range(4):
        a("ds_read_b32 v%d, v18 offset:%d" % (VF + w, 64 * w)); a("ds_read_b32 v%d, v18 offset:%d" % (VF + 4 + w, 64 * w + 32))
    a("s_waitcnt lgkmcnt(0)")
    a("v_max3_f32 v35, v%d, v%d, v%d" % (VF, VF + 1, VF + 2)); a("v_max_f32 v35, v35, v%d" % (VF + 3))
    a("v_max3_f32 v34, v%d, v%d, v%d" % (VF + 4, VF + 5, VF + 6)); a("v_max_f32 v34, v34, v%d" % (VF + 7))
    a("s_cmp_eq_u32 s92, 1"); a("s_cbranch_scc1 L_twomax")
    a("v_max_f32 v35, v35, v34"); a("v_mov_b32 v34, v35")
    a("L_twomax:")
    for r in range(36):
        a("v_fma_f32 v%d, v%d, s38, -v%d" % (VS + r, VS + r, 35 if r < 32 else 34))
    for r in range(36): a("v_exp_f32 v%d, v%d" % (VS + r, VS + r))
    a("s_nop 0")
    for tl in range(9):
        b = VS + 4 * tl
        a("v_cvt_pk_bf16_f32 v%d, v%d, v%d" % (VF + 2 * tl, b, b + 1)); a("v_cvt_pk_bf16_f32 v%d, v%d, v%d" % (VF + 2 * tl + 1, b + 2, b + 3))
        a("ds_write_b64 v32, v[%d:%d] offset:%d" % (VF + 2 * tl, VF + 2 * tl + 1, 2048 * ((tl + 1) % 9 if uni else tl)))
    a("v_add_f32 v34, v%d, v%d" % (VS + 32, VS + 33)); a("v_add_f32 v36, v%d, v%d" % (VS + 34, VS + 35)); a("v_add_f32 v34, v34, v36")
    n = 32
    while n > 1:
        n //= 2
        for r in range(n): a("v_add_f32 v%d, v%d, v%d" % (VS + r, VS + r, VS + n + r))
    a("v_mov_b32 v35, v%d" % VS)
    bfly("v_add_f32", 34, 36, [3, 4, 5]); bfly("v_add_f32", 35, 36, [3, 4, 5])
    a("ds_write_b32 v17, v35 offset:%d" % (L_LW - L_MX)); a("ds_write_b32 v17, v34 offset:%d" % (L_LW - L_MX + 32))
    set_stage(3)
    c("addresses of the two hand-offs that follow PV")
    a("v_and_b32 v37, 7, v0"); a("v_lshlrev_b32 v37, 15, v37")
    a("v_bfe_u32 v18, v0, 3, 1"); a("v_lshl_add_u32 v37, v18, 6, v37"); a("v_lshl_add_u32 v37, v1, 4, v37")
    a("s_bfe_u32 s38, s2, 0x20005"); a("s_lshl_b32 s38, s38, 18")
    a("s_lshl_b32 s39, s32, 13"); a("s_add_u32 s38, s38, s39")
    a("s_lshr_b32 s39, s2, 7"); a("s_lshl_b32 s39, s39, 12"); a("s_add_u32 s38, s38, s39")
    a("s_and_b32 s39, s2, 31"); a("s_lshl_b32 s39, s39, 7"); a("s_add_u32 s38, s38, s39")
    a("s_add_u32 s38, s38, 0x%x" % W_IN1); gl(42, "s38")
    a("s_add_u32 s44, s42, 0x100000"); a("s_addc_u32 s45, s43, 0")
    a("s_mov_b32 s46, 0xff00ff00"); a("s_mov_b32 s47, 0xff00ff00")
    orole()
    a("s_lshr_b32 s38, s89, 1"); a("s_lshl_b32 s38, s38, 14")
    a("s_and_b32 s39, s32, 1"); a("s_lshl_b32 s39, s39, 13"); a("s_add_u32 s38, s38, s39")
    a("s_lshr_b32 s39, s32, 1"); a("s_lshl_b32 s39, s39, 12"); a("s_add_u32 s38, s38, s39")
    a("s_add_u32 s38, s38, 0x%x" % W_IN1); gl(48, "s38")
    a("s_bfe_u32 s38, s89, 0x20005"); a("s_lshr_b32 s39, s32, 1"); a("s_lshl_b32 s39, s39, 2"); a("s_add_u32 s38, s38, s39")
    a("s_lshl_b32 s38, s38, 3"); a("s_mov_b64 s[58:59], 0xff"); a("s_lshl_b64 s[58:59], s[58:59], s38")
    a("s_cmp_lt_u32 s89, %d" % (256 if uni else 128)); a("s_cselect_b64 s[58:59], -1, s[58:59]")
    a("v_and_b32 v49, 1, v0"); a("v_lshlrev_b32 v49, 18, v49")
    a("v_bfe_u32 v18, v0, 2, 2"); a("v_lshl_add_u32 v49, v18, 13, v49")
    a("v_bfe_u32 v18, v0, 1, 1"); a("v_lshl_add_u32 v49, v18, 6, v49"); a("v_lshl_add_u32 v49, v1, 4, v49")
    a("s_lshr_b32 s38, s89, 7"); a("s_lshl_b32 s38, s38, 19")
    a("s_and_b32 s39, s89, 1"); a("s_lshl_b32 s39, s39, 17"); a("s_add_u32 s38, s38, s39")
    a("s_lshl_b32 s39, s32, 15"); a("s_add_u32 s38, s38, s39")
    a("s_bfe_u32 s39, s89, 0x60001"); a("s_lshl_b32 s39, s39, 7"); a("s_add_u32 s38, s38, s39")
    a("s_add_u32 s38, s38, 0x%x" % W_IN2); gl(50, "s38")
    a("s_and_b32 s38, s2, 127"); a("s_lshl_b32 s38, s38, 13"); a("s_lshl_b32 s39, s32, 11"); a("s_add_u32 s38, s38, s39")
    a("s_add_u32 s38, s38, 0x%x" % W_IN2); gl(54, "s38")
    a("s_bfe_u32 s38, s2, 0x10005"); a("s_lshl_b32 s38, s38, 12")
    a("s_bfe_u32 s39, s2, 0x10006"); a("s_lshl_b32 s39, s39, 11"); a("s_add_u32 s38, s38, s39")
    a("s_and_b32 s39, s2, 31"); a("s_lshl_b32 s39, s39, 6"); a("s_add_u32 s38, s38, s39")
    a("s_add_u32 s56, s24, s38"); a("s_addc_u32 s57, s25, 0")
    a("v_lshrrev_b32 v18, 1, v1"); a("v_and_b32 v19, 1, v1"); a("v_lshl_or_b32 v18, v19, 1, v18")
    a("v_and_b32 v19, 7, v0")
    a("v_lshlrev_b32 v51, 4, v19"); a("v_lshl_add_u32 v51, v18, 2, v51")
    a("s_lshl_b32 s38, s32, 7"); a("s_add_u32 s38, s38, %d" % L_RX); a("v_add_u32 v51, s38, v51")
    a("v_and_b32 v50, 3, v0"); a("v_lshlrev_b32 v50, 4, v50"); a("v_lshl_add_u32 v50, v18, 1, v50")
    a("v_bfe_u32 v19, v0, 2, 1"); a("v_lshl_add_u32 v50, v19, 3, v50")
    a("s_and_b32 s38, s32, 1"); a("s_lshl_b32 s38, s38, 7"); a("s_lshr_b32 s39, s32, 1"); a("s_lshl_b32 s39, s39, 6")
    a("s_add_u32 s38, s38, s39"); a("s_add_u32 s38, s38, %d" % L_OB); a("v_add_u32 v50, s38, v50")
    vOa = list(range(20, 28))
    a("v_and_b32 v19, 1, v0"); a("v_lshlrev_b32 v19, 6, v19"); a("v_lshl_add_u32 v19, v1, 4, v19")
    a("v_add_u32 v19, %d, v19" % (L_OB - L_ZERO))
    a("v_lshrrev_b32 v18, 1, v2")
    for t in range(8):
        a("v_cmp_eq_u32 vcc, %d, v18" % t)
        if t == 4: a("v_add_u32 v19, 128, v19")
        else: a("s_nop 0")
        a("s_nop 0")
        a("v_cndmask_b32 v%d, 0, v19, vcc" % vOa[t])
    for t in range(8): a("v_add_u32 v%d, %d, v%d" % (vOa[t], L_ZERO, vOa[t]))
    a("v_lshrrev_b32 v52, 3, v0"); a("s_lshr_b32 s38, s32, 1"); a("s_lshl_b32 s38, s38, 5"); a("v_add_u32 v52, s38, v52")
    a("v_lshlrev_b32 v52, 2, v52"); a("v_add_u32 v52, %d, v52" % L_F)
    a("v_lshlrev_b32 v55, 1, v0"); a("v_lshlrev_b32 v54, 2, v0"); a("v_add_u32 v54, %d, v54" % L_RX)
    VRA = 160; VH = 140; VFA = 192; VOP = 212
    for r in range(16): a("v_mov_b32 v%d, v%d" % (VRA + r, VT + (r & 3)))
    for r in range(8): a("v_mov_b32 v%d, 0" % (VO + r))
    a("s_cmp_eq_u32 s92, 1"); a("s_cselect_b32 s61, %d, 0" % VMID)
    def wo_reads(name, ks):
        T = T0[name]
        wait_word(sL, "v6", "v8", str(T + 3))
        base = (T % NSLOT) * 8192
        if base >= 65536:
            for t in range(8): a("v_add_u32 v%d, 0x10000, v%d" % (vWOa[t], vWOa[t]))
        for t in range(8):
            for h in range(2):
                d = VW + 4 * (8 * (t >> 2) + 4 * ks + (t & 3)) + 2 * h
                a("ds_read_b64_tr_b16 v[%d:%d], v%d offset:%d" % (d, d + 1, vWOa[t], base % 65536 + h * 16384))
        if base >= 65536:
            for t in range(8): a("v_subrev_u32 v%d, 0x10000, v%d" % (vWOa[t], vWOa[t]))
    wo_reads("woE", 0)
    if allearly: wo_reads("woL", 1)
    a("s_waitcnt lgkmcnt(0)")
    set_free(str(VBEG))
    wait_min4(sST, "v12", 8, "2")
    stamp(6)
    def ostore(sp, d):
        for r in range(4): a("v_cndmask_b32 v%d, v%d, v%d, s[46:47]" % (d + r, VO + r, VO + 4 + r))
        tag4(d)
        a("global_store_dwordx4 v37, v[%d:%d], s[%d:%d] sc1" % (d, d + 3, sp, sp + 1))
    c("PV: every wave takes 32 of the 128 dims of every tile")
    a("s_mov_b32 s36, %d" % VBEG)
    a("L_v:")
    a("s_and_b32 s37, s36, %d" % (NSLOT - 1)); a("s_lshl_b32 s37, s37, 13")
    a("v_add_u32 v38, s37, v28"); a("v_add_u32 v39, s37, v29")
    wait_word(sL, "v6", "v8", "s36")
    a("ds_read_b128 v[%d:%d], v33" % (VF + 8, VF + 11))
    a("ds_read_b64_tr_b16 v[%d:%d], v38" % (VF, VF + 1)); a("ds_read_b64_tr_b16 v[%d:%d], v38 offset:4096" % (VF + 2, VF + 3))
    a("ds_read_b64_tr_b16 v[%d:%d], v39" % (VF + 4, VF + 5)); a("ds_read_b64_tr_b16 v[%d:%d], v39 offset:4096" % (VF + 6, VF + 7))
    a("v_add_u32 v33, 512, v33")
    a("s_add_u32 s36, s36, 1")
    a("v_mov_b32 v8, s36")
    a("s_waitcnt lgkmcnt(2)")
    a("v_mfma_f32_16x16x32_bf16 v[%d:%d], v[%d:%d], v[%d:%d], v[%d:%d]" % (VO, VO + 3, VF, VF + 3, VF + 8, VF + 11, VO, VO + 3))
    a("s_waitcnt lgkmcnt(0)")
    a("v_mfma_f32_16x16x32_bf16 v[%d:%d], v[%d:%d], v[%d:%d], v[%d:%d]" % (VO + 4, VO + 7, VF + 4, VF + 7, VF + 8, VF + 11, VO + 4, VO + 7))
    a("ds_write_b32 v4, v8")
    a("s_cmp_eq_u32 s36, s61")
    a("s_cbranch_scc1 L_vmid")
    a("s_cmp_lt_u32 s36, %d" % VEND)
    a("s_cbranch_scc1 L_v")
    a("s_nop 2")
    ostore(42, VO + 8)
    stamp(8)
    def h1loads(dst, sp):
        def f():
            for i in range(4):
                a("global_load_dwordx4 v[%d:%d], v48, s[%d:%d] offset:%d sc1" % (dst + 4 * i, dst + 4 * i + 3, sp, sp + 1, 1024 * i))
        return f
    if h1pre:
        a("s_mov_b64 exec, s[58:59]"); h1loads(VRA, 48)(); a("s_mov_b64 exec, -1")
    wait_word(sHS, "v7", "v8", "1")
    for i in range(4): a("ds_read_b32 v%d, v52 offset:%d" % (VFA + i, 32 * i))
    if h1at:
        wait_word(sL, "v6", "v8", str(T0["woL"] + h1at - 1))
        a("s_mov_b64 exec, s[58:59]"); h1loads(VRA, 48)(); a("s_mov_b64 exec, -1")
    if not allearly: wo_reads("woL", 1)
    if h1ack: a("s_waitcnt vmcnt(0)")
    stamp(9)
    c("combine the split-K partials, then 64 rows x 128 columns of wo per wave")
    poll_valid(h1loads(VRA, 48), tagcheck(VRA, 16, VH, 8), first=not (h1pre or h1at), sleep=h1sleep, back=back, mask0="s[58:59]")
    stamp(10)
    a("s_waitcnt lgkmcnt(0)")
    for r in range(4): a("v_mul_f32 v%d, v%d, v%d" % (VH + r, VH + r, VFA))
    for i in range(1, 4):
        for r in range(4): a("v_fmac_f32 v%d, v%d, v%d" % (VH + r, VH + 4 * i + r, VFA + i))
    a("s_nop 0")
    fold4(VH)
    a("v_cvt_pk_bf16_f32 v%d, v%d, v%d" % (VH, VH, VH))
    a("ds_write_b16 v50, v%d" % VH)
    a("s_waitcnt lgkmcnt(0)")
    a("s_barrier")
    for t in range(8): a("ds_read_b128 v[%d:%d], v%d" % (VOP + 4 * t, VOP + 4 * t + 3, vOa[t]))
    for t in range(8):
        a("s_waitcnt lgkmcnt(%d)" % (7 - t))
        for ch in range(2):
            d = VO + 4 * ch; w = VW + 4 * (8 * ch + t)
            cc = "0" if t == 0 else "v[%d:%d]" % (d, d + 3)
            a("v_mfma_f32_16x16x32_bf16 v[%d:%d], v[%d:%d], v[%d:%d], %s" % (d, d + 3, w, w + 3, VOP + 4 * t, VOP + 4 * t + 3, cc))
    a("s_nop 6")
    for ch in range(2):
        for r in range(4):
            a("v_add_f32_dpp v%d, v%d, v%d row_ror:8 row_mask:0xf bank_mask:0x%x" % (VQA + r, VO + 4 * ch + r, VO + 4 * ch + r, (0x3, 0xc)[ch]))
    tag4(VQA)
    a("global_store_dwordx4 v49, v[%d:%d], s[50:51] sc1" % (VQA, VQA + 3))
    stamp(11)
    a("s_cmp_ge_u32 s2, 128")
    a("s_cbranch_scc1 L_fin")
    c("final reduction over the 64 row blocks")
    def h2loads():
        for i in range(2):
            a("global_load_dwordx4 v[%d:%d], v48, s[54:55] offset:%d sc1" % (VRA + 4 * i, VRA + 4 * i + 3, 1024 * i))
    if ackw: a("s_waitcnt vmcnt(0)")
    poll_valid(h2loads, tagcheck(VRA, 8, VH, 8))
    stamp(12)
    for r in range(4): a("v_add_f32 v%d, v%d, v%d" % (VH + r, VH + r, VH + 4 + r))
    a("s_nop 0")
    fold4(VH)
    a("ds_write_b32 v51, v%d" % VH)
    a("s_waitcnt lgkmcnt(0)")
    a("s_barrier")
    a("s_cmp_lg_u32 s32, 0")
    a("s_cbranch_scc1 L_fin")
    a("s_mov_b32 exec_hi, 0")
    for k in range(4): a("ds_read_b32 v%d, v54 offset:%d" % (VH + k, 128 * k))
    a("s_waitcnt lgkmcnt(0)")
    a("v_add_f32 v%d, v%d, v%d" % (VH, VH, VH + 1)); a("v_add_f32 v%d, v%d, v%d" % (VH + 2, VH + 2, VH + 3))
    a("v_add_f32 v%d, v%d, v%d" % (VH, VH, VH + 2))
    a("v_cvt_pk_bf16_f32 v%d, v%d, v%d" % (VH, VH, VH))
    a("global_store_short v55, v%d, s[56:57]" % VH)
    a("L_fin:")
    stamp(13)
    diag_end(2)
    stamp_flush()
    a("L_end:")
    a("s_endpgm")
    c("sliding-window part finished: publish it and restart the accumulators for the remaining branch-A keys")
    a("L_vmid:")
    a("s_nop 4")
    ostore(44, 196)
    for r in range(8): a("v_mov_b32 v%d, 0" % (VO + r))
    stamp(7)
    a("s_branch L_v")
    nv = 256 if stamps else 248
    return (header(["grid=(256,1,1) block=(384,1,1) lds=%d" % LDS_BYTES]) + kernel_open(KNAME) + a.text()
            + RODATA + descriptor(KNAME, nv, 100, nv))

if __name__ == "__main__":
    open(sys.argv[1], "w").write(gen(**eval("dict(%s)" % (sys.argv[2] if len(sys.argv) > 2 else ""))))
```

```python
import sys, math, struct
from asmlib import *

NSLOT = 16
PBASE = NSLOT * 8192
QBASE = PBASE
XBASE = PBASE + 8192
SY = PBASE + 36 * 512
L_LANDED = SY
L_FREE = SY + 256
L_STAGE = SY + 1280
L_HST = SY + 2304
L_ZERO = SY + 2560
L_MX = SY + 3072
L_LW = SY + 3328
L_F = SY + 3584
L_OB = SY + 4096
L_RX = SY + 4608
L_NON = SY + 5120
L_LVL = SY + 5632
LDS_BYTES = SY + 5888
W_QP = 0x000000
W_ML = 0x020000
W_IN1 = 0x100000
W_IN2 = 0x300000
STAMP_OFF = 0x10000000
CSCALE = math.log2(math.e) / math.sqrt(128.0)
def f2u(x): return struct.unpack("<I", struct.pack("<f", x))[0]

def gen(win=21, win0=24, winT=32, tailT=8, stamps=False, budget=1 << 27, qsleep=2, dbg='', ml_at=16, qg_at=13, burst=3,
        levels=(20, 21, 24, 27), thr=(5, 11, 14), once=8, nsamp=16, diag=0, nz_at=1, tag_at=5, vst=0, ackw=1, warm=1, warm_at=40, h1sleep=0, uni=0, touch=0, touch_at=2, winS=0, allearly=0, back=None, h1pre=0, h1ack=0, h1at=0, hmap=1, operm=0, qperm=0, align=0, calib=0, early_t=0):
    dbg = dbg.split()
    levels = list(levels) if levels else None
    a = Asm()
    uid = [0]
    def lab(p):
        uid[0] += 1
        return "L_%s_%d" % (p, uid[0])
    segs = [("wq", 8), ("kbig", 32), ("ksm", 4), ("woE", 4)] + ([("woL", 4)] if allearly else []) + ([("vsm", 4), ("vbig", 32)] if uni else [("vbig", 32), ("vsm", 4)]) + ([] if allearly else [("woL", 4)])
    T0 = {}; t = 0
    for n, c in segs:
        T0[n] = t; t += c
    NT = t
    VBEG = min(T0["vsm"], T0["vbig"]); VEND = VBEG + 36; VMID = max(T0["vsm"], T0["vbig"])
    assert (T0["woE"] % NSLOT) <= NSLOT - 4 and (T0["woL"] % NSLOT) <= NSLOT - 4
    sB = "s31"
    VST = 250
    VT = 56

    def c(text): a("; " + text)
    def role():
        a("s_lshr_b32 s93, s2, 5")
        if uni: a("s_mov_b32 s92, 1")
        else: a("s_and_b32 s92, s2, 7"); a("s_cmp_eq_u32 s92, s93"); a("s_cselect_b32 s92, 1, 0")
    def offsets():
        c("big part: block s of the branch-A keys, or block s>>3 of the window; small part: 128 keys of the blocks the window carriers left")
        if hmap:
            a("s_and_b32 s59, s2, 31")
            a("s_add_u32 s57, s59, 7"); a("s_sub_u32 s57, s57, s93"); a("s_lshr_b32 s57, s57, 3"); a("s_sub_u32 s57, s59, s57")
            a("s_and_b32 s55, s93, 3"); a("s_lshl_b32 s55, s55, 3"); a("s_and_b32 s58, s93, 4"); a("s_add_u32 s55, s55, s58")
            a("s_cmp_ge_i32 s57, s55"); a("s_cselect_b32 s58, 4, 0"); a("s_add_u32 s57, s57, s58")
            a("s_lshl_b32 s57, s57, 18"); a("s_lshl_b32 s58, s93, 23"); a("s_add_u32 s57, s57, s58")
            a("s_lshl_b32 s55, s55, 18"); a("s_add_u32 s55, s55, s58"); a("s_lshl_b32 s54, s59, 15"); a("s_add_u32 s55, s55, s54")
            a("s_lshr_b32 s54, s59, 3"); a("s_lshl_b32 s54, s54, 18"); a("s_add_u32 s54, s54, s58")
            a("s_add_u32 s54, s54, %d" % ((32768 - 4096) * 256))
        else:
            a("s_lshl_b32 s57, s2, 18")
            a("s_lshl_b32 s58, s93, 23"); a("s_bfe_u32 s59, s2, 0x20003"); a("s_lshl_b32 s55, s59, 18"); a("s_add_u32 s54, s58, s55")
            a("s_add_u32 s54, s54, %d" % ((32768 - 4096) * 256))
            a("s_lshl_b32 s55, s55, 3"); a("s_add_u32 s55, s55, s58"); a("s_lshl_b32 s58, s93, 18"); a("s_add_u32 s55, s55, s58")
            a("s_and_b32 s58, s2, 7"); a("s_lshl_b32 s58, s58, 15"); a("s_add_u32 s55, s55, s58")
        a("s_cmp_eq_u32 s92, 1")
        a("s_cselect_b32 s48, s16, s6"); a("s_cselect_b32 s49, s17, s7")
        a("s_cselect_b32 s50, s18, s8"); a("s_cselect_b32 s51, s19, s9")
        a("s_cselect_b32 s54, s54, s57")
        if uni:
            a("s_lshl_b32 s54, s2, 18")
            a("s_lshl_b32 s55, s93, 23"); a("s_and_b32 s58, s2, 31"); a("s_lshl_b32 s58, s58, 15"); a("s_add_u32 s55, s55, s58")
            a("s_add_u32 s55, s55, %d" % ((32768 - 4096) * 256))
            a("s_mov_b64 s[48:49], s[6:7]"); a("s_mov_b64 s[50:51], s[8:9]")
    def qrole():
        if qperm:
            a("s_and_b32 s3, s2, 0x81"); a("s_bfe_u32 s88, s2, 0x20001"); a("s_lshl_b32 s88, s88, 5"); a("s_or_b32 s3, s3, s88")
            a("s_bfe_u32 s88, s2, 0x40003"); a("s_lshl_b32 s88, s88, 1"); a("s_or_b32 s3, s3, s88")
        else: a("s_mov_b32 s3, s2")
    def orole():
        if operm:
            a("s_lshr_b32 s88, s2, 3"); a("s_add_u32 s89, s88, s2"); a("s_and_b32 s89, s89, 7"); a("s_lshl_b32 s89, s89, 1")
            a("s_and_b32 s88, s88, 1"); a("s_or_b32 s89, s89, s88"); a("s_and_b32 s88, s2, 0xf0"); a("s_or_b32 s89, s89, s88")
        else: a("s_mov_b32 s89, s2")
    def stamp(k):
        if stamps:
            a("s_memrealtime s[96:97]"); a("s_waitcnt lgkmcnt(0)"); a("v_writelane_b32 v%d, s96, %d" % (VST, k))
    def stamp_flush():
        if stamps:
            a("s_mov_b64 exec, -1")
            a("s_getreg_b32 s96, hwreg(HW_REG_XCC_ID)")
            a("v_writelane_b32 v%d, s96, 63" % VST)
            a("s_mul_i32 s96, s2, 6"); a("s_add_u32 s96, s96, s30"); a("s_lshl_b32 s96, s96, 8")
            a("v_lshl_add_u32 v251, v0, 2, s96")
            a("s_add_u32 s98, s28, 0x%x" % STAMP_OFF); a("s_addc_u32 s99, s29, 0")
            a("global_store_dword v251, v%d, s[98:99]" % VST)
            a("s_waitcnt vmcnt(0)")
    site = [0]
    def diag_end(r):
        if diag:
            sk = lab("dg")
            a("s_cmp_eq_u32 s94, 0"); a("s_cbranch_scc1 " + sk)
            a("s_mov_b64 exec, 1")
            a("s_lshl_b32 s95, s2, 8"); a("s_or_b32 s95, s95, s94")
            a("v_mov_b32 v1, s95"); a("v_mov_b32 v2, 0"); a("v_mov_b32 v3, 1")
            a("global_store_dword v2, v1, s[26:27] offset:%d sc1" % (4 * r))
            a("global_atomic_add v2, v3, s[26:27] offset:%d sc1" % (4 * (4 + r)))
            a("s_waitcnt vmcnt(0)")
            a(sk + ":")
    def budget_loop(label, cost=1):
        a("s_sub_u32 %s, %s, %d" % (sB, sB, cost))
        a("s_cbranch_scc0 %s" % label)
        a("s_mov_b32 %s, 0" % sB)
        if diag:
            site[0] += 1
            a("s_cmp_eq_u32 s94, 0"); a("s_cselect_b32 s94, %d, s94" % site[0])
    def wait_word(scache, vaddr, vtmp, thr_, sleep=0):
        lp = lab("pw"); ok = lab("ok")
        a(lp + ":")
        a("s_cmp_gt_u32 %s, %s" % (scache, thr_))
        a("s_cbranch_scc1 " + ok)
        if sleep: a("s_sleep %d" % sleep)
        a("ds_read_b32 %s, %s" % (vtmp, vaddr))
        a("s_waitcnt lgkmcnt(0)")
        a("v_readfirstlane_b32 %s, %s" % (scache, vtmp))
        budget_loop(lp, 1 + sleep // 2)
        a(ok + ":")
    def wait_min4(scache, vaddr, vt, thr_, sleep=0, cmp="s_cmp_gt_u32"):
        lp = lab("pm"); ok = lab("ok")
        a(lp + ":")
        a("%s %s, %s" % (cmp, scache, thr_))
        a("s_cbranch_scc1 " + ok)
        if sleep: a("s_sleep %d" % sleep)
        a("ds_read_b128 v[%d:%d], %s" % (vt, vt + 3, vaddr))
        a("s_waitcnt lgkmcnt(0)")
        a("v_min3_u32 v%d, v%d, v%d, v%d" % (vt, vt, vt + 1, vt + 2))
        a("v_min_u32 v%d, v%d, v%d" % (vt, vt, vt + 3))
        a("s_nop 0")
        a("v_readfirstlane_b32 %s, v%d" % (scache, vt))
        budget_loop(lp, 1 + sleep // 2)
        a(ok + ":")
    def poll_valid(loads, check, sleep=0, first=True, mask0=None, back=None):
        if first:
            if mask0: a("s_mov_b64 exec, %s" % mask0)
            loads()
        lp = lab("pv"); ok = lab("ok"); out = lab("out")
        a(lp + ":")
        a("s_mov_b64 exec, -1")
        a("s_waitcnt vmcnt(0)")
        check()
        a("s_cmp_eq_u64 vcc, 0")
        a("s_cbranch_scc1 " + ok)
        a("s_mov_b64 exec, vcc")
        if back:
            sk = lab("bk")
            a("s_bcnt1_i32_b64 s70, vcc"); a("s_cmp_lt_u32 s70, %d" % back[0]); a("s_cbranch_scc1 " + sk)
            a("s_sleep %d" % back[1])
            a(sk + ":")
        if sleep: a("s_sleep %d" % sleep)
        loads()
        budget_loop(lp, 64)
        a("s_mov_b64 exec, -1")
        a("s_waitcnt vmcnt(0)")
        a(ok + ":")
    def tagcheck(base, n, dst, vtmp):
        def f():
            for i in range(n): a("v_xor_b32 v%d, v%d, v%d" % (dst + i, base + i, VT + (i & 3)))
            h = n // 2
            ch = [list(range(dst + k * h, dst + (k + 1) * h)) for k in range(2)]
            for k in range(2):
                a("v_or3_b32 v%d, v%d, v%d, v%d" % (vtmp + k, ch[k][0], ch[k][1], ch[k][2])); ch[k] = ch[k][3:]
            while len(ch[0]) >= 2:
                for k in range(2):
                    a("v_or3_b32 v%d, v%d, v%d, v%d" % (vtmp + k, vtmp + k, ch[k][0], ch[k][1])); ch[k] = ch[k][2:]
            a("v_or3_b32 v%d, v%d, v%d, v%d" % (vtmp, vtmp, ch[0][0], ch[1][0]))
            a("v_bitop3_b32 v%d, v%d, v%d, s60 bitop3:0xa8" % (vtmp, vtmp, vtmp + 1))
            a("v_cmp_ne_u32 vcc, 0, v%d" % vtmp)
        return f
    def tag4(d):
        for r in range(4): a("v_bfi_b32 v%d, s60, v%d, v%d" % (d + r, VT + r, d + r))
    def make_tags():
        a("s_mov_b32 s60, 0x9e3779b1"); a("v_mul_lo_u32 v62, v60, s60")
        a("s_mov_b32 s60, 0x85ebca6b"); a("v_xor_b32 v63, v61, v62"); a("v_mul_lo_u32 v63, v63, s60")
        a("s_movk_i32 s60, 0x7ff")
        a("v_and_b32 v56, s60, v62")
        a("v_bfe_u32 v57, v62, 11, 10"); a("v_lshlrev_b32 v57, 1, v57")
        a("v_and_b32 v58, 1, v62"); a("v_xor_b32 v58, 1, v58"); a("v_or_b32 v57, v57, v58")
        a("v_lshrrev_b32 v58, 21, v62"); a("v_lshrrev_b32 v59, 21, v63")
    def bfly(op, v, vt, bits):
        for b in bits:
            if b <= 3:
                a("s_nop 1")
                a("%s_dpp v%d, v%d, v%d row_ror:%d row_mask:0xf bank_mask:0xf" % (op, v, v, v, 1 << b))
            else:
                a("v_mov_b32 v%d, v%d" % (vt, v))
                a("s_nop 1")
                a("v_permlane%d_swap_b32 v%d, v%d" % (1 << b, v, vt))
                a("%s v%d, v%d, v%d" % (op, v, v, vt))
    def fold4(v):
        a("v_permlane32_swap_b32 v%d, v%d" % (v, v + 1)); a("v_permlane32_swap_b32 v%d, v%d" % (v + 2, v + 3))
        a("v_add_f32 v%d, v%d, v%d" % (v, v, v + 1)); a("v_add_f32 v%d, v%d, v%d" % (v + 2, v + 2, v + 3))
        a("s_nop 1")
        a("v_permlane16_swap_b32 v%d, v%d" % (v, v + 2))
        a("v_add_f32 v%d, v%d, v%d" % (v, v, v + 2))
        a("s_nop 1")
        a("v_add_f32_dpp v%d, v%d, v%d row_ror:8 row_mask:0xf bank_mask:0xf" % (v, v, v))
    gl = lambda d, off: (a("s_add_u32 s%d, s28, %s" % (d, off)), a("s_addc_u32 s%d, s29, 0" % (d + 1)))

    if early_t: a("s_memrealtime s[90:91]")
    a("s_cmp_ge_u32 s2, 256")
    a("s_cbranch_scc1 L_end")
    a("s_load_dwordx16 s[4:19], s[0:1], 0")
    a("s_load_dwordx8 s[20:27], s[0:1], 64")
    a("s_load_dwordx2 s[28:29], s[0:1], 96")
    a("v_lshrrev_b32 v1, 6, v0")
    a("v_lshlrev_b32 v3, 3, v0")
    a("v_mov_b32 v4, 0"); a("v_mov_b32 v5, 0")
    a("v_readfirstlane_b32 s30, v1")
    a("v_add_u32 v3, %d, v3" % SY)
    a("v_and_b32 v0, 63, v0")
    a("ds_write_b64 v3, v[4:5]")
    a("s_mov_b32 %s, %d" % (sB, budget))
    if diag: a("s_mov_b32 s94, 0")
    if stamps:
        a("v_mov_b32 v%d, 0" % VST); stamp(0)
    a("v_lshrrev_b32 v1, 4, v0")
    a("v_and_b32 v2, 15, v0")
    a("s_cmp_lg_u32 s30, 0")
    a("s_cbranch_scc1 L_notloader")

    c("---- wave 0: streams every weight / cache byte of this workgroup into the LDS ring")
    a("s_setprio 3")
    vA = list(range(4, 12))
    vK = [12, 13, 14, 15]; vV = [16, 17]; vW = [20, 21, 22, 23]
    a("v_lshrrev_b32 v20, 3, v0"); a("v_and_b32 v21, 7, v0"); a("v_and_b32 v22, 1, v1")
    a("v_lshlrev_b32 v20, 13, v20"); a("v_lshlrev_b32 v22, 1, v22")
    a("v_xor_b32 v21, v21, v22")
    a("v_lshl_add_u32 v4, v21, 4, v20")
    a("v_xor_b32 v5, 64, v4")
    qrole()
    a("s_and_b32 s57, s3, 1"); a("s_lshl_b32 s56, s57, 22"); a("s_lshl_b32 s57, s57, 10")
    a("s_bfe_u32 s58, s3, 0x60001"); a("s_lshl_b32 s58, s58, 7"); a("s_add_u32 s56, s56, s58")
    a("s_mov_b32 s34, 0x800000"); a("s_mov_b32 s35, 0x20000")
    a("s_movk_i32 s38, 0x1000"); a("s_mov_b32 s39, 0x20000")
    a("v_lshlrev_b32 v18, 4, v0"); a("s_mov_b32 m0, %d" % XBASE)
    a("s_mov_b32 s40, 0"); a("s_mov_b32 s41, 0")
    a("s_cmp_lt_u32 s2, 128")
    a("s_waitcnt lgkmcnt(0)")
    a("s_cselect_b32 s32, s10, s20"); a("s_cselect_b32 s33, s11, s21")
    a("s_cselect_b32 s36, s4, s14"); a("s_cselect_b32 s37, s5, s15")
    a("s_and_b32 s33, s33, 0xffff"); a("s_and_b32 s37, s37, 0xffff")
    stamp(21)
    a("buffer_load_dwordx4 v18, s[36:39], s57 offen lds")
    a("s_add_u32 s57, s57, 1024")
    a("buffer_load_dwordx4 v18, s[36:39], s57 offen offset:1024 lds")
    def signal(w, j):
        js = (w - 1) % 8 or 8
        if j == js:
            d = (w - 1 - js) // 8
            if d: a("s_sub_i32 s42, s40, %d" % d); a("s_max_i32 s42, s42, 0"); a("v_mov_b32 v25, s42")
            else: a("v_mov_b32 v25, s40")
            a("ds_write_b32 v24, v25")
    def wq_tile(w, waits=True):
        for i in range(8):
            if i % 4 == 0: a("s_add_u32 m0, s41, %d" % (i * 1024)); a("s_nop 0")
            a("buffer_load_dwordx4 v%d, s[32:35], s56 offen offset:%d nt lds" % (vA[i & 1], (i % 4) * 1024))
            a("s_add_u32 s56, s56, %d" % (64512 + (4096 if i % 4 == 3 else 0)))
            if waits:
                a("s_waitcnt vmcnt(%d)" % (w - 1)); signal(w, i + 1)
        a("s_add_u32 s40, s40, 1"); a("s_add_u32 s41, s41, 8192")
    assert win0 >= 8 * burst
    a("L_wq0:")
    wq_tile(win0, waits=False)
    a("s_cmp_lt_u32 s40, %d" % burst); a("s_cbranch_scc1 L_wq0")
    stamp(22)
    a("s_barrier")
    stamp(1)
    a("v_lshlrev_b32 v24, 2, v0"); a("v_add_u32 v24, %d, v24" % L_LANDED)
    for i in range(4):
        a("v_add_u32 v20, %d, v1" % (4 * i)); a("v_xor_b32 v20, v20, v2"); a("v_lshlrev_b32 v20, 4, v20")
        a("v_lshl_add_u32 v%d, v1, 8, v20" % vK[i])
    for i in range(2):
        a("v_add_u32 v20, %d, v1" % (4 * i)); a("v_lshlrev_b32 v20, 1, v20"); a("v_xor_b32 v20, v20, v2")
        a("v_lshlrev_b32 v20, 4, v20"); a("v_lshl_add_u32 v%d, v1, 8, v20" % vV[i])
    a("v_mov_b32 v26, %d" % L_FREE); a("v_mov_b32 v19, %d" % L_LVL)
    role()
    offsets()
    orole()
    a("s_bfe_u32 s59, s89, 0x60001"); a("s_lshl_b32 s59, s59, 17"); a("s_and_b32 s58, s89, 1"); a("s_lshl_b32 s58, s58, 10"); a("s_add_u32 s59, s59, s58")
    a("s_cmp_lt_u32 s2, 128")
    a("s_cselect_b32 s52, s12, s22"); a("s_cselect_b32 s53, s13, s23")
    a("s_mov_b32 s61, 0")
    a("L_wq1:")
    wq_tile(win0)
    a("s_cmp_lt_u32 s40, 8"); a("s_cbranch_scc1 L_wq1")
    def tile_loop(name, w):
        if align: a(".p2align %d" % align)
        a(name + ":")
        a("s_sub_i32 s42, s40, %d" % NSLOT)
        wait_min4("s61", "v26", 28, "s42", cmp="s_cmp_gt_i32")
        for h in range(2):
            if h == 0: a("s_mov_b32 m0, s41"); a("s_add_u32 s45, s56, s44")
            else: a("s_add_u32 m0, s41, 4096"); a("s_add_u32 s41, s41, 8192")
            for i in range(4):
                a("buffer_load_dwordx4 v%d, s[32:35], %s offen offset:%d nt lds" % (vA[4 * h + i], "s45" if h else "s56", i * 1024))
                if h == 1 and i == 0: a("s_and_b32 s41, s41, %d" % (NSLOT * 8192 - 1))
                if h == 1 and i == 1: a("s_add_u32 s56, s45, s44")
                a("s_waitcnt vmcnt(%d)" % (w - 1)); signal(w, 4 * h + i + 1)
        a("s_add_u32 s40, s40, 1")
        a("s_cmp_lt_u32 s40, s43")
        a("s_cbranch_scc1 " + name)
        a("s_setpc_b64 s[46:47]")
    def seg_setup(name):
        lo, sreg, base, size = {"kbig": (48, 54, 0, 64 << 20), "ksm": (16 if uni else 6, 55, 0, 64 << 20), "vbig": (50, 54, 0, 64 << 20), "vsm": (18 if uni else 8, 55, 0, 64 << 20),
                                "woE": (52, 59, 0, 8 << 20), "woL": (52, 59, 65536, 8 << 20)}[name]
        a("s_mov_b32 s32, s%d" % lo); a("s_and_b32 s33, s%d, 0xffff" % (lo + 1)); a("s_mov_b32 s34, 0x%x" % size)
        a("s_add_u32 s56, s%d, %d" % (sreg, base))
        if name in ("kbig", "vsm" if uni else "vbig", "woE", "woL"):
            for i in range(8):
                if name[0] == "w":
                    a("v_xor_b32 v%d, %d, v18" % (vA[i], 32 * i))
                    if i & 3: a("v_add_u32 v%d, %d, v%d" % (vA[i], 1024 * (i & 3), vA[i]))
                else: a("v_mov_b32 v%d, v%d" % (vA[i], vK[i & 3] if name[0] == "k" else vV[i & 1]))
            a("s_mov_b32 s44, %d" % (8192 if name[0] == "w" else 4096))
    stampat = {"kbig": 3, "ksm": 4, "vsm" if uni else "vbig": 5, "vbig" if uni else "vsm": 6}
    disp_at = T0["vbig"] + once
    cut = NT - tailT
    for name, cnt in segs[1:]:
        if name in stampat: stamp(stampat[name])
        seg_setup(name)
        end = T0[name] + cnt
        marks = sorted(set([end] + [m for m in [cut] + ([disp_at] if levels else []) +
                                    ([T0["vbig"] + 8 * q for q in range(1, 4)] if vst else []) if T0[name] < m < end]))
        lo = T0[name]
        for m in marks:
            if levels and lo == disp_at:
                a("ds_read_b32 v27, v19"); a("s_waitcnt lgkmcnt(0)"); a("v_readfirstlane_b32 s62, v27")
            tgt = "L_tileT" if lo >= cut else ("L_disp" if (levels and lo >= disp_at) else "L_tile")
            if winS and name in ("kbig", "vbig") and lo < cut: tgt = "L_spec_" + tgt
            a("s_mov_b32 s43, %d" % m); a("s_call_b64 s[46:47], %s" % tgt)
            if vst and name == "vbig" and (m - T0["vbig"]) in (8, 16, 24): stamp(8 + (m - T0["vbig"]) // 8)
            lo = m
        if name == ("vbig" if uni else "vsm"): stamp(7)
    done = (8 * NT - ((winT if tailT else max(levels or [win])) - 1)) // 8
    while done < NT:
        done += 1
        a("s_waitcnt vmcnt(%d)" % (8 * (NT - done)))
        a("v_mov_b32 v25, %d" % done); a("ds_write_b32 v24, v25")
    a("s_waitcnt lgkmcnt(0)")
    stamp(8)
    diag_end(0)
    stamp_flush()
    a("s_endpgm")
    if winS:
        for tgt in ["L_tile"] + (["L_disp"] if levels else []):
            a("L_spec_%s:" % tgt); a("s_cmp_eq_u32 s92, 0"); a("s_cbranch_scc1 " + tgt); a("s_branch L_tileS")
        tile_loop("L_tileS", winS)
    tile_loop("L_tile", win)
    if levels:
        a("L_disp:")
        for k, w in enumerate(levels):
            if w == win: a("s_cmp_eq_u32 s62, %d" % k); a("s_cbranch_scc1 L_tile")
        rest = [(k, w) for k, w in enumerate(levels) if w != win]
        for k, w in rest[1:]:
            a("s_cmp_eq_u32 s62, %d" % k); a("s_cbranch_scc1 L_disp_%d" % k)
        for k, w in rest: tile_loop("L_disp_%d" % k, w)
    if tailT: tile_loop("L_tileT", winT)

    a("L_notloader:")
    a("s_cmp_gt_u32 s30, 1")
    a("s_cbranch_scc1 L_cons")
    c("---- wave 1: launch nonce, softmax statistics exchange")
    a("v_lshlrev_b32 v24, 2, v0"); a("v_add_u32 v24, %d, v24" % L_HST)
    a("v_mov_b32 v10, 0")
    if not early_t: a("s_memrealtime s[90:91]")
    a("s_waitcnt lgkmcnt(0)")
    c("workgroup 0 publishes a value no other launch has used; it only tags this launch's hand-offs")
    a("s_cmp_lg_u32 s2, 0"); a("s_cbranch_scc1 L_nononce")
    a("s_or_b32 s90, s90, 1"); a("s_or_b32 s91, s91, 0x80000000")
    a("v_mov_b32 v60, s90"); a("v_mov_b32 v61, s91")
    a("s_mov_b64 exec, 1")
    a("global_store_dwordx2 v10, v[60:61], s[26:27] offset:128 sc1")
    a("s_mov_b64 exec, -1")
    a("L_nononce:")
    stamp(22)
    a("s_barrier")
    a("s_mov_b32 s41, 0"); a("v_mov_b32 v26, %d" % L_STAGE)
    a("s_mov_b32 s42, 0"); a("v_mov_b32 v27, %d" % L_LANDED)
    a("s_lshl_b32 s32, s2, 8"); a("s_add_u32 s32, s32, 0x%x" % W_ML); gl(38, "s32")
    orole()
    a("s_bfe_u32 s32, s89, 0x20005"); a("s_lshl_b32 s32, s32, 13")
    a("s_bfe_u32 s33, s89, 0x30002"); a("s_lshl_b32 s33, s33, 4"); a("s_add_u32 s32, s32, s33")
    a("s_lshr_b32 s33, s2, 7"); a("s_lshl_b32 s33, s33, 7"); a("s_add_u32 s32, s32, s33")
    a("s_add_u32 s32, s32, 0x%x" % W_ML); gl(34, "s32")
    a("v_lshrrev_b32 v12, 5, v0"); a("v_lshlrev_b32 v12, 15, v12")
    a("v_and_b32 v16, 31, v0"); a("v_lshl_add_u32 v12, v16, 8, v12")
    a("v_and_b32 v13, 7, v0"); a("v_lshlrev_b32 v13, 2, v13"); a("v_add_u32 v13, %d, v13" % L_MX)
    a("v_lshlrev_b32 v11, 4, v2")
    role()
    a("s_bfe_u32 s32, s89, 0x20005")
    a("s_lshl_b32 s44, 0x01010101, s32"); a("s_lshl_b32 s45, s44, 4")
    a("s_cmp_lt_u32 s2, %d" % (256 if uni else 128)); a("s_cselect_b64 s[44:45], -1, s[44:45]")
    a("s_cmp_eq_u32 s92, 1")
    a("s_cselect_b32 s48, 0x%x, 0" % (0xff00 if uni else 0xff)); a("s_mov_b32 s49, 0")
    a("s_cselect_b32 s50, 0x%x, 0" % (0xff if uni else 0xff00)); a("s_mov_b32 s51, 0")
    a("s_or_b32 s46, s50, s48"); a("s_or_b32 s46, s46, 0xff"); a("s_mov_b32 s47, 0")
    if nz_at: wait_word("s42", "v27", "v28", str(nz_at - 1), sleep=2)
    def nzcheck():
        a("v_min_u32 v18, v60, v61"); a("v_cmp_eq_u32 vcc, 0, v18")
    poll_valid(lambda: a("global_load_dwordx2 v[60:61], v10, s[26:27] offset:128 sc1"), nzcheck, sleep=4)
    a("v_lshlrev_b32 v18, 3, v0"); a("v_add_u32 v18, %d, v18" % L_NON)
    a("ds_write_b64 v18, v[60:61]")
    a("v_mov_b32 v25, 1"); a("ds_write_b32 v24, v25")
    stamp(2)
    make_tags()
    a("v_mov_b32 v14, 0xff800000"); a("v_mov_b32 v15, 0"); a("v_mov_b32 v16, v62"); a("v_mov_b32 v17, v63")
    if levels:
        offs = [(9 + 33 * k + (16 if k >= 8 else 0)) & 255 for k in range(nsamp)]
        for k, d in enumerate(offs):
            a("s_add_u32 s%d, s2, %d" % (64 + k, d)); a("s_and_b32 s%d, s%d, 255" % (64 + k, 64 + k)); a("s_lshl_b32 s%d, s%d, 8" % (64 + k, 64 + k))
        gl(52, "0x%x" % (W_ML + 8))
        a("v_readfirstlane_b32 s54, v62")
        a("v_mov_b32 v25, %d" % levels.index(win)); a("ds_write_b32 v24, v25 offset:%d" % (L_LVL - L_HST))
    if touch:
        c("touch the address translations of the two big segments ahead of the stream")
        a("s_mov_b64 s[84:85], s[48:49]"); a("s_mov_b64 s[86:87], s[50:51]"); a("s_mov_b32 s88, s54")
        offsets()
        a("v_lshlrev_b32 v30, %d, v0" % touch); a("v_add_u32 v30, s54, v30")
        a("s_mov_b64 exec, 0x%x" % ((1 << min(32, 1 << (18 - touch))) - 1) if touch > 12 else "s_mov_b64 exec, -1")
        if touch == 13: a("s_mov_b32 exec_hi, 0")
        a("global_load_dword v31, v30, s[48:49] nt")
        wait_word("s42", "v27", "v28", str(T0["kbig"] + 16), sleep=8)
        a("global_load_dword v32, v30, s[50:51] nt")
        a("s_mov_b64 exec, -1")
        a("s_mov_b64 s[48:49], s[84:85]"); a("s_mov_b64 s[50:51], s[86:87]"); a("s_mov_b32 s54, s88")
    if warm:
        c("prefetch the lines of the last hand-offs into the memory-side cache (values unused)")
        if warm_at: wait_word("s42", "v27", "v28", str(warm_at), sleep=8)
        a("v_lshlrev_b32 v30, 7, v0")
        if warm & 1:
            sh = 12 if warm & 4 else 11
            a("s_lshl_b32 s32, s2, %d" % sh); a("s_add_u32 s32, s32, 0x%x" % W_IN2); gl(56, "s32")
            a("s_mov_b32 exec_lo, 0x%x" % (0xffffffff if warm & 4 else 0xffff)); a("s_mov_b32 exec_hi, 0")
            a("global_load_dword v31, v30, s[56:57]")
        if warm & 2:
            a("s_lshl_b32 s32, s2, 12"); a("s_add_u32 s32, s32, 0x%x" % W_IN1); gl(56, "s32")
            a("s_mov_b32 exec_lo, -1"); a("s_mov_b32 exec_hi, 0")
            a("global_load_dword v32, v30, s[56:57]")
        a("s_mov_b64 exec, -1")
    wait_min4("s41", "v26", 28, "2", sleep=8)
    for w in range(4):
        a("ds_read_b32 v%d, v13 offset:%d" % (32 + w, 64 * w))
        a("ds_read_b32 v%d, v13 offset:%d" % (36 + w, 64 * w + 32))
        a("ds_read_b32 v%d, v13 offset:%d" % (40 + w, L_LW - L_MX + 64 * w))
        a("ds_read_b32 v%d, v13 offset:%d" % (44 + w, L_LW - L_MX + 64 * w + 32))
    a("s_waitcnt lgkmcnt(0)")
    a("v_max3_f32 v32, v32, v33, v34"); a("v_max_f32 v32, v32, v35")
    a("v_max3_f32 v36, v36, v37, v38"); a("v_max_f32 v36, v36, v39")
    a("v_add_f32 v40, v40, v41"); a("v_add_f32 v42, v42, v43"); a("v_add_f32 v40, v40, v42")
    a("v_add_f32 v44, v44, v45"); a("v_add_f32 v46, v46, v47"); a("v_add_f32 v44, v44, v46")
    a("v_max_f32 v60, v32, v36"); a("v_add_f32 v61, v40, v44")
    a("v_cndmask_b32 v60, v60, v36, s[48:49]"); a("v_cndmask_b32 v61, v61, v44, s[48:49]")
    a("v_cndmask_b32 v60, v60, v32, s[50:51]"); a("v_cndmask_b32 v61, v61, v40, s[50:51]")
    a("s_mov_b64 exec, s[46:47]")
    a("global_store_dwordx4 v11, v[60:63], s[38:39] sc1")
    a("s_mov_b64 exec, -1")
    if levels:
        c("how many sampled workgroups have already published? late ones deepen their prefetch window (speed only)")
        for k in range(nsamp): a("s_load_dword s%d, s[52:53], s%d" % (4 + k, 64 + k))
        a("s_mov_b32 s55, 0")
        a("s_waitcnt lgkmcnt(0)")
        for k in range(nsamp):
            a("s_cmp_eq_u32 s%d, s54" % (4 + k)); a("s_addc_u32 s55, s55, 0")
        a("s_mov_b32 s56, 0")
        for tv in thr:
            a("s_cmp_ge_u32 s55, %d" % tv); a("s_addc_u32 s56, s56, 0")
        a("v_mov_b32 v25, s56"); a("ds_write_b32 v24, v25 offset:%d" % (L_LVL - L_HST))
    stamp(4)
    wait_word("s42", "v27", "v28", str(T0["vbig"] + ml_at), sleep=8)
    def mlcheck():
        a("v_xor_b32 v18, v16, v62"); a("v_bitop3_b32 v18, v17, v63, v18 bitop3:0xbe")
        a("v_cmp_ne_u32 vcc, 0, v18")
    poll_valid(lambda: a("global_load_dwordx4 v[14:17], v12, s[34:35] sc1"), mlcheck, sleep=8, mask0="s[44:45]")
    a("v_lshlrev_b32 v13, 2, v0"); a("v_add_u32 v13, %d, v13" % L_F)
    a("v_mov_b32 v17, v14")
    bfly("v_max_f32", 17, 18, [0, 1, 2, 3, 4])
    a("v_sub_f32 v14, v14, v17"); a("v_exp_f32 v14, v14"); a("s_nop 0")
    a("v_mul_f32 v15, v15, v14")
    bfly("v_add_f32", 15, 18, [0, 1, 2, 3, 4])
    a("v_rcp_f32 v15, v15"); a("s_nop 0"); a("v_mul_f32 v14, v14, v15")
    a("ds_write_b32 v13, v14")
    a("v_mov_b32 v25, 2"); a("ds_write_b32 v24, v25")
    a("s_waitcnt lgkmcnt(0)")
    stamp(5)
    diag_end(1)
    stamp_flush()
    a("s_endpgm")

    a("L_cons:")
    c("---- waves 2..5: q projection, QK^T, softmax, PV, output projection")
    a("s_waitcnt lgkmcnt(0)")
    stamp(22)
    a("s_barrier")
    sL = "s33"; sHS = "s34"; sST = "s35"
    a("s_sub_u32 s32, s30, 2")
    a("s_mov_b32 s33, 0"); a("s_mov_b32 s34, 0"); a("s_mov_b32 s35, 0")
    a("s_lshl_b32 s38, s32, 2")
    a("v_lshl_add_u32 v4, v0, 4, s38")
    a("v_add_u32 v5, %d, v4" % L_STAGE); a("v_add_u32 v4, %d, v4" % L_FREE)
    a("v_mov_b32 v6, %d" % L_LANDED); a("v_mov_b32 v7, %d" % L_HST); a("v_mov_b32 v12, %d" % L_STAGE)
    a("v_bfe_u32 v13, v0, 2, 2"); a("v_and_b32 v14, 3, v0")
    VX = 64
    a("v_and_b32 v15, 1, v0"); a("v_lshlrev_b32 v15, 10, v15"); a("v_lshl_add_u32 v15, v1, 4, v15")
    a("v_add_u32 v15, %d, v15" % XBASE)
    def set_free(val):
        a("v_mov_b32 v8, %s" % val); a("ds_write_b32 v4, v8")
    def set_stage(val):
        a("v_mov_b32 v8, %d" % val); a("ds_write_b32 v5, v8")
    a("v_lshl_add_u32 v16, v1, 3, v13"); a("v_lshlrev_b32 v16, 7, v16")
    a("v_lshrrev_b32 v17, 1, v13"); a("v_and_b32 v18, 1, v1"); a("v_lshl_or_b32 v17, v18, 1, v17")
    a("v_lshlrev_b32 v17, 1, v17")
    a("v_lshrrev_b32 v18, 1, v14"); a("s_lshl_b32 s38, s32, 1"); a("v_add_u32 v18, s38, v18")
    a("v_xor_b32 v17, v17, v18"); a("v_lshl_add_u32 v16, v17, 4, v16")
    a("v_and_b32 v18, 1, v14"); a("v_lshl_add_u32 v16, v18, 3, v16")
    a("s_lshr_b32 s38, s2, 7"); a("s_lshl_b32 s38, s38, 16")
    qrole()
    a("s_and_b32 s39, s3, 1"); a("s_lshl_b32 s39, s39, 14"); a("s_add_u32 s38, s38, s39")
    a("s_bfe_u32 s39, s3, 0x60001"); a("s_lshl_b32 s39, s39, 8"); a("s_add_u32 s38, s38, s39")
    a("s_lshl_b32 s39, s32, 6"); a("s_add_u32 s38, s38, s39")
    gl(40, "s38")
    a("v_and_b32 v34, 1, v0"); a("v_lshlrev_b32 v34, 15, v34"); a("v_lshl_add_u32 v34, v1, 4, v34")
    stamp(21)
    VF = 128
    VS = 160
    VQA = 200
    VO = 204
    VW = 64
    VQ = 64
    vKa = list(range(20, 28)); vWOa = list(range(40, 48))
    def later_setup(u):
        if u == 1:
            a("v_lshrrev_b32 v17, 1, v1"); a("v_lshl_add_u32 v17, v17, 4, v2"); a("v_lshlrev_b32 v17, 8, v17")
            a("s_lshl_b32 s38, s32, 13"); a("v_add_u32 v17, s38, v17")
            a("v_and_b32 v18, 1, v1"); a("v_xor_b32 v18, v18, v2"); a("v_lshl_add_u32 v20, v18, 4, v17")
            for s in range(1, 8): a("v_xor_b32 v%d, %d, v20" % (vKa[s], 32 * s))
        if u == 2:
            a("v_lshl_add_u32 v17, v1, 2, v13")
            a("v_and_b32 v18, 7, v17"); a("v_lshlrev_b32 v18, 1, v18")
            a("v_lshrrev_b32 v19, 1, v14")
            a("v_xor_b32 v30, v18, v19")
            a("v_and_b32 v31, 1, v14"); a("v_lshlrev_b32 v31, 3, v31")
            a("v_lshl_add_u32 v30, v30, 4, v31")
            a("s_lshl_b32 s38, s32, 6")
            a("v_xor_b32 v28, s38, v30"); a("v_lshl_add_u32 v28, v17, 8, v28")
            a("v_xor_b32 v29, 32, v28")
            a("s_lshl_b32 s38, s32, 8")
            a("v_add_u32 v40, s38, v30"); a("v_lshl_add_u32 v40, v17, 10, v40")
            for t in range(1, 8): a("v_xor_b32 v%d, %d, v40" % (vWOa[t], 32 * t))
            a("v_and_b32 v17, 7, v0"); a("v_lshl_add_u32 v17, v1, 3, v17"); a("v_lshlrev_b32 v17, 4, v17")
            a("v_add_u32 v33, %d, v17" % PBASE)
            a("v_bfe_u32 v18, v0, 3, 1"); a("v_lshl_add_u32 v32, v18, 3, v33")
            a("s_lshl_b32 s38, s32, 9"); a("v_add_u32 v32, s38, v32")
        if u == 3:
            role()
            a("s_lshr_b32 s39, s2, 7"); a("s_lshl_b32 s38, s39, 15")
            a("s_bfe_u32 s39, s2, 0x20005"); a("s_lshl_b32 s39, s39, 12"); a("s_add_u32 s38, s38, s39")
            a("s_lshl_b32 s39, s32, 10"); a("s_add_u32 s38, s38, s39")
            gl(42 if uni else 44, "s38")
            a("s_lshl_b32 s39, s92, 16"); a("s_add_u32 s38, s38, s39")
            gl(44 if uni else 42, "s38")
            a("v_lshlrev_b32 v48, 4, v0"); a("v_add_u32 v36, 16384, v48")
            a("s_lshl_b32 s38, s32, 9"); a("s_add_u32 s38, s38, %d" % QBASE)
            a("v_lshl_add_u32 v37, v0, 3, s38")
            a("v_and_b32 v17, 7, v0"); a("v_lshlrev_b32 v17, 8, v17"); a("v_and_b32 v18, 1, v1"); a("v_lshl_add_u32 v17, v18, 4, v17")
            a("v_add_u32 v35, %d, v17" % QBASE)
            a("s_lshl_b32 s39, s92, 11"); a("v_add_u32 v38, s39, v35")
        if u == tag_at:
            wait_word(sHS, "v7", "v8", "0")
            a("ds_read_b64 v[60:61], v7 offset:%d" % (L_NON - L_HST))
            a("s_waitcnt lgkmcnt(0)")
            make_tags()
    c("q projection: 512 rows x 16 columns of wq per wave")
    for u in range(8):
        later_setup(u)
        wait_word(sL, "v6", "v8", str(u))
        if u == 0:
            for s in range(16): a("ds_read_b128 v[%d:%d], v15 offset:%d" % (VX + 4 * s, VX + 4 * s + 3, 64 * s))
        for s in range(2):
            for h in range(2):
                a("ds_read_b64_tr_b16 v[%d:%d], v16 offset:%d" % (VF + 4 * s + 2 * h, VF + 4 * s + 2 * h + 1, u * 8192 + s * 4096 + h * 512))
        a("s_waitcnt lgkmcnt(0)")
        for s in range(2):
            cc = "0" if (u == 0 and s == 0) else "v[%d:%d]" % (VQA, VQA + 3)
            x = VX + 4 * (2 * u + s)
            a("v_mfma_f32_16x16x32_bf16 v[%d:%d], v[%d:%d], v[%d:%d], %s" % (VQA, VQA + 3, VF + 4 * s, VF + 4 * s + 3, x, x + 3, cc))
        if u < 7: set_free(str(u + 1))
        else:
            a("s_add_u32 s36, s32, %d" % T0["kbig"]); set_free("s36")
    stamp(1)
    a("s_mov_b32 exec_lo, 0x00030003"); a("s_mov_b32 exec_hi, 0x00030003")
    a("s_nop 3")
    tag4(VQA)
    a("global_store_dwordx4 v34, v[%d:%d], s[40:41] sc1" % (VQA, VQA + 3))
    a("s_mov_b64 exec, -1")
    stamp(2)
    for r in range(64): a("v_mov_b32 v%d, 0" % (VQ + r))
    for r in range(8): a("v_mov_b32 v%d, v%d" % (VF + 8 + r, VT + (r & 3)))
    def qloads():
        for kh in range(2):
            a("global_load_dwordx4 v[%d:%d], v%d, s[42:43] sc1" % (VF + 4 * kh, VF + 4 * kh + 3, (48, 36)[kh]))
        sk = lab("qs")
        a("s_cmp_eq_u32 s92, 0"); a("s_cbranch_scc1 " + sk)
        for kh in range(2):
            a("global_load_dwordx4 v[%d:%d], v%d, s[44:45] sc1" % (VF + 8 + 4 * kh, VF + 8 + 4 * kh + 3, (48, 36)[kh]))
        a(sk + ":")
    wait_word(sL, "v6", "v8", str(qg_at - 1))
    stamp(14)
    poll_valid(qloads, tagcheck(VF, 16, VF + 16, 8), sleep=qsleep)
    stamp(3)
    for r in range(4): a("v_add_f32 v%d, v%d, v%d" % (VF + r, VF + 16 + r, VF + 20 + r))
    for r in range(4): a("v_add_f32 v%d, v%d, v%d" % (VF + 4 + r, VF + 24 + r, VF + 28 + r))
    for r in range(4): a("v_cvt_pk_bf16_f32 v%d, v%d, v%d" % (VF + 16 + r, VF + 2 * r, VF + 2 * r + 1))
    a("ds_write_b64 v37, v[%d:%d]" % (VF + 16, VF + 17)); a("ds_write_b64 v37, v[%d:%d] offset:2048" % (VF + 18, VF + 19))
    set_stage(1)
    wait_min4(sST, "v12", 8, "0")
    a("s_mov_b32 exec_lo, 0x00ff00ff"); a("s_mov_b32 exec_hi, 0xff00ff00")
    for part in range(2):
        for s in range(8):
            d = VQ + 32 * part + 4 * s
            a("ds_read_b128 v[%d:%d], v%d offset:%d" % (d, d + 3, (35, 38)[part], 32 * s))
    a("s_mov_b64 exec, -1")
    stamp(4)
    c("QK^T: 32 keys x 8 heads per tile (two key sets in the two halves of the MFMA columns)")
    hi = [False]
    def ktile(Tbase, q, sdst, nxt):
        a("s_add_u32 s36, s32, %d" % Tbase)
        wait_word(sL, "v6", "v8", "s36")
        sl = Tbase % NSLOT
        want_hi = sl >= 8
        if want_hi != hi[0]:
            for s in range(8): a("v_xor_b32 v%d, 0x10000, v%d" % (vKa[s], vKa[s]))
            hi[0] = want_hi
        for s in range(8):
            a("ds_read_b128 v[%d:%d], v%d offset:%d" % (VF + 4 * s, VF + 4 * s + 3, vKa[s], (sl % 8) * 8192))
        if nxt is None: a("s_add_u32 s36, s36, 4")
        else: a("s_mov_b32 s36, %d" % nxt)
        a("v_mov_b32 v8, s36")
        for s in range(8):
            a("s_waitcnt lgkmcnt(%d)" % (7 - s))
            if s == 7: a("ds_write_b32 v4, v8")
            cc = "0" if s == 0 else "v[%d:%d]" % (sdst, sdst + 3)
            a("v_mfma_f32_16x16x32_bf16 v[%d:%d], v[%d:%d], v[%d:%d], %s" % (sdst, sdst + 3, VF + 4 * s, VF + 4 * s + 3, q + 4 * s, q + 4 * s + 3, cc))
    for i in range(8):
        ktile(T0["kbig"] + 4 * i, VQ, VS + 4 * i, None)
    ktile(T0["ksm"], VQ + 32, VS + 32, T0["ksm"] + 4)
    stamp(5)
    c("softmax: true maximum over the workgroup's keys, exp, row sums")
    a("s_mov_b32 s38, 0x%x" % f2u(CSCALE))
    a("v_max_f32 v35, v%d, v%d" % (VS, VS + 1))
    for r in range(2, 32, 2): a("v_max3_f32 v35, v35, v%d, v%d" % (VS + r, VS + r + 1))
    a("v_max3_f32 v34, v%d, v%d, v%d" % (VS + 32, VS + 33, VS + 34)); a("v_max_f32 v34, v34, v%d" % (VS + 35))
    bfly("v_max_f32", 34, 36, [3, 4, 5]); bfly("v_max_f32", 35, 36, [3, 4, 5])
    a("v_mul_f32 v34, s38, v34"); a("v_mul_f32 v35, s38, v35")
    a("v_and_b32 v17, 7, v0"); a("v_lshlrev_b32 v17, 2, v17")
    a("v_add_u32 v18, %d, v17" % L_MX)
    a("s_lshl_b32 s39, s32, 6"); a("v_add_u32 v17, s39, v18")
    a("ds_write_b32 v17, v35"); a("ds_write_b32 v17, v34 offset:32")
    set_stage(2)
    wait_min4(sST, "v12", 8, "1")
    for w in range(4):
        a("ds_read_b32 v%d, v18 offset:%d" % (VF + w, 64 * w)); a("ds_read_b32 v%d, v18 offset:%d" % (VF + 4 + w, 64 * w + 32))
    a("s_waitcnt lgkmcnt(0)")
    a("v_max3_f32 v35, v%d, v%d, v%d" % (VF, VF + 1, VF + 2)); a("v_max_f32 v35, v35, v%d" % (VF + 3))
    a("v_max3_f32 v34, v%d, v%d, v%d" % (VF + 4, VF + 5, VF + 6)); a("v_max_f32 v34, v34, v%d" % (VF + 7))
    a("s_cmp_eq_u32 s92, 1"); a("s_cbranch_scc1 L_twomax")
    a("v_max_f32 v35, v35, v34"); a("v_mov_b32 v34, v35")
    a("L_twomax:")
    for r in range(36):
        a("v_fma_f32 v%d, v%d, s38, -v%d" % (VS + r, VS + r, 35 if r < 32 else 34))
    for r in range(36): a("v_exp_f32 v%d, v%d" % (VS + r, VS + r))
    a("s_nop 0")
    for tl in range(9):
        b = VS + 4 * tl
        a("v_cvt_pk_bf16_f32 v%d, v%d, v%d" % (VF + 2 * tl, b, b + 1)); a("v_cvt_pk_bf16_f32 v%d, v%d, v%d" % (VF + 2 * tl + 1, b + 2, b + 3))
        a("ds_write_b64 v32, v[%d:%d] offset:%d" % (VF + 2 * tl, VF + 2 * tl + 1, 2048 * ((tl + 1) % 9 if uni else tl)))
    a("v_add_f32 v34, v%d, v%d" % (VS + 32, VS + 33)); a("v_add_f32 v36, v%d, v%d" % (VS + 34, VS + 35)); a("v_add_f32 v34, v34, v36")
    n = 32
    while n > 1:
        n //= 2
        for r in range(n): a("v_add_f32 v%d, v%d, v%d" % (VS + r, VS + r, VS + n + r))
    a("v_mov_b32 v35, v%d" % VS)
    bfly("v_add_f32", 34, 36, [3, 4, 5]); bfly("v_add_f32", 35, 36, [3, 4, 5])
    a("ds_write_b32 v17, v35 offset:%d" % (L_LW - L_MX)); a("ds_write_b32 v17, v34 offset:%d" % (L_LW - L_MX + 32))
    set_stage(3)
    c("addresses of the two hand-offs that follow PV")
    a("v_and_b32 v37, 7, v0"); a("v_lshlrev_b32 v37, 15, v37")
    a("v_bfe_u32 v18, v0, 3, 1"); a("v_lshl_add_u32 v37, v18, 6, v37"); a("v_lshl_add_u32 v37, v1, 4, v37")
    a("s_bfe_u32 s38, s2, 0x20005"); a("s_lshl_b32 s38, s38, 18")
    a("s_lshl_b32 s39, s32, 13"); a("s_add_u32 s38, s38, s39")
    a("s_lshr_b32 s39, s2, 7"); a("s_lshl_b32 s39, s39, 12"); a("s_add_u32 s38, s38, s39")
    a("s_and_b32 s39, s2, 31"); a("s_lshl_b32 s39, s39, 7"); a("s_add_u32 s38, s38, s39")
    a("s_add_u32 s38, s38, 0x%x" % W_IN1); gl(42, "s38")
    a("s_add_u32 s44, s42, 0x100000"); a("s_addc_u32 s45, s43, 0")
    a("s_mov_b32 s46, 0xff00ff00"); a("s_mov_b32 s47, 0xff00ff00")
    orole()
    a("s_lshr_b32 s38, s89, 1"); a("s_lshl_b32 s38, s38, 14")
    a("s_and_b32 s39, s32, 1"); a("s_lshl_b32 s39, s39, 13"); a("s_add_u32 s38, s38, s39")
    a("s_lshr_b32 s39, s32, 1"); a("s_lshl_b32 s39, s39, 12"); a("s_add_u32 s38, s38, s39")
    a("s_add_u32 s38, s38, 0x%x" % W_IN1); gl(48, "s38")
    a("s_bfe_u32 s38, s89, 0x20005"); a("s_lshr_b32 s39, s32, 1"); a("s_lshl_b32 s39, s39, 2"); a("s_add_u32 s38, s38, s39")
    a("s_lshl_b32 s38, s38, 3"); a("s_mov_b64 s[58:59], 0xff"); a("s_lshl_b64 s[58:59], s[58:59], s38")
    a("s_cmp_lt_u32 s89, %d" % (256 if uni else 128)); a("s_cselect_b64 s[58:59], -1, s[58:59]")
    a("v_and_b32 v49, 1, v0"); a("v_lshlrev_b32 v49, 18, v49")
    a("v_bfe_u32 v18, v0, 2, 2"); a("v_lshl_add_u32 v49, v18, 13, v49")
    a("v_bfe_u32 v18, v0, 1, 1"); a("v_lshl_add_u32 v49, v18, 6, v49"); a("v_lshl_add_u32 v49, v1, 4, v49")
    a("s_lshr_b32 s38, s89, 7"); a("s_lshl_b32 s38, s38, 19")
    a("s_and_b32 s39, s89, 1"); a("s_lshl_b32 s39, s39, 17"); a("s_add_u32 s38, s38, s39")
    a("s_lshl_b32 s39, s32, 15"); a("s_add_u32 s38, s38, s39")
    a("s_bfe_u32 s39, s89, 0x60001"); a("s_lshl_b32 s39, s39, 7"); a("s_add_u32 s38, s38, s39")
    a("s_add_u32 s38, s38, 0x%x" % W_IN2); gl(50, "s38")
    a("s_and_b32 s38, s2, 127"); a("s_lshl_b32 s38, s38, 13"); a("s_lshl_b32 s39, s32, 11"); a("s_add_u32 s38, s38, s39")
    a("s_add_u32 s38, s38, 0x%x" % W_IN2); gl(54, "s38")
    a("s_bfe_u32 s38, s2, 0x10005"); a("s_lshl_b32 s38, s38, 12")
    a("s_bfe_u32 s39, s2, 0x10006"); a("s_lshl_b32 s39, s39, 11"); a("s_add_u32 s38, s38, s39")
    a("s_and_b32 s39, s2, 31"); a("s_lshl_b32 s39, s39, 6"); a("s_add_u32 s38, s38, s39")
    a("s_add_u32 s56, s24, s38"); a("s_addc_u32 s57, s25, 0")
    a("v_lshrrev_b32 v18, 1, v1"); a("v_and_b32 v19, 1, v1"); a("v_lshl_or_b32 v18, v19, 1, v18")
    a("v_and_b32 v19, 7, v0")
    a("v_lshlrev_b32 v51, 4, v19"); a("v_lshl_add_u32 v51, v18, 2, v51")
    a("s_lshl_b32 s38, s32, 7"); a("s_add_u32 s38, s38, %d" % L_RX); a("v_add_u32 v51, s38, v51")
    a("v_and_b32 v50, 3, v0"); a("v_lshlrev_b32 v50, 4, v50"); a("v_lshl_add_u32 v50, v18, 1, v50")
    a("v_bfe_u32 v19, v0, 2, 1"); a("v_lshl_add_u32 v50, v19, 3, v50")
    a("s_and_b32 s38, s32, 1"); a("s_lshl_b32 s38, s38, 7"); a("s_lshr_b32 s39, s32, 1"); a("s_lshl_b32 s39, s39, 6")
    a("s_add_u32 s38, s38, s39"); a("s_add_u32 s38, s38, %d" % L_OB); a("v_add_u32 v50, s38, v50")
    vOa = list(range(20, 28))
    a("v_and_b32 v19, 1, v0"); a("v_lshlrev_b32 v19, 6, v19"); a("v_lshl_add_u32 v19, v1, 4, v19")
    a("v_add_u32 v19, %d, v19" % (L_OB - L_ZERO))
    a("v_lshrrev_b32 v18, 1, v2")
    for t in range(8):
        a("v_cmp_eq_u32 vcc, %d, v18" % t)
        if t == 4: a("v_add_u32 v19, 128, v19")
        else: a("s_nop 0")
        a("s_nop 0")
        a("v_cndmask_b32 v%d, 0, v19, vcc" % vOa[t])
    for t in range(8): a("v_add_u32 v%d, %d, v%d" % (vOa[t], L_ZERO, vOa[t]))
    a("v_lshrrev_b32 v52, 3, v0"); a("s_lshr_b32 s38, s32, 1"); a("s_lshl_b32 s38, s38, 5"); a("v_add_u32 v52, s38, v52")
    a("v_lshlrev_b32 v52, 2, v52"); a("v_add_u32 v52, %d, v52" % L_F)
    a("v_lshlrev_b32 v55, 1, v0"); a("v_lshlrev_b32 v54, 2, v0"); a("v_add_u32 v54, %d, v54" % L_RX)
    VRA = 160; VH = 140; VFA = 192; VOP = 212
    for r in range(16): a("v_mov_b32 v%d, v%d" % (VRA + r, VT + (r & 3)))
    for r in range(8): a("v_mov_b32 v%d, 0" % (VO + r))
    a("s_cmp_eq_u32 s92, 1"); a("s_cselect_b32 s61, %d, 0" % VMID)
    def wo_reads(name, ks):
        T = T0[name]
        wait_word(sL, "v6", "v8", str(T + 3))
        base = (T % NSLOT) * 8192
        if base >= 65536:
            for t in range(8): a("v_add_u32 v%d, 0x10000, v%d" % (vWOa[t], vWOa[t]))
        for t in range(8):
            for h in range(2):
                d = VW + 4 * (8 * (t >> 2) + 4 * ks + (t & 3)) + 2 * h
                a("ds_read_b64_tr_b16 v[%d:%d], v%d offset:%d" % (d, d + 1, vWOa[t], base % 65536 + h * 16384))
        if base >= 65536:
            for t in range(8): a("v_subrev_u32 v%d, 0x10000, v%d" % (vWOa[t], vWOa[t]))
    wo_reads("woE", 0)
    if allearly: wo_reads("woL", 1)
    a("s_waitcnt lgkmcnt(0)")
    set_free(str(VBEG))
    wait_min4(sST, "v12", 8, "2")
    stamp(6)
    def ostore(sp, d):
        for r in range(4): a("v_cndmask_b32 v%d, v%d, v%d, s[46:47]" % (d + r, VO + r, VO + 4 + r))
        tag4(d)
        a("global_store_dwordx4 v37, v[%d:%d], s[%d:%d] sc1" % (d, d + 3, sp, sp + 1))
    c("PV: every wave takes 32 of the 128 dims of every tile")
    a("s_mov_b32 s36, %d" % VBEG)
    a("L_v:")
    a("s_and_b32 s37, s36, %d" % (NSLOT - 1)); a("s_lshl_b32 s37, s37, 13")
    a("v_add_u32 v38, s37, v28"); a("v_add_u32 v39, s37, v29")
    wait_word(sL, "v6", "v8", "s36")
    a("ds_read_b128 v[%d:%d], v33" % (VF + 8, VF + 11))
    a("ds_read_b64_tr_b16 v[%d:%d], v38" % (VF, VF + 1)); a("ds_read_b64_tr_b16 v[%d:%d], v38 offset:4096" % (VF + 2, VF + 3))
    a("ds_read_b64_tr_b16 v[%d:%d], v39" % (VF + 4, VF + 5)); a("ds_read_b64_tr_b16 v[%d:%d], v39 offset:4096" % (VF + 6, VF + 7))
    a("v_add_u32 v33, 512, v33")
    a("s_add_u32 s36, s36, 1")
    a("v_mov_b32 v8, s36")
    a("s_waitcnt lgkmcnt(2)")
    a("v_mfma_f32_16x16x32_bf16 v[%d:%d], v[%d:%d], v[%d:%d], v[%d:%d]" % (VO, VO + 3, VF, VF + 3, VF + 8, VF + 11, VO, VO + 3))
    a("s_waitcnt lgkmcnt(0)")
    a("v_mfma_f32_16x16x32_bf16 v[%d:%d], v[%d:%d], v[%d:%d], v[%d:%d]" % (VO + 4, VO + 7, VF + 4, VF + 7, VF + 8, VF + 11, VO + 4, VO + 7))
    a("ds_write_b32 v4, v8")
    a("s_cmp_eq_u32 s36, s61")
    a("s_cbranch_scc1 L_vmid")
    a("s_cmp_lt_u32 s36, %d" % VEND)
    a("s_cbranch_scc1 L_v")
    a("s_nop 2")
    ostore(42, VO + 8)
    stamp(8)
    def h1loads(dst, sp):
        def f():
            for i in range(4):
                a("global_load_dwordx4 v[%d:%d], v48, s[%d:%d] offset:%d sc1" % (dst + 4 * i, dst + 4 * i + 3, sp, sp + 1, 1024 * i))
        return f
    if h1pre:
        a("s_mov_b64 exec, s[58:59]"); h1loads(VRA, 48)(); a("s_mov_b64 exec, -1")
    wait_word(sHS, "v7", "v8", "1")
    for i in range(4): a("ds_read_b32 v%d, v52 offset:%d" % (VFA + i, 32 * i))
    if h1at:
        wait_word(sL, "v6", "v8", str(T0["woL"] + h1at - 1))
        a("s_mov_b64 exec, s[58:59]"); h1loads(VRA, 48)(); a("s_mov_b64 exec, -1")
    if not allearly: wo_reads("woL", 1)
    if h1ack: a("s_waitcnt vmcnt(0)")
    stamp(9)
    c("combine the split-K partials, then 64 rows x 128 columns of wo per wave")
    poll_valid(h1loads(VRA, 48), tagcheck(VRA, 16, VH, 8), first=not (h1pre or h1at), sleep=h1sleep, back=back, mask0="s[58:59]")
    stamp(10)
    a("s_waitcnt lgkmcnt(0)")
    for r in range(4): a("v_mul_f32 v%d, v%d, v%d" % (VH + r, VH + r, VFA))
    for i in range(1, 4):
        for r in range(4): a("v_fmac_f32 v%d, v%d, v%d" % (VH + r, VH + 4 * i + r, VFA + i))
    a("s_nop 0")
    fold4(VH)
    a("v_cvt_pk_bf16_f32 v%d, v%d, v%d" % (VH, VH, VH))
    a("ds_write_b16 v50, v%d" % VH)
    a("s_waitcnt lgkmcnt(0)")
    a("s_barrier")
    for t in range(8): a("ds_read_b128 v[%d:%d], v%d" % (VOP + 4 * t, VOP + 4 * t + 3, vOa[t]))
    for t in range(8):
        a("s_waitcnt lgkmcnt(%d)" % (7 - t))
        for ch in range(2):
            d = VO + 4 * ch; w = VW + 4 * (8 * ch + t)
            cc = "0" if t == 0 else "v[%d:%d]" % (d, d + 3)
            a("v_mfma_f32_16x16x32_bf16 v[%d:%d], v[%d:%d], v[%d:%d], %s" % (d, d + 3, w, w + 3, VOP + 4 * t, VOP + 4 * t + 3, cc))
    a("s_nop 6")
    for ch in range(2):
        for r in range(4):
            a("v_add_f32_dpp v%d, v%d, v%d row_ror:8 row_mask:0xf bank_mask:0x%x" % (VQA + r, VO + 4 * ch + r, VO + 4 * ch + r, (0x3, 0xc)[ch]))
    tag4(VQA)
    a("global_store_dwordx4 v49, v[%d:%d], s[50:51] sc1" % (VQA, VQA + 3))
    stamp(11)
    a("s_cmp_ge_u32 s2, 128")
    a("s_cbranch_scc1 L_fin")
    c("final reduction over the 64 row blocks")
    def h2loads():
        for i in range(2):
            a("global_load_dwordx4 v[%d:%d], v48, s[54:55] offset:%d sc1" % (VRA + 4 * i, VRA + 4 * i + 3, 1024 * i))
    if ackw: a("s_waitcnt vmcnt(0)")
    poll_valid(h2loads, tagcheck(VRA, 8, VH, 8))
    stamp(12)
    for r in range(4): a("v_add_f32 v%d, v%d, v%d" % (VH + r, VH + r, VH + 4 + r))
    a("s_nop 0")
    fold4(VH)
    a("ds_write_b32 v51, v%d" % VH)
    a("s_waitcnt lgkmcnt(0)")
    a("s_barrier")
    a("s_cmp_lg_u32 s32, 0")
    a("s_cbranch_scc1 L_fin")
    a("s_mov_b32 exec_hi, 0")
    for k in range(4): a("ds_read_b32 v%d, v54 offset:%d" % (VH + k, 128 * k))
    a("s_waitcnt lgkmcnt(0)")
    a("v_add_f32 v%d, v%d, v%d" % (VH, VH, VH + 1)); a("v_add_f32 v%d, v%d, v%d" % (VH + 2, VH + 2, VH + 3))
    a("v_add_f32 v%d, v%d, v%d" % (VH, VH, VH + 2))
    a("v_cvt_pk_bf16_f32 v%d, v%d, v%d" % (VH, VH, VH))
    if calib:
        a("v_readfirstlane_b32 s70, v60"); a("s_add_u32 s70, s70, %d" % (calib * 100))
        a("L_cal:"); a("s_memrealtime s[72:73]"); a("s_waitcnt lgkmcnt(0)"); a("s_sub_u32 s72, s72, s70"); a("s_cmp_lt_i32 s72, 0"); a("s_cbranch_scc1 L_cal")
    a("global_store_short v55, v%d, s[56:57]" % VH)
    a("L_fin:")
    stamp(13)
    diag_end(2)
    stamp_flush()
    a("L_end:")
    a("s_endpgm")
    c("sliding-window part finished: publish it and restart the accumulators for the remaining branch-A keys")
    a("L_vmid:")
    a("s_nop 4")
    ostore(44, 196)
    for r in range(8): a("v_mov_b32 v%d, 0" % (VO + r))
    stamp(7)
    a("s_branch L_v")
    nv = 256 if stamps else 248
    return (header(["grid=(256,1,1) block=(384,1,1) lds=%d" % LDS_BYTES]) + kernel_open(KNAME) + a.text()
            + RODATA + descriptor(KNAME, nv, 100, nv))

if __name__ == "__main__":
    open(sys.argv[1], "w").write(gen(**eval("dict(%s)" % (sys.argv[2] if len(sys.argv) > 2 else ""))))
```
